```python
import torch

def _softmax(x, axis=-1):
    return torch.softmax(x, dim=axis)

def _gelu(x):
    return torch.nn.functional.gelu(x, approximate='tanh')

def _silu(x):
    return torch.nn.functional.silu(x)

def _sigmoid(x):
    return torch.sigmoid(x)

def _layernorm(x, axis=-1, eps=1e-05):
    m = x.mean(dim=axis, keepdim=True)
    v = x.var(dim=axis, keepdim=True, unbiased=False)
    return (x - m) / torch.sqrt(v + eps)

def _scatter_add(tgt, idx, src, axis=0):
    return tgt.clone().index_add_(axis, idx, src)

def _segment_sum(src, seg, n):
    out = torch.zeros((n,) + src.shape[1:], dtype=src.dtype)
    return out.index_add_(0, seg, src)

def _pad(x, pw):
    flat = tuple((v for pair in reversed(pw) for v in pair))
    return torch.nn.functional.pad(x, flat)
kernel_name = 'interleave_layers__memory_aug_recurrent_mem_tr__mixer_channel_mlp__prompt'

def setup_inputs():

    _w = lambda a: (lambda t: t.to(torch.bfloat16) if t.is_floating_point() else t)(torch.as_tensor(a))

    def _A_setup():
        B, S, Dm = (1, 2048, 448)
        H, Dh = (16, 256)
        M, seg = (8, 32)
        seg = min(seg, S)
        S = S // seg * seg
        return {'x': _w((lambda *s: torch.randn(*s, dtype=torch.bfloat16) * 0.05)(B, S, Dm)), 'mem0': _w((lambda *s: torch.randn(*s, dtype=torch.bfloat16) * 0.8)(B, M, Dm)), 'Wq': _w((lambda *s: torch.randn(*s, dtype=torch.bfloat16) * 1.6)(Dm, H, Dh) * Dm ** (-0.5)), 'Wk': _w((lambda *s: torch.randn(*s, dtype=torch.bfloat16) * 1.6)(Dm, H, Dh) * Dm ** (-0.5)), 'Wv': _w((lambda *s: torch.randn(*s, dtype=torch.bfloat16) * 0.8)(Dm, H, Dh) * Dm ** (-0.5)), 'Wo': _w((lambda *s: torch.randn(*s, dtype=torch.bfloat16) * 0.8)(H, Dh, Dm) * (H * Dh) ** (-0.5)), 'seg_len': seg}
    _A_in = _A_setup()

    def _B_setup():
        B, S, D, F = (1, 2048, 448, 1792)
        return {'x': _w((lambda *s: torch.randn(*s, dtype=torch.bfloat16) * 0.05)(B, S, D)), 'w1': _w((lambda *s: torch.randn(*s, dtype=torch.bfloat16) * 3.2)(D, F) * D ** (-0.5)), 'b1': _w((lambda *s: torch.randn(*s, dtype=torch.bfloat16) * 1.6)(F)), 'w2': _w((lambda *s: torch.randn(*s, dtype=torch.bfloat16) * 0.1)(F, D) * F ** (-0.5)), 'b2': _w((lambda *s: torch.randn(*s, dtype=torch.bfloat16) * 0.1)(D))}
    _B_in = _B_setup()
    return {'A_x': _A_in['x'], 'A_mem0': _A_in['mem0'], 'A_Wq': _A_in['Wq'], 'A_Wk': _A_in['Wk'], 'A_Wv': _A_in['Wv'], 'A_Wo': _A_in['Wo'], 'A_seg_len': _A_in['seg_len'], 'B_x': _B_in['x'], 'B_w1': _B_in['w1'], 'B_b1': _B_in['b1'], 'B_w2': _B_in['w2'], 'B_b2': _B_in['b2']}

def reference(A_x, A_mem0, A_Wq, A_Wk, A_Wv, A_Wo, A_seg_len, B_x, B_w1, B_b1, B_w2, B_b2):

    def _A_ref(x, mem0, Wq, Wk, Wv, Wo, seg_len):
        B, S, Dm = x.shape
        H, Dh = (Wq.shape[1], Wq.shape[2])
        M = mem0.shape[1]
        scale = Dh ** (-0.5)
        n_seg = S // seg_len
        L = M + seg_len
        idx = torch.arange(L)
        mask = (idx[:, None] < M) | (idx[:, None] >= idx[None, :])
        mem = mem0
        outs = []
        for s in range(n_seg):
            xs = x[:, s * seg_len:(s + 1) * seg_len, :].clone()
            h = torch.concatenate([mem, xs], axis=1)
            q = torch.einsum('btd,dhe->bhte', h, Wq)
            k = torch.einsum('btd,dhe->bhte', h, Wk)
            v = torch.einsum('btd,dhe->bhte', h, Wv)
            scores = torch.einsum('bhqe,bhke->bhqk', q, k) * scale
            scores = torch.where(mask[None, None], scores, -1000000000.0)
            p = _softmax(scores, axis=-1)
            o = torch.einsum('bhqk,bhke->bhqe', p, v)
            o = torch.einsum('bhte,hed->btd', o, Wo)
            mem = o[:, :M, :].clone()
            outs.append(o[:, M:, :])
        return torch.concatenate(outs, axis=1)

    def _B_ref(x, w1, b1, w2, b2):
        y = _layernorm(x, axis=-1)
        h = _gelu(torch.einsum('bsd,df->bsf', y, w1) + b1)
        return torch.einsum('bsf,fd->bsd', h, w2) + b2
    x = A_x
    x = x + _A_ref(_layernorm(x, axis=-1), A_mem0, A_Wq, A_Wk, A_Wv, A_Wo, A_seg_len)
    x = x + _B_ref(_layernorm(x, axis=-1), B_w1, B_b1, B_w2, B_b2)
    x = x + _A_ref(_layernorm(x, axis=-1), A_mem0, A_Wq, A_Wk, A_Wv, A_Wo, A_seg_len)
    x = x + _B_ref(_layernorm(x, axis=-1), B_w1, B_b1, B_w2, B_b2)
    return x
```

```python
import re

REG_RE = re.compile(r'(?<![\w.])([vas])(?:(\d+)|\[(\d+):(\d+)\])(?![\w])')
TRANS = ('v_exp_', 'v_log_', 'v_rcp_', 'v_rsq_', 'v_sqrt_', 'v_sin_', 'v_cos_')

def regs_of(tok):
    out = set()
    for m in REG_RE.finditer(tok):
        k = m.group(1)
        if m.group(2) is not None:
            out.add((k, int(m.group(2))))
        else:
            for i in range(int(m.group(3)), int(m.group(4)) + 1):
                out.add((k, i))
    if re.search(r'\bvcc\b', tok): out |= {('s', 106), ('s', 107)}
    if re.search(r'\bvcc_lo\b', tok): out.add(('s', 106))
    if re.search(r'\bvcc_hi\b', tok): out.add(('s', 107))
    if re.search(r'\bm0\b', tok): out.add(('s', 124))
    return out

def split_ops(s):
    ops, depth, cur = [], 0, ''
    for ch in s:
        if ch == '[' or ch == '(': depth += 1
        if ch == ']' or ch == ')': depth -= 1
        if ch == ',' and depth == 0:
            ops.append(cur.strip()); cur = ''
        else:
            cur += ch
    if cur.strip(): ops.append(cur.strip())
    return ops

class Ins:
    def __init__(self, text):
        self.text = text
        t = text.split(';')[0].strip()
        self.label = None
        self.op = None
        self.d = set(); self.r = set()
        self.kind = 'other'
        if not t or t.startswith('.'):
            self.kind = 'dir'; return
        if t.endswith(':'):
            self.label = t[:-1]; self.kind = 'label'; return
        p = t.split(None, 1)
        op = self.op = p[0]
        ops = split_ops(p[1]) if len(p) > 1 else []
        self.ops = ops
        R = [regs_of(o) for o in ops]
        allr = lambda L: set().union(*L) if L else set()
        self.ws = 1
        if op == 's_nop':
            self.ws = int(ops[0], 0) + 1; self.kind = 'nop'
        elif op.startswith('v_mfma') or op.startswith('v_smfmac'):
            self.kind = 'mfma'
            self.passes = 8 if '32x32' in op else 4
            self.d = R[0]; self.ab = R[1] | R[2]
            if op.startswith('v_smfmac'):
                self.c = R[0]; self.ab |= R[3]
            else:
                self.c = R[3]
            self.r = self.ab | self.c
        elif op.startswith('v_'):
            self.kind = 'valu'
            self.trans = op.startswith(TRANS)
            self.dpp = ('_dpp' in op) or any(k in t for k in (' quad_perm', ' row_', ' wave_'))
            self.sdwa = ('_sdwa' in op) or ('op_sel' in t and not op.startswith('v_pk_'))
            if op.startswith('v_permlane') and 'swap' in op:
                self.d = R[0] | R[1]; self.r = R[0] | R[1]
            elif op.startswith(('v_add_co', 'v_sub_co', 'v_addc_co', 'v_subb_co', 'v_subrev_co', 'v_div_scale', 'v_mad_u64')):
                self.d = R[0] | R[1]; self.r = allr(R[2:])
            else:
                self.d = R[0]; self.r = allr(R[1:])
                if op.startswith(('v_fmac', 'v_pk_fmac', 'v_dot2c', 'v_writelane')) or self.dpp or self.sdwa:
                    self.r |= R[0]
                if op.startswith('v_cndmask') and len(ops) == 3:
                    self.r |= {('s', 106), ('s', 107)}
        elif op.startswith(('buffer_', 'global_', 'flat_')):
            self.kind = 'vmem'
            lds = bool(re.search(r'\blds\b', t)) or '_lds_' in op
            self.lds = lds
            self.wide = set()
            if 'load' in op and not lds:
                self.d = R[0]; self.r = allr(R[1:])
            elif 'atomic' in op:
                self.r = allr(R)
                if ' sc0' in t: self.d = R[0]
            else:
                self.r = allr(R)
                if 'store' in op and ('x3' in op or 'x4' in op):
                    self.wide = R[0] if op.startswith('buffer_') else R[1]
            if lds: self.r.add(('s', 124))
        elif op.startswith('ds_'):
            self.kind = 'ds'
            if op.startswith(('ds_read', 'ds_bpermute', 'ds_permute', 'ds_swizzle')) or '_rtn' in op:
                self.d = R[0]; self.r = allr(R[1:])
            else:
                self.r = allr(R)
        elif op.startswith('s_'):
            self.kind = 'salu'
            if op.startswith(('s_cbranch', 's_branch')):
                self.kind = 'branch'; self.target = ops[0]
            elif op == 's_endpgm':
                self.kind = 'end'
            elif op.startswith(('s_cmp', 's_bitcmp', 's_waitcnt', 's_barrier', 's_sleep', 's_setprio')):
                self.r = allr(R)
            else:
                self.d = R[0] if R else set(); self.r = allr(R[1:])
        else:
            raise ValueError('unknown instruction: ' + text)

def vonly(s): return {x for x in s if x[0] != 's'}
def sonly(s): return {x for x in s if x[0] == 's'}

def need(p, c):
    n = 0
    if p.kind == 'valu':
        pv, ps = vonly(p.d), sonly(p.d)
        if c.kind == 'mfma' and pv & c.r: n = max(n, 2)
        if c.kind == 'valu':
            if pv & c.r:
                if c.dpp or c.op.startswith('v_permlane'): n = max(n, 2)
                if c.op.startswith(('v_readlane', 'v_readfirstlane')): n = max(n, 1)
                if p.trans: n = max(n, 1)
            if p.sdwa and pv & (c.r | c.d): n = max(n, 1)
            if ps & c.r:
                n = max(n, 4 if c.op.startswith(('v_readlane', 'v_writelane', 'v_div_fmas')) else 2)
        if c.kind == 'vmem' and ps & c.r: n = max(n, 5)
    if p.kind == 'mfma':
        P = p.passes
        if c.kind == 'mfma':
            if p.d & c.ab: n = max(n, P + 4)
            if p.d & c.c:
                if not (p.d == c.c and p.op == c.op): n = max(n, P + 2)
            elif p.d & c.d: n = max(n, P + 2)
        if c.kind == 'valu':
            if p.d & (c.r | c.d): n = max(n, P + 4)
            if p.c & c.d: n = max(n, P - 1)
        if c.kind in ('vmem', 'ds') and p.d & (c.r | c.d): n = max(n, P + 4)
    if p.kind == 'vmem' and p.wide:
        if c.kind == 'valu' and p.wide & c.d: n = max(n, 2)
        elif c.kind in ('vmem', 'ds', 'mfma') and p.wide & c.d: n = max(n, 1)
    if p.kind == 'salu' and ('s', 124) in p.d:
        if (c.kind == 'vmem' and c.lds) or (c.kind == 'ds' and 'addtid' in c.op): n = max(n, 1)
    return n

MAXD = 13

def fix_hazards(lines, verbose=False):
    ins = [Ins(l) for l in lines]
    def build():
        src = {}
        for i, x in enumerate(ins):
            if x.kind == 'branch': src.setdefault(x.target, []).append(i)
        return src
    src = build()
    added = 0
    i = 0
    while i < len(ins):
        c = ins[i]
        if c.kind in ('valu', 'mfma', 'vmem', 'ds'):
            worst = 0
            stack = [(i - 1, (), True)]
            nvis = 0
            while stack:
                j, path, fall = stack.pop()
                dist = sum(x.ws for x in path)
                while j >= 0 and dist < MAXD:
                    nvis += 1
                    assert nvis < 100000
                    p = ins[j]
                    if p.kind == 'label':
                        for b in src.get(p.label, []): stack.append((b, path, False))
                        j -= 1; fall = True; continue
                    if p.kind == 'dir':
                        j -= 1; continue
                    if fall and (p.kind == 'end' or (p.kind == 'branch' and p.op == 's_branch')):
                        break
                    fall = True
                    k = need(p, c)
                    if k > dist:
                        t = 1; free = p.passes if p.kind == 'mfma' else 0
                        for x in reversed(path):
                            if x.kind == 'mfma':
                                t = max(t, free); free = t + x.passes
                            t += x.ws
                        if k - (t - 1) > worst: worst = k - (t - 1)
                    path = path + (p,)
                    dist += p.ws
                    j -= 1
            if worst > 0:
                if verbose: print('nop', worst, 'before', c.text)
                ins.insert(i, Ins('s_nop %d' % (worst - 1)))
                added += worst
                src = build()
                i += 1
        i += 1
    return [x.text for x in ins], added

class Asm:
    def __init__(self):
        self.L = []
        self.uid = 0
    def __call__(self, s):
        for l in s.split('\n'):
            l = l.strip()
            if l: self.L.append(l)
    def lab(self, base='L'):
        self.uid += 1
        return '%s_%d' % (base, self.uid)
    def text(self, verbose=False):
        out, added = fix_hazards(self.L, verbose)
        return '\n'.join(('' if (l.endswith(':') or l.startswith(('.', ';'))) else '  ') + l for l in out) + '\n'

def vr(base, n=1, k='v'):
    return '%s%d' % (k, base) if n == 1 else '%s[%d:%d]' % (k, base, base + n - 1)

def wreg(i, n, vbase):
    if i + n <= 256: return vr(i, n, 'a')
    assert i >= 256
    return vr(vbase + i - 256, n, 'v')

def kd(name, vgpr=512, accum=256, sgpr=102, karg=120):
    return f'''.amdhsa_kernel {name}
  .amdhsa_next_free_vgpr {vgpr}
  .amdhsa_next_free_sgpr {sgpr}
  .amdhsa_accum_offset {accum}
  .amdhsa_group_segment_fixed_size 0
  .amdhsa_kernarg_size {karg}
  .amdhsa_user_sgpr_count 2
  .amdhsa_user_sgpr_kernarg_segment_ptr 1
  .amdhsa_system_sgpr_workgroup_id_x 1
  .amdhsa_float_denorm_mode_32 3
.end_amdhsa_kernel
'''

def lanefn(e, dst, f, vlane, tmp, stmp='s100'):
    M = 0xffffffff
    vals = [f(l) & M for l in range(64)]
    dv = sorted(set(vals))
    if len(dv) == 2:
        mask = sum(1 << l for l in range(64) if vals[l] == dv[1])
        e(f's_mov_b32 vcc_lo, 0x{mask & M:x}\ns_mov_b32 vcc_hi, 0x{mask >> 32:x}')
        e(f'v_mov_b32 v{dst}, 0x{dv[0]:x}\nv_mov_b32 v{tmp[0]}, 0x{dv[1]:x}')
        e(f'v_cndmask_b32 v{dst}, v{dst}, v{tmp[0]}, vcc')
        return
    def affine(fixed):
        free = [b for b in range(6) if b not in fixed]
        base = sum(v << b for b, v in fixed.items())
        c0 = vals[base]
        w = {b: (vals[base | 1 << b] - c0) & M for b in free}
        for x in range(1 << len(free)):
            l = base; exp = c0
            for i, b in enumerate(free):
                if x >> i & 1: l |= 1 << b; exp += w[b]
            if vals[l] != exp & M: return None
        return c0, w
    def cost(fixed, depth):
        if affine(fixed) is not None: return (1, None)
        if depth == 0: return (999, None)
        best = (999, None)
        for b in range(6):
            if b in fixed: continue
            k = cost({**fixed, b: 0}, depth - 1)[0] + cost({**fixed, b: 1}, depth - 1)[0]
            if k < best[0]: best = (k, b)
        return best
    def emit(d, fixed, tmp):
        a = affine(fixed)
        if a is not None:
            c0, w = a
            e(f'v_mov_b32 v{d}, 0x{c0:x}')
            bits = [b for b in sorted(w) if w[b]]
            i = 0
            while i < len(bits):
                j = i
                while j + 1 < len(bits) and bits[j + 1] == bits[j] + 1 and w[bits[j + 1]] == (2 * w[bits[j]]) & M: j += 1
                e(f'v_bfe_u32 v{tmp[0]}, v{vlane}, {bits[i]}, {j - i + 1}')
                e(f's_mov_b32 {stmp}, 0x{w[bits[i]]:x}')
                e(f'v_mul_lo_u32 v{tmp[0]}, v{tmp[0]}, {stmp}')
                e(f'v_add_u32 v{d}, v{d}, v{tmp[0]}')
                i = j + 1
            return
        for depth in range(1, 6):
            k, b = cost(fixed, depth)
            if k < 999: break
        emit(d, {**fixed, b: 0}, tmp)
        emit(tmp[1], {**fixed, b: 1}, [tmp[0]] + tmp[2:])
        e(f'v_and_b32 v{tmp[0]}, {1 << b}, v{vlane}')
        e(f'v_cmp_ne_u32 vcc, 0, v{tmp[0]}')
        e(f'v_cndmask_b32 v{d}, v{d}, v{tmp[1]}, vcc')
    emit(dst, {}, tmp)
```

```python
import math
from asmlib import *
from layout import *
from rec import WSR, S_W, S_ID, S_LAY, BIG, DPPM, load_weights, chk, interleave
from k0 import fhex, allreduce_g

S_FIRST = 's23'
g = lambda l: l >> 4
c = lambda l: l & 15
z2 = lambda r: f'v_mov_b64 {vr(r, 2)}, 0'
pk = lambda d, a, b: f'v_cvt_pk_bf16_f32 v{d}, v{a}, v{b}'
def mm(d, a, b, cc): return f'v_mfma_f32_16x16x32_bf16 {d}, {a}, {b}, {cc}'

class LQ:
    def __init__(self, e): self.e = e; self.q = []
    def issue(self, text, tag=None):
        self.e(text); self.q.append(tag)
    def wait(self, tag):
        if tag not in self.q: return
        i = len(self.q) - 1 - self.q[::-1].index(tag)
        n = len(self.q) - 1 - i
        assert n <= 15
        self.e(f's_waitcnt lgkmcnt({n})'); self.q = self.q[i + 1:]
    def drain(self):
        self.e('s_waitcnt lgkmcnt(0)'); self.q = []

def spin(e): e('s_sub_u32 s99, s99, 1\ns_cbranch_scc1 FAIL')

def stage_tile(e, sbase, sT, STG, STL, R, CHK, extra=None, pre=None):
    L = e.lab('stg')
    e(f's_add_u32 {sT}, {sbase}, 4096')
    e(f'{L}:')
    for i in range(7):
        e(f'buffer_load_dwordx4 {vr(R + 4 * i, 4)}, v{STG}, {WSR}, {sbase if i < 4 else sT} offen offset:{(i % 4) * 1024} sc1')
    spin(e)
    if pre: pre()
    ck = chk(range(R, R + 28), CHK, True)
    for i in range(7):
        e(f's_waitcnt vmcnt({6 - i})')
        e(f'ds_write_b128 v{STL}, {vr(R + 4 * i, 4)} offset:{i * 1024}')
        if i: e(ck.pop(0))
        e(ck.pop(0))
        if extra: extra(i)
    for x in ck: e(x)
    e(f'v_cmp_eq_u32 vcc, -1, v{CHK}\ns_waitcnt lgkmcnt(0)\ns_cbranch_vccnz {L}')

def vm_compute(e, VB, MF, ACC, AC7, WT, VM, IDX0, LWT, LMA):
    for kb in range(7): e(f'ds_read_b128 {vr(MF + 4 * kb, 4)}, v{LMA} offset:{kb * 1024}')
    acc = lambda t: AC7 if t == 7 else ACC + 4 * (t & 1)
    W = lambda t, kb: wreg((t * 7 + kb) * 8, 8, VB) if t < 7 else vr(WT + 8 * (kb & 1), 8)
    S = lambda t, kb: f'v_smfmac_f32_16x16x64_bf16 {vr(acc(t), 4)}, {vr(MF + 4 * kb, 4)}, {W(t, kb)}, v{IDX0}'
    wrd = lambda kb: [f'ds_read_b128 {vr(WT + 8 * (kb & 1) + 4 * i, 4)}, v{LWT} offset:{(2 * kb + i) * 1024}' for i in range(2)]
    for x in wrd(0): e(x)
    for r in (ACC, ACC + 2, ACC + 4, ACC + 6, AC7, AC7 + 2): e(z2(r))
    def post(t):
        a = acc(t); hh, ct = t >> 1, t & 1
        return [f'v_add_f32 v{a}, v{a}, v{a + 1}', f'v_add_f32 v{a + 2}, v{a + 2}, v{a + 3}',
                pk(VM + 4 * ct + hh, a, a + 2)] + ([z2(a), z2(a + 2)] if t < 7 else [])
    for t in range(7):
        fill = (post(t - 1) if t else [''] * 5) + (wrd(t + 1) if t < 6 else [])
        for kb in range(7):
            if t == 0: e(f's_waitcnt lgkmcnt({8 - kb if kb < 6 else 3})')
            e(S(t, kb))
            if fill: e(fill.pop(0))
        e(f's_waitcnt lgkmcnt({2 if t < 6 else 0})')
        e(S(7, t))
    for x in post(6) + post(7): e(x)

def load_wb(e, L16, LWT, sT, sT2, VB):
    e(f's_lshl_b32 {sT}, {S_ID}, 2\ns_add_u32 {sT}, {sT}, {S_W}\ns_mul_i32 {sT}, {sT}, {112 * 1024}\ns_add_u32 {sT}, {sT}, {WS_WB}')
    load_weights(e, 98, L16, sT, VB)
    e(f's_add_u32 {sT}, {sT}, 2048\ns_mul_i32 {sT2}, {S_W}, 14336')
    for i in range(14):
        e(f's_add_u32 m0, {sT2}, {i * 1024}\nbuffer_load_dwordx4 v{L16}, {WSR}, {sT} offen lds\ns_add_u32 {sT}, {sT}, 1024')
    e(f'v_add_u32 v{LWT}, {sT2}, v{L16}')

def role_v(e, cfg):
    VB = 120
    L16, IDX0, XA, LWT, HW, STG, L4, TA, RD, CHK, LMA = range(1, 12)
    LANE = 0
    VM = 12; PX = 20; PM = 52; RES = 116
    XBUF = 57344; MBUF = 86016; HOLD = 94208
    sX, sVX, sVF, sM, sP, sR, sO, sT, sT2, sPre, sPost = 's12', 's13', 's14', 's15', 's16', 's17', 's18', 's19', 's20', 's21', 's22'
    tmp = list(range(60, 70))
    e(f'v_and_b32 v{LANE}, 63, v0\nv_lshlrev_b32 v{L16}, 4, v{LANE}')
    load_wb(e, L16, LWT, sT, sT2, VB)
    lanefn(e, IDX0, lambda l: 0xeeeeeeee if l & 1 else 0x44444444, LANE, tmp)
    lanefn(e, XA, lambda l: g(l) * 512 + c(l) * 16, LANE, tmp)
    e(f's_and_b32 {sT}, {S_W}, 1\ns_lshl_b32 {sT2}, {sT}, 8\nv_add_u32 v{TA}, {sT2}, v{XA}\ns_lshl_b32 {sT2}, {S_ID}, 11\nv_add_u32 v{TA}, {sT2}, v{TA}')
    e(f'v_add_u32 v{XA}, {XBUF}, v{XA}')
    e(f's_lshl_b32 {sT2}, {sT}, 11\ns_add_u32 {sT2}, {sT2}, {HOLD + 32768}\nv_add_u32 v{RD}, {sT2}, v{L16}')
    e(f's_lshl_b32 {sT}, {S_W}, 13\ns_add_u32 {sT}, {sT}, {HOLD}\nv_add_u32 v{HW}, {sT}, v{L16}')
    e(f's_mul_i32 {sT}, {S_W}, 7168\nv_add_u32 v{STG}, {sT}, v{L16}')
    e(f'v_lshlrev_b32 v{L4}, 2, v{LANE}\nv_add_u32 v{LMA}, {MBUF}, v{L16}')
    e(f's_mov_b32 {sPre}, {S_FIRST}\ns_sub_i32 {sPost}, {S_FIRST}, 3')
    sHd = 's24'
    e(f's_mov_b32 {sHd}, 32768')
    W = lambda t, ks: wreg((t * 14 + ks) * 4, 4, VB)
    e('V_loop:')
    e(f's_cmp_ge_u32 {sPre}, 64\ns_cbranch_scc1 V_nopre')
    e(f's_mul_i32 {sX}, {S_LAY}, {X_LAYER}\ns_mul_i32 {sT}, {sPre}, {TILE}\ns_add_u32 {sX}, {sX}, {sT}\ns_add_u32 {sX}, {sX}, {WS_XN0}')
    e(f'v_add_u32 v{LANE}, {XBUF}, v{STG}')
    stage_tile(e, sX, sT, STG, LANE, 84, CHK)
    e('s_barrier')
    e(f's_mul_i32 {sVX}, {S_LAY}, {VX_LAYER}\ns_mul_i32 {sT}, {sPre}, {VX_SEG}\ns_add_u32 {sVX}, {sVX}, {sT}')
    e(f's_lshl_b32 {sT}, {S_ID}, 2\ns_add_u32 {sT}, {sT}, {S_W}\ns_lshl_b32 {sT2}, {sT}, 13\ns_add_u32 {sVX}, {sVX}, {sT2}\ns_add_u32 {sVX}, {sVX}, {WS_VX}')
    e(f's_lshl_b32 {sVF}, {S_LAY}, 6\ns_add_u32 {sVF}, {sVF}, {sPre}\ns_lshl_b32 {sVF}, {sVF}, 6\ns_add_u32 {sVF}, {sVF}, {sT}\ns_lshl_b32 {sVF}, {sVF}, 2\ns_add_u32 {sVF}, {sVF}, {WS_VF}')
    XF = 20; WT = 36; ACCS = (52, 84)
    lq = LQ(e)
    def rd(hf, ks):
        n = hf * 14 + ks
        out = [(f'ds_read_b128 {vr(XF + 8 * (n & 1) + 4 * tau, 4)}, v{XA} offset:{ks * 2048 + tau * 256}', ('x', n)) for tau in range(2)]
        if hf: out.append((f'ds_read_b128 {vr(WT + 4 * (n & 1), 4)}, v{LWT} offset:{ks * 1024}', ('x', n)))
        return out
    def epi(hf):
        out = []
        for tl in range(4):
            t = 4 * hf + tl; hh, ct = t >> 1, t & 1
            f = (hh >> 1) * 4 + ct * 2 + (hh & 1)
            a = ACCS[hf] + 8 * tl
            out += [pk(a + i, a + i, a + 4 + i) for i in range(4)]
            out.append(f'buffer_store_dwordx4 {vr(a, 4)}, v{L16}, {WSR}, {sVX} offen offset:{(f % 4) * 1024} sc1')
            out.append((f'ds_write_b128 v{HW}, {vr(a, 4)} offset:{f * 1024}', 'w'))
        return out
    def emit(x):
        if isinstance(x, tuple): lq.issue(*x)
        else: e(x)
    for x in rd(0, 0): emit(x)
    for hf in range(2):
        fill = epi(0) if hf else []
        for ks in range(14):
            n = hf * 14 + ks
            nxt = rd(hf, ks + 1) if ks < 13 else (rd(1, 0) if hf == 0 else [])
            lq.wait(('x', n))
            k = 0
            for tl in range(4):
                t = 4 * hf + tl
                for tau in range(2):
                    a = vr(ACCS[hf] + 8 * tl + 4 * tau, 4)
                    e(mm(a, vr(XF + 8 * (n & 1) + 4 * tau, 4), W(t, ks) if t < 7 else vr(WT + 4 * (n & 1), 4), a if ks else 0))
                    if nxt: emit(nxt.pop(0))
                    elif fill and k >= 3: emit(fill.pop(0))
                    k += 1
        assert not fill
        if hf == 1: e(f's_add_u32 {sVX}, {sVX}, 4096')
    for x in epi(1): emit(x)
    e('V_nopre:')
    e(f's_max_i32 {sT2}, {sPost}, 0')
    e(f's_mul_i32 {sM}, {sT2}, {MA_STEP}\ns_mul_i32 {sT}, {S_LAY}, {MA_LAYER}\ns_add_u32 {sM}, {sM}, {sT}\ns_lshl_b32 {sT}, {S_W}, 11\ns_add_u32 {sM}, {sM}, {sT}\ns_add_u32 {sM}, {sM}, {WS_MA + 14336}')
    e(f's_mul_i32 {sR}, {sT2}, {TILE}\ns_mul_i32 {sT}, {S_LAY}, {X_LAYER}\ns_add_u32 {sR}, {sR}, {sT}\ns_add_u32 {sR}, {sR}, {WS_XR0}')
    e(f's_lshl_b32 {sT}, {S_LAY}, 6\ns_add_u32 {sT2}, {sT2}, {sT}\ns_mul_i32 {sO}, {sT2}, {TILE}\ns_add_u32 {sO}, {sO}, {WS_X1}')
    e(f's_mul_i32 {sP}, {sT2}, {PG_SEG}\ns_add_u32 {sP}, {sP}, {WS_PG}')
    sP1, sP2, sM1 = 's25', 's26', 's27'
    e(f's_lshl_b32 {sT}, {S_W}, 11\ns_add_u32 {sP2}, {sP}, {sT}\ns_add_u32 {sP2}, {sP2}, 32768')
    e(f's_lshl_b32 {sT}, {S_W}, 13\ns_add_u32 {sP}, {sP}, {sT}\ns_add_u32 {sP1}, {sP}, 4096')
    e(f's_cmp_eq_u32 {S_W}, 3\ns_cselect_b32 {sT}, 0, 1024\ns_add_u32 {sM1}, {sM}, {sT}')
    MT = 60
    def ldm():
        e(f'buffer_load_dwordx4 {vr(MT, 4)}, v{L16}, {WSR}, {sM} offen sc1\nbuffer_load_dwordx4 {vr(MT + 4, 4)}, v{L16}, {WSR}, {sM1} offen sc1')
    def ldp():
        for f in range(8): e(f'buffer_load_dwordx4 {vr(PX + 4 * f, 4)}, v{L16}, {WSR}, {sP if f < 4 else sP1} offen offset:{(f % 4) * 1024} sc1')
        for hh in range(4):
            for qt in range(2): e(f'buffer_load_dword v{PM + 4 * qt + hh}, v{L4}, {WSR}, {sP2} offen offset:{(2 * hh + qt) * 256} sc1')
        e(f'buffer_load_dwordx4 {vr(RES, 4)}, v{TA}, {WSR}, {sR} offen sc1')
    ldm(); ldp()
    e(f's_cmp_ge_u32 {sPre}, 64\ns_cbranch_scc1 V_noflag')
    e('s_waitcnt vmcnt(19)')
    e(f'v_mov_b32 v{CHK}, 1\nv_mov_b32 v{LANE}, 0\ns_mov_b64 exec, 1\nbuffer_store_dword v{CHK}, v{LANE}, {WSR}, {sVF} offen sc1\ns_mov_b64 exec, -1')
    e('s_waitcnt vmcnt(18)\ns_branch V_f1')
    e('V_noflag:\ns_waitcnt vmcnt(17)')
    e('V_f1:')
    e(f'v_add_u32 v{HW}, {sHd}, v{HW}')
    e(f's_cmp_lt_i32 {sPost}, 0\ns_cbranch_scc1 V_nopost')
    e('V_mchk:')
    for x in chk(range(MT, MT + 8), CHK, True): e(x)
    e(f'v_cmp_eq_u32 vcc, -1, v{CHK}\ns_cbranch_vccz V_mok')
    ldm(); spin(e)
    e('s_waitcnt vmcnt(0)\ns_branch V_mchk')
    e('V_mok:')
    e(f's_lshl_b32 {sT}, {S_W}, 11\nv_add_u32 v{LANE}, {sT}, v{LMA}')
    e(f'ds_write_b128 v{LANE}, {vr(MT, 4)}\nds_write_b128 v{LANE}, {vr(MT + 4, 4)} offset:1024')
    e('s_waitcnt lgkmcnt(0)\ns_barrier')
    vm_compute(e, VB, 60, 88, 96, 100, VM, IDX0, LWT, LMA)
    VXR = 60; OA = 92
    for f in range(8): e(f'ds_read_b128 {vr(VXR + 4 * f, 4)}, v{HW} offset:{f * 1024}')
    e('V_pchk:')
    e('s_waitcnt vmcnt(0)')
    for x in chk(list(range(PX, PX + 40)) + list(range(RES, RES + 4)), CHK, True): e(x)
    e(f'v_cmp_eq_u32 vcc, -1, v{CHK}\ns_cbranch_vccz V_pok')
    ldp(); spin(e)
    e('s_branch V_pchk')
    e('V_pok:')
    e('s_waitcnt lgkmcnt(0)')
    for qt in range(2):
        for ct in range(2):
            a = vr(OA + 8 * qt + 4 * ct, 4)
            e(mm(a, vr(VM + 4 * ct, 4), vr(PM + 4 * qt, 4), 0))
            for hh in range(4):
                f = (hh >> 1) * 4 + ct * 2 + (hh & 1)
                e(mm(a, vr(VXR + 4 * f, 4), vr(PX + 8 * hh + 4 * qt, 4), a))
                if hh == 1 and (qt, ct) != (0, 0):
                    k = 2 * qt + ct - 1
                    e(f'ds_write_b128 v{HW}, {vr(OA + 4 * k, 4)} offset:{k * 1024}')
    e(f'ds_write_b128 v{HW}, {vr(OA + 12, 4)} offset:3072')
    e('s_waitcnt lgkmcnt(0)\ns_barrier')
    e(f's_cmp_ge_u32 {S_W}, 2\ns_cbranch_scc1 V_next')
    R = 20
    for w in range(4):
        for ct in range(2): e(f'ds_read_b128 {vr(R + 8 * w + 4 * ct, 4)}, v{RD} offset:{w * 8192 + ct * 1024}')
    U = 52
    for i in range(4): e(f'v_lshlrev_b32 v{U + i}, 16, v{RES + i}\nv_and_b32 v{U + 4 + i}, 0xffff0000, v{RES + i}')
    for w in range(4):
        e(f's_waitcnt lgkmcnt({6 - 2 * w})')
        for i in range(8): e(f'v_add_f32 v{U + i}, v{U + i}, v{R + 8 * w + i}')
    for i in range(4): e(pk(U + i, U + i, U + 4 + i))
    for i in range(4): e(f'v_min_u32 v{U + i}, -2, v{U + i}')
    e(f'buffer_store_dwordx4 {vr(U, 4)}, v{TA}, {WSR}, {sO} offen sc1')
    e('s_branch V_next')
    e('V_nopost:\ns_waitcnt lgkmcnt(0)\ns_barrier')
    e('V_next:')
    e(f'v_subrev_u32 v{RD}, {sHd}, v{RD}\ns_sub_i32 {sHd}, 0, {sHd}')
    e(f's_add_u32 {sPre}, {sPre}, 3\ns_add_i32 {sPost}, {sPost}, 3\ns_cmp_lt_i32 {sPost}, 64\ns_cbranch_scc1 V_loop')
    e('s_branch DONE')

def role_q(e, cfg):
    VB = 120
    L16, XA, STG, KA0, KA1, KA2, MA0, MA1, MA2, EW, ER, CHK = range(1, 13)
    LANE = 0; L4 = 13
    XF = 14; K1 = 30; MK = 44; ACC = 60
    EX = 28672
    sX, sM, sP, sP2, sS, sT, sT2 = 's12', 's13', 's14', 's15', 's16', 's19', 's20'
    tmp = list(range(60, 70))
    e(f'v_and_b32 v{LANE}, 63, v0\nv_lshlrev_b32 v{L16}, 4, v{LANE}')
    e(f's_lshl_b32 {sT}, {S_ID}, 2\ns_add_u32 {sT}, {sT}, {S_W}\ns_mul_i32 {sT}, {sT}, {98 * 1024}')
    if WS_WA: e(f's_add_u32 {sT}, {sT}, {WS_WA}')
    load_weights(e, 98, L16, sT, VB)
    lanefn(e, XA, lambda l: g(l) * 512 + c(l) * 16, LANE, tmp)
    e(f's_mul_i32 {sT}, {S_W}, 7168\nv_add_u32 v{STG}, {sT}, v{L16}')
    lanefn(e, KA0, lambda l: 2 * g(l) * 512 + c(l) * 16, LANE, tmp)
    lanefn(e, KA1, lambda l: (8 + g(l)) * 512 + c(l) * 16, LANE, tmp)
    lanefn(e, KA2, lambda l: (12 + (g(l) & 1)) * 512 + c(l) * 16 + 4 * (g(l) >> 1), LANE, tmp)
    for r in (KA0, KA1, KA2): e(f'v_add_u32 v{r}, {sT}, v{r}')
    mrow = lambda l: 2 * (c(l) >> 2) + (c(l) & 1)
    lanefn(e, MA0, lambda l: 2 * g(l) * 128 + mrow(l) * 16, LANE, tmp)
    lanefn(e, MA1, lambda l: (8 + g(l)) * 128 + mrow(l) * 16, LANE, tmp)
    lanefn(e, MA2, lambda l: (12 + (g(l) & 1)) * 128 + mrow(l) * 16 + 4 * (g(l) >> 1), LANE, tmp)
    e(f's_lshl_b32 {sT}, {S_W}, 12\ns_add_u32 {sT}, {sT}, {EX}\nv_add_u32 v{EW}, {sT}, v{L16}')
    e(f's_and_b32 {sT}, {S_W}, 1\ns_lshl_b32 {sT}, {sT}, 10\ns_add_u32 {sT}, {sT}, {EX}\nv_add_u32 v{ER}, {sT}, v{L16}')
    e(f'v_lshlrev_b32 v{L4}, 2, v{LANE}')
    for i in range(4):
        m = sum(1 << l for l in range(64) if 4 * g(l) + i <= c(l))
        e(f's_mov_b32 s{56 + 2 * i}, 0x{m & 0xffffffff:x}\ns_mov_b32 s{57 + 2 * i}, 0x{m >> 32:x}')
    e(f's_bitcmp1_b32 {S_W}, 0')
    for i in range(4):
        e(f's_cselect_b64 s[{40 + 2 * i}:{41 + 2 * i}], -1, s[{56 + 2 * i}:{57 + 2 * i}]')
        e(f's_cselect_b64 s[{48 + 2 * i}:{49 + 2 * i}], s[{56 + 2 * i}:{57 + 2 * i}], 0')
    e(f's_mov_b32 {sS}, {S_FIRST}')
    W = lambda t, ks: wreg((t * 14 + ks) * 4, 4, VB)
    A = lambda tau, t: ACC + 28 * tau + 4 * t
    e('Q_loop:')
    e(f's_mul_i32 {sX}, {S_LAY}, {X_LAYER}\ns_mul_i32 {sT}, {sS}, {TILE}\ns_add_u32 {sX}, {sX}, {sT}\ns_add_u32 {sX}, {sX}, {WS_XN0}')
    stage_tile(e, sX, sT, STG, STG, ACC, CHK)
    e('s_barrier')
    e(f's_mul_i32 {sM}, {sS}, {MA_STEP}\ns_mul_i32 {sT}, {S_LAY}, {MA_LAYER}\ns_add_u32 {sM}, {sM}, {sT}\ns_mul_i32 {sT}, {S_W}, {14 * 128}\ns_add_u32 {sM}, {sM}, {sT}\ns_add_u32 {sM}, {sM}, {WS_MA + 21504}')
    e(f's_lshl_b32 {sT}, {S_LAY}, 6\ns_add_u32 {sT}, {sT}, {sS}\ns_mul_i32 {sP}, {sT}, {PG_SEG}\ns_add_u32 {sP}, {sP}, {WS_PG}')
    e(f's_lshl_b32 {sT}, {S_ID}, 1\ns_and_b32 {sT2}, {S_W}, 1\ns_add_u32 {sT}, {sT}, {sT2}\ns_lshl_b32 {sT2}, {sT}, 8\ns_add_u32 {sP2}, {sP}, {sT2}\ns_add_u32 {sP2}, {sP2}, 32768\ns_lshl_b32 {sT2}, {sT}, 10\ns_add_u32 {sP}, {sP}, {sT2}')
    lq = LQ(e)
    rd = lambda ks: [(f'ds_read_b128 {vr(XF + 8 * (ks & 1) + 4 * tau, 4)}, v{XA} offset:{ks * 2048 + tau * 256}', ks) for tau in range(2)]
    def keys(kt, R):
        return [(f'ds_read_b128 {vr(R, 4)}, v{KA0} offset:{kt * 256}', ('k', kt)),
                (f'ds_read_b128 {vr(R + 4, 4)}, v{KA0} offset:{kt * 256 + 512}', ('k', kt)),
                (f'ds_read_b128 {vr(R + 8, 4)}, v{KA1} offset:{kt * 256}', ('k', kt)),
                (f'ds_read2_b32 {vr(R + 12, 2)}, v{KA2} offset0:{kt * 64} offset1:{kt * 64 + 2}', ('k', kt))]
    def ldm():
        e(f'buffer_load_dwordx4 {vr(MK, 4)}, v{MA0}, {WSR}, {sM} offen sc1\nbuffer_load_dwordx4 {vr(MK + 4, 4)}, v{MA0}, {WSR}, {sM} offen offset:128 sc1')
        e(f'buffer_load_dwordx4 {vr(MK + 8, 4)}, v{MA1}, {WSR}, {sM} offen sc1')
        e(f'buffer_load_dword v{MK + 12}, v{MA2}, {WSR}, {sM} offen sc1\nbuffer_load_dword v{MK + 13}, v{MA2}, {WSR}, {sM} offen offset:8 sc1')
    def pack(tau):
        out = []
        for u in range(3):
            a, b = A(tau, 2 * u), A(tau, 2 * u + 1)
            out += [pk(a, a, a + 1), pk(a + 1, b, b + 1), pk(a + 2, a + 2, a + 3), pk(a + 3, b + 2, b + 3)]
        a = A(tau, 6)
        return out + [pk(a, a, a + 1), pk(a + 1, a + 2, a + 3)]
    for x in rd(0): lq.issue(*x)
    for ks in range(14):
        nxt = rd(ks + 1) if ks < 13 else keys(1, K1)
        lq.wait(ks)
        fill = []
        for tau in (1, 0):
            if ks == 13 and tau == 0: fill = pack(1)
            for t in range(7):
                a = vr(A(tau, t), 4)
                e(mm(a, W(t, ks), vr(XF + 8 * (ks & 1) + 4 * tau, 4), a if ks else 0))
                if nxt: lq.issue(*nxt.pop(0))
                for _ in range(2):
                    if fill: e(fill.pop(0))
        if ks == 11: ldm()
    for x in keys(0, XF): lq.issue(*x)
    def scores(d, KR, tau):
        out = [mm(vr(d, 4), vr(KR + 4 * u, 4), vr(A(tau, 2 * u), 4), vr(d, 4) if u else 0) for u in range(3)]
        return out + [f'v_mfma_f32_16x16x16_bf16 {vr(d, 4)}, {vr(KR + 12, 2)}, {vr(A(tau, 6), 2)}, {vr(d, 4)}']
    S11, S01, S00, SM0, SM1 = A(1, 1), A(1, 3), A(1, 5), A(0, 1), A(0, 3)
    lq.wait(('k', 1))
    p0 = pack(0)
    a, b, d = scores(S11, K1, 1), scores(S01, XF, 1), scores(S00, XF, 0)
    interleave(e, a[:3], p0[:6])
    lq.wait(('k', 0))
    interleave(e, b[:3] + a[3:], p0[6:])
    for x in d[:3]: e(x)
    e(f'ds_write_b128 v{EW}, {vr(S11, 4)} offset:2048')
    e(b[3]); e(d[3])
    e(f'ds_write_b128 v{EW}, {vr(S01, 4)} offset:1024')
    e(f'ds_write_b128 v{EW}, {vr(S00, 4)}')
    e('s_waitcnt lgkmcnt(0)\ns_barrier')
    SC = XF; MX = XF + 10; T0 = XF + 11
    e(f's_cmp_ge_u32 {S_W}, 2\ns_cbranch_scc1 Q_m')
    R2 = [XF, XF + 8, K1, None]
    q4 = [SC, SC + 4, XF + 8, XF + 12, K1, K1 + 4, K1 + 8, S11]
    for w in range(4):
        for kt in range(2): e(f'ds_read_b128 {vr(q4[2 * w + kt], 4)}, v{ER} offset:{w * 4096 + kt * 1024}')
    for w in range(1, 4):
        e(f's_waitcnt lgkmcnt({6 - 2 * w})')
        for kt in range(2):
            for i in range(4): e(f'v_add_f32 v{SC + 4 * kt + i}, v{SC + 4 * kt + i}, v{q4[2 * w + kt] + i}')
    e(f'v_mov_b32 v{T0}, 0xff800000')
    for kt in range(2):
        for i in range(4): e(f'v_cndmask_b32 v{SC + 4 * kt + i}, v{T0}, v{SC + 4 * kt + i}, s[{40 + 8 * kt + 2 * i}:{41 + 8 * kt + 2 * i}]')
    e(f'v_max3_f32 v{MX}, v{SC}, v{SC + 1}, v{SC + 2}\nv_max3_f32 v{MX}, v{MX}, v{SC + 3}, v{SC + 4}\nv_max3_f32 v{MX}, v{MX}, v{SC + 5}, v{SC + 6}\nv_max_f32 v{MX}, v{MX}, v{SC + 7}')
    e('Q_m:')
    e('s_waitcnt vmcnt(0)')
    for x in chk(range(MK, MK + 14), CHK, True): e(x)
    e(f'v_cmp_eq_u32 vcc, -1, v{CHK}\ns_cbranch_vccz Q_mok')
    ldm(); spin(e)
    e('s_branch Q_m')
    e('Q_mok:')
    a, b = scores(SM0, MK, 0), scores(SM1, MK, 1)
    for x in a[:3] + b[:3] + a[3:] + b[3:]: e(x)
    e(f'ds_write_b64 v{EW}, {vr(SM0, 2)} offset:3072')
    e(f'ds_write_b64 v{EW}, {vr(SM1, 2)} offset:3080')
    e(f's_and_b32 {sT}, {S_W}, 1\ns_mul_i32 {sT}, {sT}, 1016\nv_subrev_u32 v{LANE}, {sT}, v{ER}')
    e('s_waitcnt lgkmcnt(0)\ns_barrier')
    e(f's_cmp_ge_u32 {S_W}, 2\ns_cbranch_scc1 Q_next')
    for w in range(4): e(f'ds_read_b64 {vr(K1 + 2 * w, 2)}, v{LANE} offset:{w * 4096 + 3072}')
    e('s_waitcnt lgkmcnt(0)')
    for i in range(2):
        e(f'v_add_f32 v{K1 + i}, v{K1 + i}, v{K1 + 2 + i}\nv_add_f32 v{K1 + 4 + i}, v{K1 + 4 + i}, v{K1 + 6 + i}')
    for i in range(2): e(f'v_add_f32 v{SC + 8 + i}, v{K1 + i}, v{K1 + 4 + i}')
    e(f'v_max3_f32 v{MX}, v{MX}, v{SC + 8}, v{SC + 9}')
    allreduce_g(e, MX, T0, 'v_max_f32')
    for i in range(10): e(f'v_sub_f32 v{SC + i}, v{SC + i}, v{MX}')
    for i in range(10): e(f'v_exp_f32 v{SC + i}, v{SC + i}')
    e(f'v_add_f32 v{MX}, v{SC}, v{SC + 1}')
    for i in range(2, 10): e(f'v_add_f32 v{MX}, v{MX}, v{SC + i}')
    allreduce_g(e, MX, T0, 'v_add_f32')
    e(f'v_rcp_f32 v{MX}, v{MX}')
    for i in range(10): e(f'v_mul_f32 v{SC + i}, v{SC + i}, v{MX}')
    for i in range(4): e(f'v_cvt_pk_bf16_f32 v{K1 + i}, |v{SC + i}|, |v{SC + 4 + i}|')
    e(f'buffer_store_dwordx4 {vr(K1, 4)}, v{L16}, {WSR}, {sP} offen sc1')
    e(f'v_cvt_pk_bf16_f32 v{K1 + 4}, |v{SC + 8}|, |v{SC + 9}|')
    e(f'buffer_store_dword v{K1 + 4}, v{L4}, {WSR}, {sP2} offen sc1')
    e('Q_next:')
    e(f's_add_u32 {sS}, {sS}, 2\ns_cmp_lt_u32 {sS}, 64\ns_cbranch_scc1 Q_loop')
    e('s_branch DONE')

def role_mlp(e, cfg):
    DL = cfg.get('mlp_lag', 12)
    VB = 92
    L16, XA, STG, HWA, CB, PA, PB = range(1, 8)
    LANE = 0; CHK = 8; ONE = 9
    ST = 10
    B1 = 14; GT = 18; XF = 22; AC = (30, 46); OA = 62
    HID = 28672; CBT = 43008; B2A = 75776; ZA = B2A + 896; STAT = 76800; STAT2 = 77824; CV = 78848
    OUT_SRD = 's[28:31]'
    sX, sPt, sPf, sN, sS, sIt, sT, sT2, sLay = 's12', 's13', 's14', 's15', 's16', 's17', 's19', 's20', 's21'
    tmp = list(range(30, 40))
    e(f'v_and_b32 v{LANE}, 63, v0\nv_lshlrev_b32 v{L16}, 4, v{LANE}')
    sTb, sSh = 's24', 's25'
    e(f's_lshr_b32 {sT}, {S_W}, 1\ns_mul_i32 {sT}, {sT}, 7\ns_add_u32 {sSh}, {sT}, 3\ns_and_b32 {sT2}, {S_W}, 1\ns_lshl_b32 {sT2}, {sT2}, 2\ns_add_u32 {sTb}, {sT}, {sT2}')
    e(f's_mul_i32 {sT2}, {S_ID}, 14\ns_add_u32 {sT}, {sT2}, {sTb}\ns_mul_i32 {sT}, {sT}, {14 * 1024}\ns_add_u32 {sT}, {sT}, {WS_W1}')
    load_weights(e, 42, L16, sT, VB)
    e(f's_add_u32 {sT}, {sT2}, {sSh}\ns_mul_i32 {sT}, {sT}, {14 * 1024}\ns_add_u32 {sT}, {sT}, {WS_W1}')
    load_weights(e, 14, L16, sT, VB, first=42)
    e(f's_lshl_b32 {sT}, {S_ID}, 2\ns_add_u32 {sT}, {sT}, {S_W}\ns_mul_i32 {sT}, {sT}, {49 * 1024}\ns_add_u32 {sT}, {sT}, {WS_W2}')
    load_weights(e, 49, L16, sT, VB, first=56)
    W1 = lambda lt, ks: wreg((lt * 14 + ks) * 4, 4, VB)
    W2 = lambda t, p: wreg((56 + t * 7 + p) * 4, 4, VB)
    e(f'v_lshrrev_b32 v{CHK}, 4, v{LANE}\nv_lshlrev_b32 v{CHK}, 3, v{CHK}')
    e(f's_add_u32 {sT}, {sT2}, {sTb}\ns_lshl_b32 {sT}, {sT}, 5')
    for lt in range(3): e(f'buffer_load_dwordx2 {vr(62 + 2 * lt, 2)}, v{CHK}, s[32:35], {sT} offen offset:{32 * lt}')
    e(f's_add_u32 {sT}, {sT2}, {sSh}\ns_lshl_b32 {sT}, {sT}, 5')
    e(f'buffer_load_dwordx2 {vr(68, 2)}, v{CHK}, s[32:35], {sT} offen')
    e(f'buffer_load_dwordx4 {vr(72, 4)}, v{L16}, s[36:39], 0 offen')
    lanefn(e, XA, lambda l: g(l) * 512 + c(l) * 16, LANE, tmp)
    e(f's_mul_i32 {sT}, {S_W}, 7168\nv_add_u32 v{STG}, {sT}, v{L16}')
    e(f's_lshl_b32 {sT}, {S_W}, 13\ns_add_u32 {sT}, {sT}, {CBT}\nv_add_u32 v{CB}, {sT}, v{L16}')
    lanefn(e, PA, lambda l: (c(l) >> 2) * TILE + g(l) * 64 + (c(l) & 3) * 16, LANE, tmp)
    lanefn(e, PB, lambda l: (c(l) >> 2) * TILE + (g(l) >> 1) * 64 + (g(l) & 1) * 8 + (c(l) & 3) * 16, LANE, tmp)
    e(f'v_add_u32 v{HWA}, {HID}, v{L16}\nv_mov_b32 v{ONE}, 0x3f803f80')
    Gm = (0, 2, 1, 3)
    bad = lambda l: g(l) == 3 and c(l) >= 8
    for hb in range(2):
        for q in range(4):
            lanefn(e, 46 + 4 * hb + q, lambda l: (0x3f80 if c(l) == 8 * hb + 2 * q else 0) | (0x3f800000 if c(l) == 8 * hb + 2 * q + 1 else 0), LANE, tmp)
    lanefn(e, 54, lambda l: g(l) * 3584 + c(l) * 16, LANE, tmp)
    lanefn(e, 55, lambda l: g(l) * 3584 + c(l) * 16 if c(l) < 8 else BIG, LANE, tmp)
    lanefn(e, 56, lambda l: BIG if bad(l) else (4 * Gm[g(l)] + (c(l) >> 2)) * 512 + (c(l) & 3) * 16, LANE, tmp)
    lanefn(e, 57, lambda l: BIG if bad(l) else (4 * Gm[g(l)] + (c(l) >> 2)) * 16 + (c(l) & 3) * 896, LANE, tmp)
    e(f's_mul_i32 {sT}, {S_W}, 7168\ns_lshl_b32 s26, {S_ID}, 6\ns_add_u32 {sT}, {sT}, s26\ns_mul_i32 s26, {S_W}, 224')
    for G in range(4):
        ok = lambda l: G < 3 or c(l) < 8
        lanefn(e, 40, lambda l: (4 * G + (c(l) >> 2)) * 512 + (c(l) & 3) * 16, LANE, tmp)
        lanefn(e, 41, lambda l: B2A + (4 * G + (c(l) >> 2)) * 16, LANE, tmp)
        e(f'v_add_u32 v40, {sT}, v40\nv_add_u32 v41, s26, v41\nv_mov_b32 v{58 + G}, {ZA}')
        for gg, r in ((0, 40), (1, 41)):
            m = sum(1 << l for l in range(64) if g(l) == gg and ok(l))
            e(f's_mov_b32 vcc_lo, 0x{m & 0xffffffff:x}\ns_mov_b32 vcc_hi, 0\nv_cndmask_b32 v{58 + G}, v{58 + G}, v{r}, vcc')
    e(f's_lshl_b32 {sT}, {S_W}, 12\ns_add_u32 {sT}, {sT}, {CV}\nv_add_u32 v{CHK}, {sT}, v{L16}')
    for k in range(4): e(f'ds_write_b128 v{CHK}, {vr(46 + 4 * k, 4)} offset:{k * 1024}')
    e('s_waitcnt vmcnt(0) lgkmcnt(0)')
    e(f'v_add_u32 v{CHK}, {B2A}, v{L16}\nds_write_b128 v{CHK}, {vr(72, 4)}')
    for i in range(4): e(f'v_mov_b32 v{XF + i}, v{ONE}')
    for lt in range(4):
        a = vr(AC[0] + 4 * lt, 4)
        for ks in range(14): e(mm(a, W1(lt, ks), vr(XF, 4), a if ks else 0))
        for q in range(2):
            e(f'v_lshlrev_b32 v{76 + 4 * (lt & 1) + 2 * q}, 16, v{62 + 2 * lt + q}\nv_and_b32 v{77 + 4 * (lt & 1) + 2 * q}, 0xffff0000, v{62 + 2 * lt + q}')
        e(f'ds_write_b128 v{CB}, {vr(76 + 4 * (lt & 1), 4)} offset:{lt * 2048 + 1024}')
    for lt in range(4): e(f'ds_write_b128 v{CB}, {vr(AC[0] + 4 * lt, 4)} offset:{lt * 2048}')
    sH = ['s40', 's41', 's42', 's43']
    for lt in range(4):
        if lt < 3: e(f's_add_u32 {sT}, {sTb}, {lt}')
        else: e(f's_mov_b32 {sT}, {sSh}')
        e(f's_lshr_b32 {sH[lt]}, {sT}, 1\ns_lshl_b32 {sH[lt]}, {sH[lt]}, 10\ns_and_b32 {sT}, {sT}, 1\ns_lshl_b32 {sT}, {sT}, 3\ns_add_u32 {sH[lt]}, {sH[lt]}, {sT}')
    c1 = -2 * math.sqrt(2 / math.pi) * math.log2(math.e)
    e(f's_mov_b32 s44, {fhex(c1 * 0.044715)}\ns_mov_b32 s45, {fhex(c1)}')
    e(f's_mov_b32 {sN}, {S_FIRST}\ns_mov_b32 {sIt}, 1')
    e(f's_lshl_b32 {sPf}, {S_FIRST}, 2\ns_add_u32 {sPf}, {sPf}, {S_W}\ns_lshl_b32 {sPf}, {sPf}, 8\ns_add_u32 {sPf}, {sPf}, {WS_PF}')
    e('s_waitcnt lgkmcnt(0)')
    e('P_loop:')
    e(f's_mov_b32 {sLay}, 0\ns_mov_b32 {sS}, {sN}\ns_cmp_lt_u32 {sN}, {DL}\ns_cbranch_scc1 P_dec')
    e(f's_mov_b32 {sLay}, 1\ns_sub_u32 {sS}, {sN}, 64\ns_cmp_ge_u32 {sN}, {128 - DL}\ns_cbranch_scc1 P_dec')
    e(f's_sub_u32 {sT}, {sN}, {DL}\ns_lshr_b32 {sS}, {sT}, 1\ns_bitcmp1_b32 {sT}, 0\ns_cbranch_scc0 P_dec')
    e(f's_mov_b32 {sLay}, 0\ns_add_u32 {sS}, {sS}, {DL}')
    e('P_dec:')
    e(f's_lshl_b32 {sT}, {sLay}, 6\ns_add_u32 {sT}, {sT}, {sS}\ns_mul_i32 {sX}, {sT}, {TILE}\ns_add_u32 {sX}, {sX}, {WS_X1}')
    SMq = GT
    def pre(): e(z2(SMq))
    def extra(i):
        for k in range(4):
            r = OA + 4 * i + k
            e(f'v_dot2c_f32_bf16 v{SMq}, v{r}, v{ONE}\nv_dot2c_f32_bf16 v{SMq + 1}, v{r}, v{r}')
    stage_tile(e, sX, sT, STG, STG, OA, CHK, extra, pre)
    for k in range(2):
        e(f'v_mov_b32 v{SMq + 2}, v{SMq + k}\nv_permlane32_swap_b32 v{SMq + 2}, v{SMq + k}\nv_add_f32 v{SMq + k}, v{SMq + k}, v{SMq + 2}')
    e(f'v_bfe_u32 v{LANE}, v{L16}, 1, 8\ns_lshl_b32 {sT}, {S_W}, 8\ns_add_u32 {sT}, {sT}, {STAT}\nv_add_u32 v{CHK}, {sT}, v{LANE}')
    e(f'ds_write_b64 v{CHK}, {vr(SMq, 2)}')
    e(f'v_and_b32 v{LANE}, 0x7f, v{LANE}\nv_add_u32 v{LANE}, {STAT}, v{LANE}')
    e('s_waitcnt lgkmcnt(0)\ns_barrier')
    for tau in range(2):
        for w in range(4): e(f'ds_read_b64 {vr(OA + 8 * tau + 2 * w, 2)}, v{LANE} offset:{w * 256 + tau * 128}')
    e(f's_and_b32 {sT}, {sIt}, 1\ns_lshl_b32 {sT2}, {S_FIRST}, 1\ns_add_u32 {sT}, {sT}, {sT2}\ns_mul_i32 {sPt}, {sT}, {PART_SLOT}\ns_mul_i32 {sT}, {S_W}, 896\ns_add_u32 {sPt}, {sPt}, {sT}\ns_add_u32 {sPt}, {sPt}, {WS_PART}')
    for tau in range(2):
        for lt in range(4): e(f'ds_read_b128 {vr(AC[tau] + 4 * lt, 4)}, v{CB} offset:{lt * 2048}')
    for tau in range(2):
        e(f's_waitcnt lgkmcnt({12 - 4 * tau})')
        o = OA + 8 * tau; r, m = ST + 2 * tau, ST + 2 * tau + 1
        for k in range(2):
            e(f'v_add_f32 v{o + k}, v{o + k}, v{o + 2 + k}\nv_add_f32 v{o + 4 + k}, v{o + 4 + k}, v{o + 6 + k}\nv_add_f32 v{o + k}, v{o + k}, v{o + 4 + k}')
        e(f'v_mul_f32 v{m}, {fhex(-1 / D)}, v{o}\nv_mul_f32 v{o + 1}, {fhex(1 / D)}, v{o + 1}')
        e(f'v_fma_f32 v{o + 1}, -v{m}, v{m}, v{o + 1}\nv_max_f32 v{o + 1}, 0, v{o + 1}')
        e(f'v_add_f32 v{o}, {fhex(1e-5)}, v{o + 1}\nv_rsq_f32 v{o}, v{o}')
        e(f'v_mul_f32 v{o + 1}, v{o + 1}, v{o}\nv_mul_f32 v{o + 1}, v{o + 1}, v{o}\nv_add_f32 v{o + 1}, {fhex(1e-5)}, v{o + 1}\nv_rsq_f32 v{o + 1}, v{o + 1}')
        e(f'v_mul_f32 v{r}, v{o}, v{o + 1}')
    e('s_waitcnt lgkmcnt(0)')
    for i in range(16): e(f'v_mul_f32 v{AC[0] + i}, v{AC[0] + i}, v{ST + 1}')
    e(f's_bitcmp1_b32 {S_W}, 0\ns_cbranch_scc1 P_odd')
    def body(nt):
        lq = LQ(e)
        def emit(x):
            if isinstance(x, tuple):
                if x[0] == 'wait': lq.wait(x[1])
                else: lq.issue(*x)
            else: e(x)
        def gelu(tau):
            out = []
            r = ST + 2 * tau
            for lt in range(nt[tau]):
                a = AC[tau] + 4 * lt
                if lt == 0: out.append((f'ds_read_b128 {vr(B1, 4)}, v{CB} offset:1024', ('b', tau, 0)))
                out.append(('wait', ('b', tau, lt)))
                for i in range(4): out.append(f'v_fma_f32 v{a + i}, v{a + i}, v{r}, v{B1 + i}')
                if lt + 1 < nt[tau]: out.append((f'ds_read_b128 {vr(B1, 4)}, v{CB} offset:{(lt + 1) * 2048 + 1024}', ('b', tau, lt + 1)))
                for i in range(4): out.append(f'v_mul_f32 v{GT + i}, v{a + i}, v{a + i}')
                for i in range(4): out.append(f'v_fmaak_f32 v{GT + i}, s44, v{GT + i}, {fhex(c1)}'.replace('s44', f'v{CHK}'))
                for i in range(4): out.append(f'v_mul_f32 v{GT + i}, v{GT + i}, v{a + i}')
                for i in range(4): out.append(f'v_exp_f32 v{GT + i}, v{GT + i}')
                for i in range(4): out.append(f'v_add_f32 v{GT + i}, 1.0, v{GT + i}')
                for i in range(4): out.append(f'v_rcp_f32 v{GT + i}, v{GT + i}')
                out.append(f'v_add_u32 v{LANE}, {sH[lt]}, v{HWA}')
                for i in range(4): out.append(f'v_mul_f32 v{a + i}, v{a + i}, v{GT + i}')
                out += [pk(a, a, a + 1), pk(a + 1, a + 2, a + 3)]
                out.append((f'ds_write_b64 v{LANE}, {vr(a, 2)} offset:{tau * 7168}', 'w'))
            return out
        def run(steps, lo, hi, la, fill):
            nm = sum(len(s[2]) for s in steps[lo:hi]); done = 0; nf = len(fill); used = 0
            if lo == 0:
                for i in range(la): lq.issue(steps[i][0], steps[i][1])
            for i in range(lo, hi):
                rdx, tag, ms = steps[i]
                lq.wait(tag)
                for k, m in enumerate(ms):
                    e(m); done += 1
                    if k == 0 and i + la < len(steps): lq.issue(steps[i + la][0], steps[i + la][1])
                    while used < nf and used < (nf * done + nm - 1) // nm:
                        emit(fill[used]); used += 1
        def s1(tau):
            xr = lambda ks: vr(OA + 4 * ((14 * tau + ks) & 3), 4)
            return [(f'ds_read_b128 {xr(ks)}, v{XA} offset:{ks * 2048 + tau * 256}', ('x', tau, ks),
                     [mm(vr(AC[tau] + 4 * lt, 4), W1(lt, ks), xr(ks), vr(AC[tau] + 4 * lt, 4)) for lt in range(nt[tau])]) for ks in range(14)]
        def s2(tau, O):
            return [(f'ds_read_b128 {vr(XF + 4 * (p & 1), 4)}, v{HWA} offset:{tau * 7168 + p * 1024}', ('h', tau, p),
                     [mm(vr(O + 4 * t, 4), W2(t, p), vr(XF + 4 * (p & 1), 4), vr(O + 4 * t, 4) if p else 0) for t in range(7)]) for p in range(7)]
        def epi(O, so):
            out = []
            for pr in range(3):
                a = O + 8 * pr
                out += [pk(a, a, a + 1), pk(a + 1, a + 2, a + 3), pk(a + 2, a + 4, a + 5), pk(a + 3, a + 6, a + 7)]
                out.append(f'buffer_store_dwordx4 {vr(a, 4)}, v{PA}, {WSR}, {so} offen offset:{pr * 256}')
            a = O + 24
            out += [pk(a, a, a + 1), pk(a + 1, a + 2, a + 3), f'buffer_store_dwordx2 {vr(a, 2)}, v{PB}, {WSR}, {so} offen offset:768']
            return out
        e(f'v_mov_b32 v{CHK}, s44')
        st = s1(0) + s1(1)
        f0 = [f'v_mul_f32 v{AC[1] + i}, v{AC[1] + i}, v{ST + 3}' for i in range(16)]
        run(st, 0, 14, 3, f0)
        run(st, 14, 28, 3, gelu(0))
        lq.drain(); e('s_barrier')
        run(s2(0, OA), 0, 7, 1, gelu(1))
        lq.drain(); e('s_barrier')
        e(f's_mul_i32 {sT}, {S_ID}, 3584\ns_add_u32 {sT}, {sT}, {sPt}\ns_add_u32 {sT2}, {sT}, {4 * TILE}')
        run(s2(1, AC[0]), 0, 7, 1, epi(OA, sT))
        for x in epi(AC[0], sT2): e(x)
    body((4, 3))
    e('s_branch P_red')
    e('P_odd:')
    body((3, 4))
    e('P_red:')
    SEL = 14; AD = 22; RS = 62; PR = 30; DD = 78
    e(f's_lshl_b32 {sT}, {S_W}, 12\ns_add_u32 {sT}, {sT}, {CV}\nv_add_u32 v{CHK}, {sT}, v{L16}')
    for k in range(4): e(f'ds_read_b128 {vr(SEL + 4 * k, 4)}, v{CHK} offset:{k * 1024}')
    e(f'v_lshrrev_b32 v{LANE}, 2, v{L16}\nv_mov_b32 v{CHK}, {sIt}\ns_lshl_b32 {sT}, {S_ID}, 2\ns_add_u32 {sT}, {sT}, {sPf}')
    e('s_waitcnt lgkmcnt(0)')
    for G in range(4): e(f'ds_read_b128 {vr(RS + 4 * G, 4)}, v{AD + 4 + G}')
    e('s_waitcnt vmcnt(0)')
    e(f's_mov_b64 exec, 1\nbuffer_store_dword v{CHK}, v{LANE}, {WSR}, {sT} offen\ns_mov_b64 exec, 0xff')
    e('P_fl:')
    e(f'buffer_load_dword v{CHK}, v{LANE}, {WSR}, {sPf} offen sc1')
    spin(e)
    e(f's_waitcnt vmcnt(0)\nv_cmp_gt_u32 vcc, {sIt}, v{CHK}\ns_cbranch_vccnz P_fl')
    e('s_mov_b64 exec, -1')
    e(f's_mul_i32 {sT}, {S_ID}, {TILE}\ns_add_u32 {sT}, {sT}, {sPt}\ns_add_u32 {sT2}, {sT}, {4 * 3584}')
    for G in range(4):
        for sq in range(2): e(f'buffer_load_dwordx4 {vr(PR + 8 * G + 4 * sq, 4)}, v{AD + (G == 3)}, {WSR}, {(sT, sT2)[sq]} offen offset:{G * 256} sc1')
    e('s_waitcnt lgkmcnt(0)')
    for G in range(4):
        d = vr(DD + 4 * (G >> 1), 4); e(mm(d, vr(SEL + 4 * (G & 1), 4), vr(RS + 4 * G, 4), d if G & 1 else 0))
    for G in range(4):
        for sq in range(2):
            d = vr(DD + 4 * (G >> 1), 4)
            e(f's_waitcnt vmcnt({7 - 2 * G - sq})'); e(mm(d, vr(SEL + 4 * (G & 1), 4), vr(PR + 8 * G + 4 * sq, 4), d))
    Y = PR
    for k in range(4): e(pk(Y + k, DD + 2 * k, DD + 2 * k + 1))
    e(f'v_permlane16_swap_b32 v{Y}, v{Y + 2}\nv_permlane16_swap_b32 v{Y + 1}, v{Y + 3}')
    e(f's_cmp_eq_u32 {sLay}, 0\ns_cbranch_scc1 P_l0')
    e(f's_lshl_b32 {sT}, {sS}, 3\ns_add_u32 {sT}, {sT}, {S_ID}\ns_mul_i32 {sT}, {sT}, 3584\ns_mul_i32 {sT2}, {S_W}, 224\ns_add_u32 {sT}, {sT}, {sT2}')
    e(f'buffer_store_dwordx4 {vr(Y, 4)}, v{AD + 3}, {OUT_SRD}, {sT} offen')
    e('s_barrier\ns_branch P_next')
    e('P_l0:')
    SQ = Y + 4
    e(z2(SQ))
    for k in range(4): e(f'v_min_u32 v{Y + k}, -2, v{Y + k}')
    for k in range(4): e(f'v_dot2c_f32_bf16 v{SQ}, v{Y + k}, v{ONE}\nv_dot2c_f32_bf16 v{SQ + 1}, v{Y + k}, v{Y + k}')
    e(f's_mul_i32 {sT}, {sS}, {TILE}\ns_mul_i32 {sT2}, {S_W}, 7168\ns_add_u32 {sT}, {sT}, {sT2}\ns_lshl_b32 {sT2}, {S_ID}, 6\ns_add_u32 {sT}, {sT}, {sT2}\ns_add_u32 {sT2}, {sT}, {WS_XR1}\ns_add_u32 {sT}, {sT}, {WS_XN1}')
    for n in (4, 8):
        for k in range(2): e(f'v_add_f32_dpp v{SQ + k}, v{SQ + k}, v{SQ + k} row_ror:{n} {DPPM}')
    for k in range(2): allreduce_g(e, SQ + k, SQ + 2 + k, 'v_add_f32')
    e(f'v_bfe_u32 v{LANE}, v{L16}, 1, 5\ns_lshl_b32 s26, {S_W}, 5\ns_add_u32 s26, s26, {STAT2}\nv_add_u32 v{CHK}, s26, v{LANE}\nv_add_u32 v{LANE}, {STAT2}, v{LANE}')
    e(f'ds_write_b64 v{CHK}, {vr(SQ, 2)}')
    e(f'buffer_store_dwordx4 {vr(Y, 4)}, v{AD + 2}, {WSR}, {sT2} offen sc1')
    U = Y + 16
    for k in range(4): e(f'v_lshlrev_b32 v{U + 2 * k}, 16, v{Y + k}\nv_and_b32 v{U + 2 * k + 1}, 0xffff0000, v{Y + k}')
    e('s_waitcnt lgkmcnt(0)\ns_barrier')
    for w in range(4): e(f'ds_read_b64 {vr(SQ + 2 * w, 2)}, v{LANE} offset:{w * 32}')
    e('s_waitcnt lgkmcnt(0)')
    for k in range(2):
        e(f'v_add_f32 v{SQ + k}, v{SQ + k}, v{SQ + 2 + k}\nv_add_f32 v{SQ + 4 + k}, v{SQ + 4 + k}, v{SQ + 6 + k}\nv_add_f32 v{SQ + k}, v{SQ + k}, v{SQ + 4 + k}')
    e(f'v_mul_f32 v{SQ}, {fhex(1 / D)}, v{SQ}\nv_mul_f32 v{SQ + 1}, {fhex(1 / D)}, v{SQ + 1}')
    e(f'v_fma_f32 v{SQ + 1}, -v{SQ}, v{SQ}, v{SQ + 1}\nv_max_f32 v{SQ + 1}, 0, v{SQ + 1}\nv_add_f32 v{SQ + 1}, {fhex(1e-5)}, v{SQ + 1}\nv_rsq_f32 v{SQ + 1}, v{SQ + 1}')
    e(f'v_mul_f32 v{SQ}, v{SQ}, v{SQ + 1}')
    for k in range(8): e(f'v_fma_f32 v{U + k}, v{U + k}, v{SQ + 1}, -v{SQ}')
    for k in range(4): e(pk(U + 8 + k, U + 2 * k, U + 2 * k + 1))
    for k in range(4): e(f'v_min_u32 v{U + 8 + k}, -2, v{U + 8 + k}')
    e(f'buffer_store_dwordx4 {vr(U + 8, 4)}, v{AD + 2}, {WSR}, {sT} offen sc1')
    e('P_next:')
    e(f's_add_u32 {sN}, {sN}, 5\ns_add_u32 {sIt}, {sIt}, 1\ns_cmp_lt_u32 {sN}, 128\ns_cbranch_scc1 P_loop')
    e('s_branch DONE')
```

```python
import math
from asmlib import *
from layout import *

def srd(e, r, ptr, size):
    e(f's_mov_b32 s{r}, s{ptr}\ns_mov_b32 s{r + 1}, s{ptr + 1}\ns_mov_b32 s{r + 2}, {size}\ns_mov_b32 s{r + 3}, 0x20000')

def fhex(x):
    import struct
    return '0x%08x' % struct.unpack('<I', struct.pack('<f', x))[0]

def div7(e, d, s):
    e(f's_mul_i32 {d}, {s}, 9363\ns_lshr_b32 {d}, {d}, 16')

def allreduce_g(e, v, t, op):
    e(f'v_mov_b32 v{t}, v{v}\nv_permlane16_swap_b32 v{t}, v{v}\n{op} v{v}, v{v}, v{t}')
    e(f'v_mov_b32 v{t}, v{v}\nv_permlane32_swap_b32 v{t}, v{v}\n{op} v{v}, v{v}, v{t}')

def k0(e, cfg):
    WS = 's[4:7]'; S_W = 's8'
    g = lambda l: l >> 4
    c = lambda l: l & 15
    LANE, L16 = 1, 2
    tmp = list(range(10, 20))
    e('s_cmp_ge_u32 s2, 256\ns_cbranch_scc1 K0_end')
    e('s_load_dwordx4 s[40:43], s[0:1], 0\ns_load_dwordx8 s[44:51], s[0:1], 16\ns_load_dwordx2 s[52:53], s[0:1], 64\ns_load_dwordx2 s[54:55], s[0:1], 80\ns_load_dwordx2 s[4:5], s[0:1], 112')
    e(f'v_lshrrev_b32 v1, 6, v0\nv_readfirstlane_b32 {S_W}, v1')
    e(f'v_and_b32 v{LANE}, 63, v0\nv_lshlrev_b32 v{L16}, 4, v{LANE}')
    e('s_and_b32 s9, s2, 7\ns_lshr_b32 s10, s2, 3')
    e('s_waitcnt lgkmcnt(0)')
    e('s_mov_b32 s6, 0x10000000\ns_mov_b32 s7, 0x20000')
    e('s_cmp_ge_u32 s10, 28\ns_cbranch_scc1 K0_misc')
    sH, sB, sTy, sT, sT2, sO0, sO1, sSc = 's11', 's12', 's13', 's14', 's15', 's16', 's17', 's18'
    div7(e, sT, 's10')
    e(f's_mul_i32 {sT2}, {sT}, 7\ns_sub_u32 {sB}, s10, {sT2}')
    e(f's_lshl_b32 {sT2}, s9, 2\ns_add_u32 {sT}, {sT}, {sT2}\ns_and_b32 {sTy}, {sT}, 1\ns_lshr_b32 {sH}, {sT}, 1')
    KS = 's[20:23]'; NS = 's[24:27]'
    e(f's_cmp_eq_u32 {sTy}, 0\ns_cselect_b32 s20, s44, s48\ns_cselect_b32 s21, s45, s49\ns_cselect_b32 s24, s46, s50\ns_cselect_b32 s25, s47, s51')
    e(f's_mov_b32 s22, {D * H * DH * 2}\ns_mov_b32 s23, 0x20000\ns_mov_b32 s26, {D * H * DH * 2}\ns_mov_b32 s27, 0x20000')
    KA, TC, NA0, NA1, RA = 3, 4, 5, 6, 7
    e(f'v_lshrrev_b32 v10, 3, v{LANE}\nv_lshlrev_b32 v{KA}, 13, v10')
    e(f'v_bfe_u32 v10, v{LANE}, 4, 1\ns_lshl_b32 {sT}, {S_W}, 1\nv_add_u32 v10, {sT}, v10\nv_and_b32 v11, 7, v{LANE}\nv_xor_b32 v10, v10, v11\nv_lshlrev_b32 v10, 4, v10\nv_add_u32 v{KA}, v{KA}, v10')
    sK = 's28'; sL = 's29'
    e(f's_lshl_b32 {sK}, {S_W}, 16\ns_lshl_b32 {sT}, {sH}, 9\ns_add_u32 {sK}, {sK}, {sT}')
    e(f's_lshl_b32 {sL}, {S_W}, 10')
    def stage(st):
        for i in range(14):
            e(f's_add_u32 {sT}, {sK}, {i * 4 * 65536 + st * 128}\ns_add_u32 m0, {sL}, {(st & 1) * 57344 + i * 4096}')
            e(f'buffer_load_dwordx4 v{KA}, {KS}, {sT} offen lds')
    e(f'v_lshrrev_b32 v10, 1, v{LANE}\nv_and_b32 v10, 15, v10\nv_lshlrev_b32 v{TC}, 13, v10\nv_and_b32 v10, 1, v{LANE}\nv_lshlrev_b32 v10, 7, v10\nv_add_u32 v{TC}, v{TC}, v10')
    e(f's_lshl_b32 {sT}, {sB}, 2\ns_add_u32 {sT}, {sT}, {S_W}\ns_lshl_b32 {sT}, {sT}, 17\ns_lshl_b32 {sT2}, {sH}, 9\ns_add_u32 {sT}, {sT}, {sT2}')
    e(f'buffer_load_dword v9, v{TC}, {KS}, {sT} offen offset:256')
    stage(0)
    NF = 64; RAW = 128; ACC = 0
    sNJ = 's30'; sKH = 's31'
    e(f's_and_b32 {sNJ}, {S_W}, 1\ns_lshr_b32 {sKH}, {S_W}, 1')
    e(f's_cmp_eq_u32 {sTy}, 1\ns_cbranch_scc1 K0_nB')
    P0, P1, P2 = 20, 21, 22
    lanefn(e, P0, lambda l: (16 * (c(l) >> 2) + 4 * ((c(l) >> 1) & 1) + (c(l) & 1)) * 8192 + 16 * g(l), LANE, tmp)
    lanefn(e, P1, lambda l: (8 * (c(l) >> 2) + 4 * ((c(l) >> 1) & 1) + (c(l) & 1)) * 8192 + 16 * g(l), LANE, tmp)
    lanefn(e, P2, lambda l: (8 * ((c(l) >> 2) & 1) + 4 * ((c(l) >> 1) & 1) + 2 * (c(l) >> 3) + (c(l) & 1)) * 8192 + 16 * g(l), LANE, tmp)
    for k, (NA, sO) in enumerate(((NA0, sO0), (NA1, sO1))):
        l1, l2, l3 = e.lab('k0a'), e.lab('k0b'), e.lab('k0c')
        e(f's_lshl_b32 s32, {sB}, 2\ns_lshl_b32 s33, {sNJ}, 1\ns_add_u32 s32, s32, s33\ns_add_u32 s32, s32, {k}')
        e(f's_mul_i32 {sO}, {sH}, 28\ns_add_u32 {sO}, {sO}, s32\ns_mul_i32 {sO}, {sO}, {14 * 1024}')
        if WS_WA: e(f's_add_u32 {sO}, {sO}, {WS_WA}')
        div7(e, 's33', 's32')
        e('s_mul_i32 s34, s33, 7\ns_sub_u32 s34, s32, s34\ns_mul_i32 s33, s33, 112')
        e(f's_cmp_ge_u32 s34, 4\ns_cbranch_scc1 {l1}')
        e(f's_lshr_b32 s35, s34, 1\ns_lshl_b32 s35, s35, 3\ns_and_b32 s36, s34, 1\ns_lshl_b32 s36, s36, 1\ns_add_u32 s35, s35, s36\nv_mov_b32 v{NA}, v{P0}\ns_branch {l3}')
        e(f'{l1}:\ns_cmp_eq_u32 s34, 6\ns_cbranch_scc1 {l2}')
        e(f's_lshl_b32 s35, s34, 1\ns_add_u32 s35, s35, 56\nv_mov_b32 v{NA}, v{P1}\ns_branch {l3}')
        e(f'{l2}:\ns_mov_b32 s35, 96\nv_mov_b32 v{NA}, v{P2}')
        e(f'{l3}:\ns_add_u32 s33, s33, s35\ns_lshl_b32 s33, s33, 13\ns_lshl_b32 s35, {sH}, 9\ns_add_u32 s33, s33, s35')
        for es in range(8):
            e(f'buffer_load_dwordx4 {vr(NF + 8 * es + 4 * k, 4)}, v{NA}, {NS}, s33 offen offset:{es * 64}')
    e(f's_mov_b32 {sSc}, {fhex(DH ** -0.5 * math.log2(math.e))}')
    stage(1)
    e('s_waitcnt vmcnt(14)')
    e('s_branch K0_mm')
    e('K0_nB:')
    lanefn(e, NA0, lambda l: 8 * g(l) * 896 + 4 * c(l), LANE, tmp)
    e(f's_lshl_b32 s32, {sB}, 1\ns_add_u32 s32, s32, {sNJ}')
    e(f's_mul_i32 s33, {sH}, {DH * 896}\ns_lshl_b32 s34, s32, 6\ns_add_u32 s33, s33, s34')
    for es in range(8):
        for i in range(8):
            if i % 4 == 0: e(f's_add_u32 s34, s33, {(32 * es + i) * 896}')
            e(f'buffer_load_dword v{RAW + 8 * es + i}, v{NA0}, {NS}, s34 offen offset:{(i % 4) * 896}')
    e(f's_lshl_b32 {sO0}, s32, 4\ns_add_u32 {sO0}, {sO0}, {sH}\ns_mul_i32 {sO0}, {sO0}, {2 * 14 * 1024}\ns_add_u32 {sO0}, {sO0}, {WS_WB}\ns_add_u32 {sO1}, {sO0}, {14 * 1024}')
    e(f's_mov_b32 {sSc}, 1.0')
    stage(1)
    e('s_mov_b32 s34, 0x05040100\ns_mov_b32 s35, 0x07060302')
    e('s_waitcnt vmcnt(14)')
    for es in range(8):
        for q in range(4):
            a = RAW + 8 * es + 2 * q
            e(f'v_perm_b32 v{NF + 8 * es + q}, v{a + 1}, v{a}, s34\nv_perm_b32 v{NF + 8 * es + 4 + q}, v{a + 1}, v{a}, s35')
    e('K0_mm:')
    RB = 8
    lanefn(e, RA, lambda l: (8 * (c(l) >> 2) + (c(l) & 3)) * 128, LANE, tmp)
    e(f'v_bfe_u32 v10, v{LANE}, 1, 3\nv_lshrrev_b32 v11, 4, v{LANE}\nv_xor_b32 v10, v10, v11\nv_xor_b32 v11, 4, v10')
    e(f's_mul_i32 {sT}, {sKH}, {224 * 128}\nv_add_u32 v{RA}, {sT}, v{RA}')
    e(f'v_lshl_add_u32 v{RB}, v11, 4, v{RA}\nv_lshl_add_u32 v{RA}, v10, 4, v{RA}')
    RA2, RB2 = 23, 24
    e(f'v_add_u32 v{RA2}, 57344, v{RA}\nv_add_u32 v{RB2}, 57344, v{RB}')
    KF = 192
    for st in range(4):
        e('s_barrier')
        rd = []
        for eh in range(2):
            for kt in range(14):
                base = ((RA, RB), (RA2, RB2))[st & 1][eh]
                rd.append((eh, kt, f'v{base} offset:{(kt >> 1) * 4096 + (kt & 1) * 512}'))
        for i in range(6): e(f'ds_read_b128 {vr(KF + 4 * (i % 8), 4)}, {rd[i][2]}')
        for i, (eh, kt, _) in enumerate(rd):
            if i + 6 < len(rd): e(f'ds_read_b128 {vr(KF + 4 * ((i + 6) % 8), 4)}, {rd[i + 6][2]}')
            e(f's_waitcnt lgkmcnt({min(6, len(rd) - 1 - i)})')
            es = 2 * st + eh
            for k in range(2):
                a = vr(ACC + 8 * kt + 4 * k, 4, 'a')
                e(f'v_mfma_f32_16x16x32_bf16 {a}, {vr(KF + 4 * (i % 8), 4)}, {vr(NF + 8 * es + 4 * k, 4)}, {a if es else 0}')
        if st < 2:
            e('s_barrier')
            stage(st + 2)
            e('s_waitcnt vmcnt(14)')
        elif st == 2:
            e('s_waitcnt vmcnt(0)')
    e(f's_mul_i32 {sT}, {sKH}, {7 * 1024}\ns_add_u32 {sO0}, {sO0}, {sT}\ns_add_u32 {sO1}, {sO1}, {sT}')
    n = 0
    for ks in range(7):
        for k, sO in enumerate((sO0, sO1)):
            t0 = RAW + 8 * (n % 4); o = RAW + 32 + 4 * (n % 8); n += 1
            for hf in range(2):
                for i in range(4):
                    e(f'v_accvgpr_read_b32 v{t0 + 4 * hf + i}, a{ACC + 8 * (2 * ks + hf) + 4 * k + i}')
            for i in range(8): e(f'v_mul_f32 v{t0 + i}, {sSc}, v{t0 + i}')
            for q in range(4): e(f'v_cvt_pk_bf16_f32 v{o + q}, v{t0 + 2 * q}, v{t0 + 2 * q + 1}')
            if ks == 4: e(f's_add_u32 {sO}, {sO}, 4096')
            e(f'buffer_store_dwordx4 {vr(o, 4)}, v{L16}, {WS}, {sO} offen offset:{(ks % 4) * 1024}')
    e('s_branch K0_common')
    e('K0_misc:')
    sU = 's11'
    e(f's_lshl_b32 {sU}, s9, 2\ns_add_u32 {sU}, {sU}, s10\ns_sub_u32 {sU}, {sU}, 28')
    srd(e, 20, 40, S * D * 2)
    XA, TA = 3, 4
    XV = 64
    lanefn(e, XA, lambda l: c(l) * 896 + 16 * g(l), LANE, tmp)
    lanefn(e, TA, lambda l: g(l) * 512 + 16 * c(l), LANE, tmp)
    e(f's_lshl_b32 s12, {sU}, 2\ns_add_u32 s12, s12, {S_W}\ns_mul_i32 s13, s12, {16 * 896}')
    for i in range(14): e(f'buffer_load_dwordx4 {vr(XV + 4 * i, 4)}, v{XA}, s[20:23], s13 offen offset:{64 * i}')
    e(f's_lshr_b32 s14, s12, 1\ns_mul_i32 s14, s14, {TILE}\ns_and_b32 s15, s12, 1\ns_lshl_b32 s15, s15, 8\ns_add_u32 s14, s14, s15')
    e(f's_add_u32 s15, s14, {WS_XR0}\ns_add_u32 s14, s14, {WS_XN0}')
    SM, SQ, ONE = 5, 6, 7
    e(f'v_mov_b32 v{SM}, 0\nv_mov_b32 v{SQ}, 0\nv_mov_b32 v{ONE}, 0x3f803f80')
    e('s_waitcnt vmcnt(0)')
    for i in range(56):
        e(f'v_min_u32 v{XV + i}, -2, v{XV + i}')
        e(f'v_dot2c_f32_bf16 v{SM}, v{XV + i}, v{ONE}\nv_dot2c_f32_bf16 v{SQ}, v{XV + i}, v{XV + i}')
    for i in range(14):
        if i and i % 2 == 0: e('s_add_u32 s15, s15, 4096')
        e(f'buffer_store_dwordx4 {vr(XV + 4 * i, 4)}, v{TA}, {WS}, s15 offen offset:{(i % 2) * 2048}')
    e('s_nop 2')
    allreduce_g(e, SM, 10, 'v_add_f32'); allreduce_g(e, SQ, 10, 'v_add_f32')
    e(f'v_mul_f32 v{SM}, {fhex(1 / D)}, v{SM}\nv_mul_f32 v{SQ}, {fhex(1 / D)}, v{SQ}')
    e(f'v_fma_f32 v{SQ}, -v{SM}, v{SM}, v{SQ}\nv_max_f32 v{SQ}, 0, v{SQ}\nv_add_f32 v{SQ}, {fhex(1e-5)}, v{SQ}\nv_rsq_f32 v{SQ}, v{SQ}')
    e(f'v_mul_f32 v{SM}, v{SM}, v{SQ}')
    YV = 128
    for i in range(56):
        e(f'v_lshlrev_b32 v10, 16, v{XV + i}\nv_and_b32 v11, 0xffff0000, v{XV + i}')
        e(f'v_fma_f32 v10, v10, v{SQ}, -v{SM}\nv_fma_f32 v11, v11, v{SQ}, -v{SM}')
        e(f'v_cvt_pk_bf16_f32 v{YV + i}, v10, v11\nv_min_u32 v{YV + i}, -2, v{YV + i}')
        if i % 4 == 3:
            k = i // 4
            if k and k % 2 == 0: e('s_add_u32 s14, s14, 4096')
            e(f'buffer_store_dwordx4 {vr(YV + 4 * k, 4)}, v{TA}, {WS}, s14 offen offset:{(k % 2) * 2048}')
    e(f's_lshl_b32 s12, {sU}, 11\ns_lshl_b32 s13, {S_W}, 9\ns_add_u32 s12, s12, s13\ns_add_u32 s13, s12, {WS_ZERO}')
    e(f's_and_b32 s12, s12, 0x1d000\ns_cmp_eq_u32 s12, 0\ns_cselect_b32 s12, 1, 0')
    e(f'v_cmp_gt_u32 vcc, 14, v{LANE}\nv_mov_b32 v10, s12\nv_cndmask_b32 v10, 0, v10, vcc\nv_lshlrev_b32 v11, 2, v{LANE}')
    e(f'buffer_store_dword v10, v11, {WS}, s13 offen\nbuffer_store_dword v10, v11, {WS}, s13 offen offset:256')
    e(f's_cmp_ge_u32 {sU}, 7\ns_cbranch_scc1 K0_common')
    srd(e, 24, 42, MM * D * 2)
    lanefn(e, XA, lambda l: (c(l) >> 1) * 896 + 32 * g(l) + 4 * (l & 1), LANE, tmp)
    lanefn(e, TA, lambda l: (l & 7) * 896 + 16 * (l >> 3), LANE, tmp)
    e(f's_lshl_b32 s12, {sU}, 7')
    for q in range(4): e(f'buffer_load_dword v{XV + q}, v{XA}, s[24:27], s12 offen offset:{8 * q}')
    e(f'buffer_load_dwordx4 {vr(XV + 4, 4)}, v{TA}, s[24:27], s12 offen')
    e(f's_mul_i32 s13, {S_W}, 14336\ns_lshl_b32 s12, {sU}, 10\ns_add_u32 s13, s13, s12\ns_add_u32 s13, s13, {WS_MA}\ns_add_u32 s14, s13, 7168')
    e('s_waitcnt vmcnt(0)')
    for i in range(8): e(f'v_min_u32 v{XV + i}, -2, v{XV + i}')
    e(f'buffer_store_dwordx4 {vr(XV, 4)}, v{L16}, {WS}, s13 offen\nbuffer_store_dwordx4 {vr(XV + 4, 4)}, v{L16}, {WS}, s14 offen')
    e('K0_common:')
    sG = 's11'
    e(f's_lshl_b32 {sG}, s2, 2\ns_add_u32 {sG}, {sG}, {S_W}')
    GV = 64; GA = 3
    e(f's_cmp_ge_u32 {sG}, 784\ns_cbranch_scc1 K0_fill')
    e(f's_cmp_ge_u32 {sG}, 392\ns_cbranch_scc1 K0_w2')
    srd(e, 20, 52, D * F * 2)
    lanefn(e, GA, lambda l: 8 * g(l) * 3584 + 2 * c(l), LANE, tmp)
    e(f's_lshr_b32 s12, {sG}, 1'); div7(e, 's12', 's12')
    e(f's_mul_i32 s13, s12, 14\ns_sub_u32 s13, {sG}, s13')
    e(f's_mul_i32 s14, s13, {32 * 3584}\ns_lshl_b32 s15, s12, 7\ns_add_u32 s14, s14, s15')
    for s_ in range(8):
        for i in range(4): e(f'buffer_load_ushort v{GV + 8 * i + s_}, v{GA}, s[20:23], s14 offen offset:{32 * i}')
        e('s_add_u32 s14, s14, 3584')
    e(f's_mul_i32 s14, s12, 56\ns_add_u32 s14, s14, s13\ns_lshl_b32 s14, s14, 10\ns_add_u32 s14, s14, {WS_W1}\ns_mov_b32 s15, {14 * 1024}')
    e('s_branch K0_wst')
    e('K0_w2:')
    srd(e, 20, 54, D * F * 2)
    e(f's_sub_u32 s16, {sG}, 392'); div7(e, 's12', 's16')
    e('s_mul_i32 s13, s12, 7\ns_sub_u32 s13, s16, s13')
    lanefn(e, GA, lambda l: 4 * g(l) * 896 + 2 * (8 * (c(l) >> 2) + (c(l) & 3)), LANE, tmp)
    lanefn(e, 4, lambda l: 4 * g(l) * 896 + 2 * c(l), LANE, tmp)
    e(f's_cmp_eq_u32 s13, 6\ns_cselect_b64 vcc, -1, 0\nv_cndmask_b32 v{GA}, v{GA}, v4, vcc')
    e(f's_lshr_b32 s14, s13, 1\ns_lshl_b32 s14, s14, 6\ns_and_b32 s15, s13, 1\ns_lshl_b32 s15, s15, 3\ns_add_u32 s14, s14, s15\ns_mul_i32 s15, s12, {32 * 896}\ns_add_u32 s14, s14, s15')
    for s_ in range(8):
        if s_ == 4: e(f's_add_u32 s14, s14, {16 * 896}')
        for i in range(4): e(f'buffer_load_ushort v{GV + 8 * i + s_}, v{GA}, s[20:23], s14 offen offset:{(s_ & 3) * 896 + 224 * i}')
    div7(e, 's14', 's12')
    e('s_mul_i32 s15, s14, 7\ns_sub_u32 s15, s12, s15')
    e(f's_mul_i32 s14, s14, 28\ns_add_u32 s14, s14, s13\ns_mul_i32 s14, s14, 7\ns_add_u32 s14, s14, s15\ns_lshl_b32 s14, s14, 10\ns_add_u32 s14, s14, {WS_W2}\ns_mov_b32 s15, {49 * 1024}')
    e('K0_wst:')
    e('s_waitcnt vmcnt(0)')
    for i in range(4):
        for q in range(4): e(f'v_lshl_or_b32 v{GV + 32 + 4 * i + q}, v{GV + 8 * i + 2 * q + 1}, 16, v{GV + 8 * i + 2 * q}')
        e(f'buffer_store_dwordx4 {vr(GV + 32 + 4 * i, 4)}, v{L16}, {WS}, s14 offen\ns_add_u32 s14, s14, s15')
    e('K0_fill:')
    for i in range(4): e(f'v_mov_b32 v{12 + i}, -1')
    e(f's_mul_i32 s12, {sG}, {FILL_PER_WAVE * 1024}\ns_add_u32 s12, s12, {WS_FILL}')
    for i in range(FILL_PER_WAVE):
        if i and i % 4 == 0: e('s_add_u32 s12, s12, 4096')
        e(f'buffer_store_dwordx4 v[12:15], v{L16}, {WS}, s12 offen offset:{(i % 4) * 1024}')
    e('K0_end:\ns_endpgm')
```

```python
from asmlib import *
from layout import *
import rec, bulk
from k0 import srd

def k1(e, cfg):
    e('s_cmp_ge_u32 s2, 256\ns_cbranch_scc1 K1_end')
    e('s_load_dwordx2 s[40:41], s[0:1], 72\ns_load_dwordx4 s[44:47], s[0:1], 88\ns_load_dwordx2 s[48:49], s[0:1], 104\ns_load_dwordx2 s[4:5], s[0:1], 112')
    e('s_getreg_b32 s9, hwreg(HW_REG_XCC_ID, 0, 3)')
    e('v_lshrrev_b32 v1, 6, v0\nv_readfirstlane_b32 s8, v1')
    e('s_waitcnt lgkmcnt(0)')
    e('s_mov_b32 s6, 0x10000000\ns_mov_b32 s7, 0x20000')
    srd(e, 28, 46, S * D * 2); srd(e, 32, 40, F * 2); srd(e, 36, 44, D * 2); srd(e, 92, 48, 256)
    e('s_cmp_lg_u32 s8, 0\ns_cbranch_scc1 K1_wt')
    e('s_lshl_b32 s22, s9, 2\nv_mov_b32 v3, s22\nv_mov_b32 v5, 1\nv_mov_b32 v6, 0\ns_mov_b64 exec, 1')
    e('buffer_atomic_add v5, v3, s[92:95], 0 offen sc0\ns_waitcnt vmcnt(0)\nds_write_b32 v6, v5\ns_waitcnt lgkmcnt(0)\ns_mov_b64 exec, -1')
    e('K1_wt:\ns_barrier\nv_mov_b32 v6, 0\nds_read_b32 v5, v6\ns_waitcnt lgkmcnt(0)\nv_readfirstlane_b32 s3, v5\ns_barrier')
    e(f's_mov_b32 s99, {cfg.get("spin", 1 << 21)}\ns_mov_b32 s98, 0')
    if cfg.get('prof'): e('s_memrealtime s[90:91]')
    e('s_cmp_ge_u32 s3, 32\ns_cbranch_scc1 K1_end')
    e('s_cmp_ge_u32 s9, 2\ns_cbranch_scc1 K1_bulk')
    e('s_mov_b32 s11, s9\ns_cmp_ge_u32 s3, 30\ns_cbranch_scc1 K1_h\ns_cmp_ge_u32 s3, 16\ns_cbranch_scc1 K1_b')
    e('s_mov_b32 s10, s3')
    rec.rec_a(e, cfg)
    e('K1_b:\ns_sub_u32 s10, s3, 16')
    rec.rec_b(e, cfg)
    e('K1_h:\ns_sub_u32 s10, s3, 30')
    rec.rec_h(e, cfg)
    e('K1_bulk:')
    e('s_mov_b32 s12, s3\ns_cmp_eq_u32 s9, 7\ns_cbranch_scc1 K1_vq')
    e('s_sub_u32 s12, s3, 8\ns_cmp_ge_u32 s3, 8\ns_cbranch_scc1 K1_vq')
    e('s_mov_b32 s10, s3\ns_sub_u32 s23, s9, 2')
    bulk.role_mlp(e, cfg)
    e('K1_vq:')
    e('s_cmp_ge_u32 s12, 28\ns_cbranch_scc1 K1_end')
    e('s_mov_b32 s13, 0\ns_cmp_eq_u32 s9, 2\ns_cbranch_scc1 K1_v')
    e('s_lshl_b32 s13, s9, 1\ns_sub_u32 s13, s13, 2\ns_cmp_lt_u32 s12, 12\ns_cbranch_scc1 K1_v')
    e('s_sub_u32 s12, s12, 12\ns_sub_u32 s13, s9, 3\ns_mul_i32 s13, s13, 3\ns_lshr_b32 s10, s12, 2\ns_add_u32 s10, s10, s13')
    e('s_bfe_u32 s11, s12, 0x10001\ns_and_b32 s23, s12, 1')
    bulk.role_q(e, cfg)
    e('K1_v:')
    e('s_mul_i32 s14, s12, 43\ns_lshr_b32 s14, s14, 8\ns_add_u32 s10, s13, s14\ns_mul_i32 s14, s14, 6\ns_sub_u32 s14, s12, s14')
    e('s_cmp_ge_u32 s14, 3\ns_cselect_b32 s11, 1, 0\ns_mul_i32 s15, s11, 3\ns_sub_u32 s23, s14, s15')
    bulk.role_v(e, cfg)
    e('FAIL:\ns_mov_b64 exec, 1\nv_mov_b32 v3, 64\nv_mov_b32 v5, 1\nbuffer_atomic_add v5, v3, s[92:95], 0 offen')
    e('DONE:')
    if cfg.get('prof'):
        e('s_mov_b64 exec, 1\ns_memrealtime s[88:89]\ns_waitcnt vmcnt(0) lgkmcnt(0)')
        e('s_lshl_b32 s12, s9, 5\ns_add_u32 s12, s12, s3\ns_lshl_b32 s12, s12, 2\ns_add_u32 s12, s12, s8\ns_lshl_b32 s12, s12, 6\ns_add_u32 s12, s12, 0xf000000\nv_mov_b32 v3, s12')
        for i, r in enumerate(('s90', 's88', 's98', 's99')):
            e(f'v_mov_b32 v4, {r}\nbuffer_store_dword v4, v3, s[4:7], 0 offen offset:{4 * i}')
    e('K1_end:\ns_endpgm')
```

```python
D=448; H=16; DH=256; S=2048; SEG=32; NSEG=64; MM=8; F=1792
MB=1<<20
TILE=28672
WS_WA   = 0*MB
WS_WB   = 7*MB
WS_W1   = 14*MB
WS_W2   = 16*MB
WS_ZERO = 18*MB
WS_SIG  = WS_ZERO
WS_VF   = WS_ZERO + 16384
WS_PF   = WS_ZERO + 49152
ZERO_BYTES = 65536
WS_PART = 19*MB
PART_SLOT = 8*TILE
WS_XN0  = 24*MB
WS_XR0  = WS_XN0 + 64*TILE
WS_MA   = WS_XR0 + 64*TILE
MA_STEP = 57344; MA_LAYER = 28672
WS_FILL = WS_MA + MA_STEP
WS_XN1  = WS_MA + 64*MA_STEP
WS_XR1  = WS_XN1 + 64*TILE
X_LAYER = WS_XN1 - WS_XN0
assert WS_XR1 - WS_XR0 == X_LAYER
WS_X1   = WS_XR1 + 64*TILE
WS_PG   = WS_X1 + 128*TILE
PG_SEG  = 40960
WS_PR   = WS_PG + 128*PG_SEG
PR_STEP = 10240
FILL_END= WS_PR + 128*PR_STEP
FILL_PER_WAVE = -(-(FILL_END - WS_FILL) // (1024*1024))
WS_VX   = 64*MB
VX_SEG  = 14*32768
VX_LAYER= 32*MB
assert WS_FILL + FILL_PER_WAVE*1024*1024 <= WS_VX

def nmap(w,t,c):
    g=c>>2
    if t<4:
        return 112*w + 16*g + 8*(t>>1) + 4*((c>>1)&1) + 2*(t&1) + (c&1)
    tt=t-4; base=112*w+64
    if tt<2:
        return base + 8*g + 4*((c>>1)&1) + 2*tt + (c&1)
    return base + 32 + 8*(g&1) + 4*((c>>1)&1) + 2*(g>>1) + (c&1)
def keymap(kappa):
    return 16*(kappa&1) + (kappa>>1)
def dmap(w,t,c):
    if t<6: return 112*w + 32*(t>>1) + 8*(c>>2) + 4*(t&1) + (c&3)
    return 112*w + 96 + c
def fmap(p,g,s):
    return 32*p + 16*(s>>2) + 4*g + (s&3)
```

```python
from asmlib import *
from layout import *

WSR = 's[4:7]'
S_W = 's8'
S_ID = 's10'
S_LAY = 's11'
BIG = 0x7ff00000
DPPM = 'row_mask:0xf bank_mask:0xf'

def load_weights(e, nfrag, vl16, sbase, vbase, first=0):
    for i in range(nfrag):
        if i % 4 == 0 and i: e(f's_add_u32 {sbase}, {sbase}, 4096')
        e(f'buffer_load_dwordx4 {wreg((first + i) * 4, 4, vbase)}, v{vl16}, {WSR}, {sbase} offen offset:{(i % 4) * 1024}')

def sig_poll(e, vaddr, soff, stag, regs, mask, fail, cnt='s99'):
    n = len(regs)
    L = e.lab('sp'); Dn = e.lab('spd')
    e(f's_mov_b64 exec, {mask}')
    ld = lambda r: e(f'buffer_load_dword v{r}, v{vaddr}, {WSR}, {soff} offen sc1')
    for r in regs[:-1]:
        ld(r); e('s_nop 7')
    e(f'{L}:')
    for i in range(n):
        ld(regs[(i + n - 1) % n])
        e(f's_waitcnt vmcnt({n - 1})')
        e(f'v_cmp_gt_u32 vcc, {stag}, v{regs[i]}')
        e(f's_cbranch_vccz {Dn}')
    e(f's_sub_u32 {cnt}, {cnt}, 1\ns_cbranch_scc1 {fail}\ns_branch {L}')
    e(f'{Dn}:\ns_mov_b64 exec, -1')

def chk(regs, acc, first):
    out = []; r = list(regs)
    if first:
        out.append(f'v_max3_u32 v{acc}, v{r[0]}, v{r[1]}, v{r[2]}'); r = r[3:]
    while len(r) >= 2:
        out.append(f'v_max3_u32 v{acc}, v{acc}, v{r[0]}, v{r[1]}'); r = r[2:]
    if r: out.append(f'v_max_u32 v{acc}, v{acc}, v{r[0]}')
    return out

def interleave(e, main, fill, per=2):
    fill = list(fill)
    for m in main:
        e(m)
        for _ in range(per):
            if fill: e(fill.pop(0))
    for f in fill: e(f)

def rec_a(e, cfg):
    stamp = cfg.get('stamp', lambda e, i: None)
    nsteps = cfg.get('nsteps', 63)
    VB = 120
    (L16, MKA, MKB, X0, X1, X2, IDX0, IDX1, LW, RD, PX, PM, SGP, SGS, CHK, LANE) = range(1, 17)
    SEL = 18
    PL = [0, 17, 22, 23]
    MF = 24; ACC = 52; XK = 80; MK = 112
    tmp = list(range(52, 62))
    sX, sMS, sMN, sP, sTag, sSigP, sSigS, sT, sT2 = 's12', 's13', 's14', 's15', 's16', 's17', 's18', 's19', 's20'
    e(f'v_and_b32 v{LANE}, 63, v0\nv_lshlrev_b32 v{L16}, 4, v{LANE}')
    e(f's_lshl_b32 {sT}, {S_ID}, 2\ns_add_u32 {sT}, {sT}, {S_W}\ns_mul_i32 {sT}, {sT}, {98 * 1024}')
    if WS_WA: e(f's_add_u32 {sT}, {sT}, {WS_WA}')
    load_weights(e, 98, L16, sT, VB)
    g = lambda l: l >> 4
    c = lambda l: l & 15
    def g1(l, half): return 8 + ((2 * half + (g(l) >> 1)) if g(l) % 2 == 0 else 4 + (g(l) >> 1))
    lanefn(e, MKA, lambda l: (c(l) & 7) * 16 + 128 * (g(l) if c(l) < 8 else g1(l, 0)), LANE, tmp)
    lanefn(e, MKB, lambda l: (c(l) & 7) * 16 + 128 * (4 + g(l) if c(l) < 8 else g1(l, 1)), LANE, tmp)
    lanefn(e, X0, lambda l: c(l) * 16 + 512 * g(l), LANE, tmp)
    lanefn(e, X1, lambda l: c(l) * 16 + 512 * g1(l, 0), LANE, tmp)
    lanefn(e, X2, lambda l: c(l) * 16 + 512 * g1(l, 1), LANE, tmp)
    e(f's_mul_i32 {sT}, {S_W}, {14 * 128}')
    for r in (MKA, MKB): e(f'v_add_u32 v{r}, {sT}, v{r}')
    e(f's_mul_i32 {sT}, {S_W}, {14 * 512}')
    for r in (X0, X1, X2): e(f'v_add_u32 v{r}, {sT}, v{r}')
    lanefn(e, IDX0, lambda l: 0xeeeeeeee if l & 1 else 0x44444444, LANE, tmp)
    lanefn(e, IDX1, lambda l: (0xeeeeeeee if l & 1 else (0xee44ee44 if g(l) >= 2 else 0x44444444)), LANE, tmp)
    for rho in range(4):
        lanefn(e, SEL + rho, lambda l: 0x3f803f80 if ((l & 1) == rho >> 1 and (c(l) >> 1) == 2 * g(l) + (rho & 1)) else 0, LANE, tmp)
    e(f's_lshl_b32 {sT}, {S_W}, 14\ns_add_u32 {sT}, {sT}, 4096\nv_add_u32 v{LW}, {sT}, v{L16}')
    e(f's_and_b32 {sT}, {S_W}, 1\ns_lshl_b32 {sT2}, {sT}, 10\nv_add_u32 v{RD}, {sT2}, v{L16}')
    lanefn(e, PX, lambda l: ((c(l) >> 3) * 16 + 4 * g(l) + (c(l) & 1)) * 16 + ((c(l) >> 1) & 3) * 4, LANE, tmp)
    e(f's_lshl_b32 {sT2}, {sT}, 5\nv_add_u32 v{PX}, {sT2}, v{PX}')
    lanefn(e, PM, lambda l: (16 * (c(l) >> 1) + 4 * g(l)) * 8 if (c(l) < 8 and c(l) % 2 == 0) else BIG, LANE, tmp)
    e(f's_lshl_b32 {sT2}, {sT}, 4\nv_add_u32 v{PM}, {sT2}, v{PM}')
    e(f's_lshr_b32 {sT}, {S_ID}, 2\ns_mul_i32 {sT}, {sT}, 2560\ns_and_b32 {sT2}, {S_ID}, 3\ns_lshl_b32 {sT2}, {sT2}, 9\ns_add_u32 {sT2}, {sT2}, {sT}\nv_add_u32 v{PX}, {sT2}, v{PX}')
    e(f's_and_b32 {sT2}, {S_ID}, 1\ns_lshl_b32 {sT2}, {sT2}, 3\ns_add_u32 {sT}, {sT}, {sT2}\ns_bfe_u32 {sT2}, {S_ID}, 0x10001\ns_lshl_b32 {sT2}, {sT2}, 2\ns_add_u32 {sT}, {sT}, {sT2}\ns_add_u32 {sT}, {sT}, 2048\nv_add_u32 v{PM}, {sT}, v{PM}')
    e(f'v_lshlrev_b32 v{SGP}, 2, v{LANE}\ns_lshl_b32 {sT}, {S_ID}, 8\nv_add_u32 v{SGP}, {sT}, v{SGP}')
    e(f'v_lshlrev_b32 v{SGS}, 8, v{LANE}\ns_lshl_b32 {sT}, {S_ID}, 2\nv_add_u32 v{SGS}, {sT}, v{SGS}')
    e(f's_mul_i32 {sT}, {S_LAY}, {MA_LAYER}\ns_add_u32 {sMS}, {sT}, {WS_MA}\ns_add_u32 {sMN}, {sMS}, 7168')
    e(f's_mul_i32 {sT}, {S_LAY}, {64 * PR_STEP}\ns_add_u32 {sP}, {sT}, {WS_PR}')
    e(f's_lshl_b32 {sT}, {S_LAY}, 13\ns_add_u32 {sSigP}, {sT}, {WS_SIG}\ns_add_u32 {sSigS}, {sSigP}, 4096')
    e(f's_mul_i32 {sX}, {S_LAY}, {X_LAYER}\ns_add_u32 {sX}, {sX}, {WS_XN0}')
    e(f's_mov_b32 {sTag}, 1')
    sV = 's21'; TCH = 0; sVer = 's22'
    e(f's_mov_b32 {sVer}, 0')
    PL = [17, 22, 23, LANE]
    def xload():
        for kt in range(2):
            for grp in range(2):
                for half in range(2):
                    f = kt * 4 + grp * 2 + half
                    va = X0 if grp == 0 else (X1, X2)[half]
                    off = kt * 256 + (2048 if (grp == 0 and half == 1) else 0)
                    e(f'buffer_load_dwordx4 {vr(XK + 4 * f, 4)}, v{va}, {WSR}, {sX} offen offset:{off} sc1')
    xload()
    W = lambda t, kb: wreg((t * 7 + kb) * 8, 8, VB)
    S = lambda t, kb: f'v_smfmac_f32_16x16x64_bf16 {vr(ACC + 4 * t, 4)}, {vr(MF + 4 * kb, 4)}, {W(t, kb)}, v{IDX0}'
    pk = lambda d, a: f'v_cvt_pk_bf16_f32 v{d}, v{a}, v{a + 1}'
    e('A_loop:')
    for i in range(0, 28, 2): e(f'v_mov_b64 {vr(ACC + i, 2)}, 0')
    e('A_xchk:')
    ck = chk(range(XK, XK + 32), CHK, True)
    for f in range(8):
        e(f's_waitcnt vmcnt({7 - f})')
        if f: e(ck.pop(0))
        e(ck.pop(0))
    for x in ck: e(x)
    e(f'v_cmp_eq_u32 vcc, -1, v{CHK}\ns_cbranch_vccnz A_xbad')
    e(f's_add_u32 {sX}, {sX}, 28672')
    stamp(e, 0)
    if cfg.get('sig', True): sig_poll(e, SGP, sSigP, sTag, PL[:cfg.get('pd', 3)], 0x3fff, 'FAIL')
    for i in range(cfg.get('dA', 0)): e('s_nop 7')
    e('A_retry:')
    stamp(e, 1)
    ldm = lambda kb: f'buffer_load_dwordx4 {vr(MF + 4 * kb, 4)}, v{L16}, {WSR}, {sMS if kb < 4 else sT} offen offset:{(kb % 4) * 1024} sc1'
    e(f's_add_u32 {sT}, {sMS}, 4096')
    gap = cfg.get('gap', 3)
    for kb in range(4):
        e(ldm(kb))
        if kb < 3 and gap: e(f's_nop {gap}')
    later = [ldm(4), ldm(5), ldm(6),
             f'buffer_load_dwordx4 {vr(MK, 4)}, v{MKA}, {WSR}, {sMN} offen sc1',
             f'buffer_load_dwordx4 {vr(MK + 4, 4)}, v{MKB}, {WSR}, {sMN} offen sc1']
    z2 = lambda r: f'v_mov_b64 {vr(r, 2)}, 0'
    e('s_waitcnt vmcnt(3)')
    stamp(e, 2)
    for t in range(7):
        e(S(t, 0))
        if t in (0, 2, 4): e(later.pop(0))
    e('s_waitcnt vmcnt(5)')
    for t in range(7):
        e(S(t, 1))
        if t in (0, 3): e(later.pop(0))
    e('s_waitcnt vmcnt(6)')
    interleave(e, [S(t, 2) for t in range(7)], [z2(MF + i) for i in (0, 2, 4, 6)], 1)
    e('s_waitcnt vmcnt(5)')
    interleave(e, [S(t, 3) for t in range(7)], [z2(MF + i) for i in (8, 10)], 1)
    e('s_waitcnt vmcnt(2)')
    stamp(e, 3)
    T = lambda d, a: f'v_mfma_f32_16x16x32_bf16 {vr(d, 4)}, {vr(a, 4)}, {vr(SEL, 4)}, 0'
    C = lambda d, a, b, idx: f'v_smfmac_f32_16x16x64_bf16 {vr(d, 4)}, {vr(a, 4)}, {vr(b, 8)}, v{idx}'
    S0, S1, S2A, S2B = MF, MF + 4, MF + 8, MF + 12
    E0, E1 = ACC, ACC + 4
    A = ACC
    add = lambda d, a: f'v_add_f32 v{d}, v{a}, v{a + 1}'
    seq = [
        (S(6, 4), z2(MF + 12)), (S(6, 5), z2(MF + 14)), (S(6, 6), ''),
        (S(4, 4), ''), (S(4, 5), pk(A + 24, A + 24)), (S(4, 6), pk(A + 25, A + 26)),
        (S(5, 4), ''),
        (f'v_mfma_f32_16x16x16_bf16 {vr(A + 24, 4)}, {vr(A + 24, 2)}, {vr(SEL, 2)}, 0', pk(A + 16, A + 16) + '\n' + pk(A + 17, A + 18)),
        (S(5, 5), ''), (S(5, 6), ''),
        (S(0, 4), ''), (S(0, 5), pk(A + 18, A + 20)), (S(0, 6), pk(A + 19, A + 22)),
        (S(1, 4), ''),
        (T(A + 20, A + 16), pk(A + 18, A + 24) + '\n' + pk(A + 19, A + 26)),
        (S(1, 5), pk(A + 0, A + 0)), (S(1, 6), pk(A + 16, A + 20)),
        (S(2, 4), pk(A + 17, A + 22)), (S(2, 5), pk(A + 1, A + 2)), (S(2, 6), pk(A + 2, A + 4)),
        (S(3, 4), pk(A + 3, A + 6)), (S(3, 5), pk(A + 8, A + 8)), (S(3, 6), pk(A + 9, A + 10)),
        (T(A + 4, A + 0), 's_waitcnt vmcnt(0)'),
        (C(S2B, A + 16, MK, IDX1), pk(A + 10, A + 12) + '\n' + pk(A + 11, A + 14)),
        (C(S0, A + 16, XK + 8, IDX1), pk(A + 0, A + 4)),
        (T(A + 12, A + 8), pk(A + 1, A + 6) + '\n' + add(S2B, S2B)),
        (C(S1, A + 16, XK + 24, IDX1), add(S2B + 2, S2B + 2)),
    ]
    for m, f in seq:
        e(m); e(f)
    e(f's_mov_b32 vcc_lo, 0xff00ff00\ns_mov_b32 vcc_hi, 0xff00ff00')
    e(pk(A + 2, A + 12)); e(pk(A + 3, A + 14))
    e(C(S2A, A, MK, IDX0))
    e(C(S0, A, XK, IDX0))
    e(C(S1, A, XK + 16, IDX0))
    e(add(S2A, S2A)); e(add(S2A + 2, S2A + 2))
    e(f'v_cndmask_b32 v{E0 + 2}, v{S2A}, v{S2B}, vcc\nv_cndmask_b32 v{E1 + 2}, v{S2A + 2}, v{S2B + 2}, vcc')
    e(add(E0, S0)); e(add(E1, S0 + 2))
    e(f'v_cmp_u_f32 vcc, v{E0 + 2}, v{E1 + 2}')
    e(add(E0 + 1, S1))
    e(f'ds_write_b96 v{LW}, {vr(E0, 3)} offset:8192')
    e(add(E1 + 1, S1 + 2))
    e(f'ds_write_b96 v{LW}, {vr(E1, 3)} offset:9216')
    e('s_cbranch_vccnz A_bad')
    e('A_ok:')
    stamp(e, 4)
    def sigstore():
        e(f'v_mov_b32 v{ACC + 27}, {sTag}\ns_mov_b64 exec, 0x3fff')
        e(f'buffer_store_dword v{ACC + 27}, v{SGS}, {WSR}, {sSigS} offen\ns_mov_b64 exec, -1')
    sp = cfg.get('sigA', 1)
    if sp == 0:
        e(f's_cmp_lg_u32 {S_W}, 2\ns_cbranch_scc1 A_ns0'); sigstore(); e('A_ns0:')
    e('s_waitcnt lgkmcnt(0)\ns_barrier')
    e(f's_cmp_ge_u32 {S_W}, 2\ns_cbranch_scc1 A_other')
    R = ACC
    for w in range(4): e(f'ds_read_b96 {vr(R + 4 * w, 3)}, v{RD} offset:{w * 16384 + 8192 + 4096}')
    e('s_waitcnt lgkmcnt(0)')
    stamp(e, 5)
    for k in (2, 0, 1):
        e(f'v_add_f32 v{R + k}, v{R + k}, v{R + 4 + k}\nv_add_f32 v{R + 8 + k}, v{R + 8 + k}, v{R + 12 + k}')
    for k in (2, 0, 1): e(f'v_add_f32 v{R + k}, v{R + k}, v{R + 8 + k}')
    e(f'v_add_f32_dpp v{R + 2}, v{R + 2}, v{R + 2} row_ror:8 {DPPM}')
    MX = R + 4
    e(f'v_max3_f32 v{MX}, v{R}, v{R + 1}, v{R + 2}')
    for n in (1, 2, 4, 8): e(f'v_max_f32_dpp v{MX}, v{MX}, v{MX} row_ror:{n} {DPPM}')
    for k in (2, 0, 1): e(f'v_sub_f32 v{R + k}, v{R + k}, v{MX}')
    for k in (2, 0, 1): e(f'v_exp_f32 v{R + k}, v{R + k}')
    e(f'v_fma_f32 v{MX}, v{R + 2}, 0.5, v{R}\nv_add_f32 v{MX}, v{MX}, v{R + 1}')
    e(f'v_mov_b32_dpp v{R + 3}, v{R + 2} quad_perm:[1,0,3,2] {DPPM}')
    for n in (1, 2, 4, 8): e(f'v_add_f32_dpp v{MX}, v{MX}, v{MX} row_ror:{n} {DPPM}')
    e(f'v_rcp_f32 v{MX}, v{MX}')
    e(f'v_mul_f32 v{R}, v{R}, v{MX}\nv_mul_f32 v{R + 1}, v{R + 1}, v{MX}')
    e(f'v_cvt_pk_bf16_f32 v{R}, |v{R}|, |v{R + 1}|')
    e(f'buffer_store_dword v{R}, v{PX}, {WSR}, {sP} offen')
    e(f'v_mul_f32 v{R + 2}, v{R + 2}, v{MX}\nv_mul_f32 v{R + 3}, v{R + 3}, v{MX}')
    e(f'v_cvt_pk_bf16_f32 v{R + 2}, |v{R + 2}|, |v{R + 3}|')
    e(f'buffer_store_dword v{R + 2}, v{PM}, {WSR}, {sP} offen')
    stamp(e, 6)
    e('s_barrier')
    xload()
    e('s_branch A_next')
    e('A_other:')
    xm = cfg.get('xm', 0)
    if xm == 0: xload()
    e(f's_cmp_lg_u32 {S_W}, 2\ns_cbranch_scc1 A_o2')
    for i in range(sp - 1): e('s_nop 7')
    sigstore()
    e('A_o2:')
    e('s_barrier')
    if xm == 1: xload()
    e('A_next:')
    e(f's_add_u32 {sMS}, {sMS}, {MA_STEP}\ns_add_u32 {sMN}, {sMN}, {MA_STEP}\ns_add_u32 {sP}, {sP}, {PR_STEP}\ns_add_u32 {sTag}, {sTag}, 1')
    e(f's_cmp_le_u32 {sTag}, {nsteps}\ns_cbranch_scc1 A_loop')
    e('s_branch DONE')
    e('A_xbad:')
    xload()
    e('s_sub_u32 s99, s99, 1\ns_cbranch_scc1 FAIL\ns_branch A_xchk')
    e('A_bad:')
    e(f's_cmp_eq_u32 {sVer}, {sTag}\ns_cbranch_scc1 A_ok')
    e('s_add_u32 s98, s98, 1')
    e(f's_add_u32 {sT}, {sMS}, 4096')
    e('A_bad1:')
    for kb in range(7): e(ldm(kb))
    e(f'buffer_load_dwordx4 {vr(MK, 4)}, v{MKA}, {WSR}, {sMN} offen sc1')
    e(f'buffer_load_dwordx4 {vr(MK + 4, 4)}, v{MKB}, {WSR}, {sMN} offen sc1')
    e('s_sub_u32 s99, s99, 1\ns_cbranch_scc1 FAIL')
    e('s_waitcnt vmcnt(0)')
    for x in chk(list(range(MF, MF + 28)) + list(range(MK, MK + 8)), CHK, True): e(x)
    e(f'v_cmp_eq_u32 vcc, -1, v{CHK}\ns_cbranch_vccnz A_bad1')
    e(f's_mov_b32 {sVer}, {sTag}')
    for i in range(0, 28, 2): e(z2(ACC + i))
    e('s_branch A_retry')

def rec_b(e, cfg):
    stamp = cfg.get('stamp', lambda e, i: None)
    nsteps = cfg.get('nsteps', 63)
    VB = 120
    (L16, L8, IDX0, LW, RD, OS, ON, SGP, SGS, CHK, LANE, LWT) = range(1, 13)
    PL = [13, 14, 15, 0]
    MF = 16; VX = 44; ACC = 76; VM = 84; WT = 92
    PP = MF
    tmp = list(range(44, 54))
    sV, sMS, sMN, sP, sTag, sSigP, sSigS, sT, sT2 = 's12', 's13', 's14', 's15', 's16', 's17', 's18', 's19', 's20'
    LM = 57344; LX = 65536
    g = lambda l: l >> 4
    c = lambda l: l & 15
    e(f'v_and_b32 v{LANE}, 63, v0\nv_lshlrev_b32 v{L16}, 4, v{LANE}')
    e(f's_lshl_b32 {sT}, {S_ID}, 2\ns_add_u32 {sT}, {sT}, {S_W}\ns_mul_i32 {sT}, {sT}, {112 * 1024}\ns_add_u32 {sT}, {sT}, {WS_WB}')
    load_weights(e, 98, L16, sT, VB)
    e(f's_add_u32 {sT}, {sT}, 2048\ns_mul_i32 {sT2}, {S_W}, 14336')
    for i in range(14):
        e(f's_add_u32 m0, {sT2}, {i * 1024}\nbuffer_load_dwordx4 v{L16}, {WSR}, {sT} offen lds\ns_add_u32 {sT}, {sT}, 1024')
    e(f'v_add_u32 v{LWT}, {sT2}, v{L16}')
    e(f'v_lshlrev_b32 v{L8}, 3, v{LANE}')
    lanefn(e, IDX0, lambda l: 0xeeeeeeee if l & 1 else 0x44444444, LANE, tmp)
    e(f's_lshl_b32 {sT}, {S_W}, 10\ns_add_u32 {sT}, {sT}, {LX}\nv_add_u32 v{LW}, {sT}, v{L16}')
    e(f's_and_b32 {sT}, {S_W}, 1\ns_lshl_b32 {sT2}, {sT}, 3\ns_add_u32 {sT2}, {sT2}, {LX}\nv_add_u32 v{RD}, {sT2}, v{L16}')
    lanefn(e, OS, lambda l: ((c(l) >> 3) * 16 + 4 * g(l) + (c(l) & 1)) * 16 + ((c(l) >> 1) & 3) * 4, LANE, tmp)
    lanefn(e, ON, lambda l: (c(l) >> 2) * 128 + 2 * g(l) * 16 + 4 * (c(l) & 3), LANE, tmp)
    e(f's_lshl_b32 {sT2}, {sT}, 5\nv_add_u32 v{OS}, {sT2}, v{OS}\ns_lshl_b32 {sT2}, {S_ID}, 9\nv_add_u32 v{OS}, {sT2}, v{OS}')
    e(f's_lshl_b32 {sT2}, {sT}, 4\nv_add_u32 v{ON}, {sT2}, v{ON}\ns_lshl_b32 {sT2}, {S_ID}, 9\nv_add_u32 v{ON}, {sT2}, v{ON}')
    e(f'v_lshlrev_b32 v{SGP}, 2, v{LANE}\ns_lshl_b32 {sT}, {S_ID}, 8\ns_lshl_b32 {sT2}, {S_W}, 4\ns_add_u32 {sT}, {sT}, {sT2}\nv_add_u32 v{SGP}, {sT}, v{SGP}')
    e(f'v_lshlrev_b32 v{SGS}, 8, v{LANE}\ns_lshl_b32 {sT}, {S_ID}, 2\nv_add_u32 v{SGS}, {sT}, v{SGS}')
    e(f's_mul_i32 {sT}, {S_LAY}, {MA_LAYER}\ns_add_u32 {sMS}, {sT}, {WS_MA}\ns_add_u32 {sMN}, {sMS}, 7168')
    e(f's_mul_i32 {sT}, {S_LAY}, {64 * PR_STEP}\ns_add_u32 {sP}, {sT}, {WS_PR}')
    e(f's_mul_i32 {sT}, {S_W}, 2560\ns_add_u32 {sP}, {sP}, {sT}')
    e(f's_lshl_b32 {sT}, {S_LAY}, 13\ns_add_u32 {sSigS}, {sT}, {WS_SIG}\ns_add_u32 {sSigP}, {sSigS}, 4096')
    e(f's_mul_i32 {sV}, {S_LAY}, {VX_LAYER}\ns_add_u32 {sV}, {sV}, {WS_VX}')
    e(f's_lshl_b32 {sT}, {S_ID}, 2\ns_add_u32 {sT}, {sT}, {S_W}\ns_lshl_b32 {sT}, {sT}, 13\ns_add_u32 {sV}, {sV}, {sT}')
    e(f's_mov_b32 {sTag}, 1')
    e('s_waitcnt vmcnt(0)')
    sMW = 's21'; LMW = 108; SGM = 109
    e(f'v_lshlrev_b32 v{SGM}, 2, v{LANE}\ns_lshl_b32 {sT}, {S_ID}, 8\nv_add_u32 v{SGM}, {sT}, v{SGM}')
    e(f's_lshl_b32 {sT}, {S_W}, 11\nv_add_u32 v{LMW}, {sT}, v{L16}')
    e('B_loop:')
    stamp(e, 0)
    e(f's_add_u32 {sT2}, {sV}, 4096')
    vl = [f'buffer_load_dwordx4 {vr(VX + 4 * f, 4)}, v{L16}, {WSR}, {sV if f < 4 else sT2} offen offset:{(f % 4) * 1024} sc1' for f in range(8)]
    e(f's_cmp_lg_u32 {S_W}, 3\ns_cbranch_scc1 B_w012')
    sig_poll(e, SGM, sSigS, sTag, PL[:cfg.get('pdm', 3)], 0x7fff, 'FAIL')
    for i in range(cfg.get('dBM', 0)): e('s_nop 7')
    e(f's_add_u32 {sT}, {sMS}, 4096')
    ldm = lambda kb: f'buffer_load_dwordx4 {vr(MF + 4 * kb, 4)}, v{L16}, {WSR}, {sMS if kb < 4 else sT} offen offset:{(kb % 4) * 1024} sc1'
    for kb in range(7): e(ldm(kb))
    e('s_barrier')
    e('B_mp:')
    ck = chk(range(MF, MF + 28), CHK, True)
    for kb in range(7):
        e(f's_waitcnt vmcnt({6 - kb})')
        e(f'ds_write_b128 v{L16}, {vr(MF + 4 * kb, 4)} offset:{LM + kb * 1024}')
        if kb: e(ck.pop(0))
        e(ck.pop(0))
    for x in ck: e(x)
    e(f'v_cmp_eq_u32 vcc, -1, v{CHK}\ns_cbranch_vccnz B_mbad')
    e('s_waitcnt lgkmcnt(0)\ns_barrier')
    for x in vl: e(x)
    e('s_branch B_m1')
    e('B_mbad:')
    e('s_add_u32 s98, s98, 0x10000\ns_waitcnt lgkmcnt(0)')
    for kb in range(7): e(ldm(kb))
    e('s_sub_u32 s99, s99, 1\ns_cbranch_scc1 FAIL\ns_branch B_mp')
    e('B_w012:')
    e('s_barrier')
    def fwd():
        e(f's_add_u32 {sT}, {sMS}, 14336')
        e(f'buffer_store_dword v{WT + 4}, v{OS}, {WSR}, {sT} offen sc1')
        e(f's_add_u32 {sT}, {sMN}, 14336')
        e(f'buffer_store_dword v{WT + 4}, v{ON}, {WSR}, {sT} offen sc1')
    e(f's_cmp_eq_u32 {S_W}, 2\ns_cbranch_scc1 B_nofwd\ns_cmp_eq_u32 {sTag}, 1\ns_cbranch_scc1 B_nofwd')
    fwd()
    e('B_nofwd:')
    for x in vl: e(x)
    e('s_barrier')
    e('B_m1:')
    stamp(e, 1)
    for kb in range(7): e(f'ds_read_b128 {vr(MF + 4 * kb, 4)}, v{L16} offset:{LM + kb * 1024}')
    AC7 = 110
    z2 = lambda r: f'v_mov_b64 {vr(r, 2)}, 0'
    acc = lambda t: AC7 if t == 7 else ACC + 4 * (t & 1)
    W = lambda t, kb: wreg((t * 7 + kb) * 8, 8, VB) if t < 7 else vr(WT + 8 * (kb & 1), 8)
    S = lambda t, kb: f'v_smfmac_f32_16x16x64_bf16 {vr(acc(t), 4)}, {vr(MF + 4 * kb, 4)}, {W(t, kb)}, v{IDX0}'
    wrd = lambda kb: [f'ds_read_b128 {vr(WT + 8 * (kb & 1) + 4 * i, 4)}, v{LWT} offset:{(2 * kb + i) * 1024}' for i in range(2)]
    for x in wrd(0): e(x)
    for r in (ACC, ACC + 2, ACC + 4, ACC + 6, AC7, AC7 + 2): e(z2(r))
    def post(t):
        a = acc(t); hh, ct = t >> 1, t & 1
        return [f'v_add_f32 v{a}, v{a}, v{a + 1}', f'v_add_f32 v{a + 2}, v{a + 2}, v{a + 3}',
                f'v_cvt_pk_bf16_f32 v{VM + 4 * ct + hh}, v{a}, v{a + 2}'] + ([z2(a), z2(a + 2)] if t < 7 else [])
    for t in range(7):
        fill = (post(t - 1) if t else [''] * 5) + (wrd(t + 1) if t < 6 else [])
        for kb in range(7):
            if t == 0: e(f's_waitcnt lgkmcnt({8 - kb if kb < 6 else 3})')
            e(S(t, kb))
            if fill: e(fill.pop(0))
        e(f's_waitcnt lgkmcnt({2 if t < 6 else 0})')
        e(S(7, t))
    for x in post(6) + post(7): e(x)
    stamp(e, 2)
    e('s_waitcnt vmcnt(0)')
    stamp(e, 3)
    if cfg.get('sig', True): sig_poll(e, SGP, sSigP, sTag, PL[:cfg.get('pd', 3)], 0xf, 'FAIL')
    for i in range(cfg.get('dB', 0)): e('s_nop 7')
    def sigstore():
        l = e.lab('bs')
        e(f's_cmp_lg_u32 {S_W}, 3\ns_cbranch_scc1 {l}')
        e(f's_add_u32 {sT}, {sTag}, 1\nv_mov_b32 v{WT}, {sT}\ns_mov_b64 exec, 0xffff')
        e(f'buffer_store_dword v{WT}, v{SGS}, {WSR}, {sSigS} offen\ns_mov_b64 exec, -1')
        e(f'{l}:')
    sp = cfg.get('sigB', 1)
    e('B_retry:')
    stamp(e, 4)
    e(f'buffer_load_dwordx4 {vr(PP, 4)}, v{L16}, {WSR}, {sP} offen sc1')
    e(f'buffer_load_dwordx4 {vr(PP + 4, 4)}, v{L16}, {WSR}, {sP} offen offset:1024 sc1')
    e(f'buffer_load_dwordx2 {vr(PP + 8, 2)}, v{L8}, {WSR}, {sP} offen offset:2048 sc1')
    O = lambda pp, ct: f'v_smfmac_f32_16x16x64_bf16 {vr(ACC + 4 * ct, 4)}, {vr(PP + 4 * pp, 4)}, {vr(VX + 16 * pp + 8 * ct, 8)}, v{IDX0}'
    e('s_waitcnt vmcnt(2)')
    e(O(0, 0)); e(O(0, 1))
    e('s_waitcnt vmcnt(1)')
    e(O(1, 0)); e(O(1, 1))
    e('s_waitcnt vmcnt(0)')
    stamp(e, 5)
    e(f'v_smfmac_f32_16x16x32_bf16 {vr(ACC, 4)}, {vr(PP + 8, 2)}, {vr(VM, 4)}, v{IDX0}')
    e(f'v_smfmac_f32_16x16x32_bf16 {vr(ACC + 4, 4)}, {vr(PP + 8, 2)}, {vr(VM + 4, 4)}, v{IDX0}')
    if sp == 1: sigstore()
    E = WT + 4
    e(f'v_add_f32 v{E}, v{ACC}, v{ACC + 1}\nv_add_f32 v{E + 2}, v{ACC + 2}, v{ACC + 3}')
    e(f'v_cmp_u_f32 vcc, v{E}, v{E + 2}')
    e(f'v_add_f32 v{E + 1}, v{ACC + 4}, v{ACC + 5}\nv_add_f32 v{E + 3}, v{ACC + 6}, v{ACC + 7}')
    e(f'ds_write_b128 v{LW}, {vr(E, 4)}')
    e('s_cbranch_vccnz B_bad')
    e('B_ok:')
    e(f's_add_u32 {sMS}, {sMS}, {MA_STEP}\ns_add_u32 {sMN}, {sMN}, {MA_STEP}')
    if sp == 2: sigstore()
    e('s_waitcnt lgkmcnt(0)\ns_barrier')
    if sp == 3: sigstore()
    e(f's_cmp_ge_u32 {S_W}, 2\ns_cbranch_scc1 B_next')
    for w in range(4): e(f'ds_read_b64 {vr(ACC + 2 * w, 2)}, v{RD} offset:{w * 1024}')
    e('s_waitcnt lgkmcnt(0)')
    e(f'v_add_f32 v{ACC}, v{ACC}, v{ACC + 2}\nv_add_f32 v{ACC + 1}, v{ACC + 1}, v{ACC + 3}')
    e(f'v_add_f32 v{ACC + 4}, v{ACC + 4}, v{ACC + 6}\nv_add_f32 v{ACC + 5}, v{ACC + 5}, v{ACC + 7}')
    e(f'v_add_f32 v{ACC}, v{ACC}, v{ACC + 4}\nv_add_f32 v{ACC + 1}, v{ACC + 1}, v{ACC + 5}')
    e(f'v_cvt_pk_bf16_f32 v{E}, v{ACC}, v{ACC + 1}\nv_min_u32 v{E}, -2, v{E}')
    e(f'buffer_store_dword v{E}, v{OS}, {WSR}, {sMS} offen')
    e(f'buffer_store_dword v{E}, v{ON}, {WSR}, {sMN} offen')
    stamp(e, 6)
    e('B_next:')
    e(f's_add_u32 {sP}, {sP}, {PR_STEP}\ns_add_u32 {sV}, {sV}, {VX_SEG}\ns_add_u32 {sTag}, {sTag}, 1')
    e(f's_cmp_le_u32 {sTag}, {nsteps}\ns_cbranch_scc1 B_loop')
    e(f's_cmp_ge_u32 {S_W}, 2\ns_cbranch_scc1 DONE')
    fwd()
    e('s_branch DONE')
    e('B_bad:')
    for x in chk(range(PP, PP + 10), CHK, True): e(x)
    e(f'v_cmp_eq_u32 vcc, -1, v{CHK}\ns_cbranch_vccz B_ok')
    e('s_add_u32 s98, s98, 1')
    for i in range(0, 8, 2): e(z2(ACC + i))
    e('s_sub_u32 s99, s99, 1\ns_cbranch_scc1 FAIL\ns_branch B_retry')

def rec_h(e, cfg):
    nsteps = cfg.get('nsteps', 63)
    LANE, L128, L4, VT, SGS = 1, 2, 3, 4, 5
    sF, sSig, sTag, sT, sV, sD, sDs = 's12', 's13', 's16', 's19', 's20', 's21', 's22'
    nv = cfg.get('hv', 0)
    e(f'v_and_b32 v{LANE}, 63, v0\nv_lshlrev_b32 v{L128}, 7, v{LANE}')
    e(f'v_min_u32 v{L4}, 55, v{LANE}\nv_lshlrev_b32 v{L4}, 2, v{L4}')
    e(f'v_lshlrev_b32 v{SGS}, 8, v{LANE}')
    e(f's_lshl_b32 {sF}, {S_LAY}, 14\ns_add_u32 {sF}, {sF}, {WS_VF}')
    e(f's_lshl_b32 {sSig}, {S_LAY}, 13\ns_add_u32 {sSig}, {sSig}, {WS_SIG + 56}')
    e(f's_mov_b32 {sTag}, 1')
    lanefn(e, VT, lambda l: min(l >> 3, 6) * 8192 + (l & 7) * 128, LANE, [10, 11, 12, 13, 14, 15])
    e(f's_lshl_b32 {sT}, {S_ID}, 2\ns_add_u32 {sT}, {sT}, {S_W}\ns_mul_i32 {sT}, {sT}, {7 * 8192}')
    e(f's_mul_i32 {sV}, {S_LAY}, {VX_LAYER}\ns_add_u32 {sV}, {sV}, {WS_VX}\ns_add_u32 {sV}, {sV}, {sT}')
    e(f's_lshl_b32 {sT}, {S_W}, 13\ns_mul_i32 {sD}, {S_LAY}, {X_LAYER}\ns_add_u32 {sD}, {sD}, {WS_XN0 + TILE}\ns_add_u32 {sD}, {sD}, {sT}\ns_mov_b32 {sDs}, {TILE}')
    e(f's_cmp_eq_u32 {S_ID}, 1\ns_cbranch_scc1 H_loop')
    e(f's_mul_i32 {sD}, {S_LAY}, {64 * PR_STEP}\ns_add_u32 {sD}, {sD}, {WS_PR}\ns_add_u32 {sD}, {sD}, {sT}\ns_mov_b32 {sDs}, {PR_STEP}')
    e(f's_cmp_lt_u32 {S_W}, 2\ns_cbranch_scc1 H_loop')
    e(f's_mul_i32 {sD}, {S_LAY}, {MA_LAYER}\ns_add_u32 {sD}, {sD}, {WS_MA + MA_STEP - 16384}\ns_add_u32 {sD}, {sD}, {sT}\ns_mov_b32 {sDs}, {MA_STEP}')
    e('H_loop:')
    e(f'buffer_load_dword v11, v{L4}, {WSR}, {sF} offen sc1')
    e('s_sub_u32 s99, s99, 1\ns_cbranch_scc1 FAIL')
    e('s_waitcnt vmcnt(0)')
    e('v_cmp_eq_u32 vcc, 0, v11\ns_cbranch_vccnz H_loop')
    e(f's_lshl_b32 {sT}, {S_ID}, 2\ns_add_u32 {sT}, {sT}, {S_W}\ns_cmp_lg_u32 {sT}, 0\ns_cbranch_scc1 H_ns')
    e(f'v_mov_b32 v12, {sTag}\ns_mov_b64 exec, 0xffff\nbuffer_store_dword v12, v{SGS}, {WSR}, {sSig} offen\ns_mov_b64 exec, -1')
    e('H_ns:')
    e(f'buffer_load_dword v10, v{L128}, {WSR}, {sD} offen sc1')
    for i in range(nv):
        e(f's_add_u32 {sT}, {sV}, {(7 - i) * 1024}\nbuffer_load_dword v10, v{VT}, {WSR}, {sT} offen sc1')
    e(f's_add_u32 {sF}, {sF}, 256\ns_add_u32 {sD}, {sD}, {sDs}\ns_add_u32 {sV}, {sV}, {VX_SEG}\ns_add_u32 {sTag}, {sTag}, 1')
    e(f's_cmp_le_u32 {sTag}, {nsteps}\ns_cbranch_scc1 H_loop')
    e('s_branch DONE')
```

```python
import sys
sys.path.insert(0, 'gen')
from asmlib import *
from layout import *
import k0 as K0
NAME = 'interleave_layers__memory_aug_recurrent_mem_tr__mixer_channel_mlp__prompt'

def build(path, cfg):
    ref = open('cdna_kernels/%s.s.ref' % NAME).read().split('\n')
    head = [l for l in ref if l.startswith(';') and '@launch' not in l and 'Override launch' not in l and 'grid=ceil' not in l]
    kernels = []
    e = Asm(); K0.k0(e, cfg); kernels.append(('prep_kernel', e, 114688, 368))
    if not cfg.get('only_k0'):
        import k1 as K1
        e = Asm(); e.uid = 100000; K1.k1(e, cfg); kernels.append((NAME + '_kernel', e, 163840, 512))
    for k in range(cfg.get('dummy', 0)):
        e = Asm(); e('s_endpgm'); kernels.insert(cfg.get('dpos', 0), ('dummy%d_kernel' % k, e, 0, 368))
    out = '\n'.join(head) + '\n'
    for n, e, lds, vg in kernels:
        out += f'; @launch kernel={n} grid=(256,1,1) block=(256,1,1) lds={lds}\n'
    out += '.amdgcn_target "amdgcn-amd-amdhsa--gfx950"\n.text\n'
    for n, e, lds, vg in kernels:
        out += f'.globl {n}\n.p2align 8\n.type {n},@function\n{n}:\n' + e.text(cfg.get('verbose', False))
    out += '.section .rodata,"a"\n'
    for n, e, lds, vg in kernels:
        out += '.p2align 6\n' + kd(n, vg, 256, 102, 120)
    open(path, 'w').write(out)

if __name__ == '__main__':
    cfg = eval(sys.argv[2]) if len(sys.argv) > 2 else {}
    build(sys.argv[1], cfg)
```

```python
import re

REG_RE = re.compile(r'(?<![\w.])([vas])(?:(\d+)|\[(\d+):(\d+)\])(?![\w])')
TRANS = ('v_exp_', 'v_log_', 'v_rcp_', 'v_rsq_', 'v_sqrt_', 'v_sin_', 'v_cos_')

def regs_of(tok):
    out = set()
    for m in REG_RE.finditer(tok):
        k = m.group(1)
        if m.group(2) is not None:
            out.add((k, int(m.group(2))))
        else:
            for i in range(int(m.group(3)), int(m.group(4)) + 1):
                out.add((k, i))
    if re.search(r'\bvcc\b', tok): out |= {('s', 106), ('s', 107)}
    if re.search(r'\bvcc_lo\b', tok): out.add(('s', 106))
    if re.search(r'\bvcc_hi\b', tok): out.add(('s', 107))
    if re.search(r'\bm0\b', tok): out.add(('s', 124))
    return out

def split_ops(s):
    ops, depth, cur = [], 0, ''
    for ch in s:
        if ch == '[' or ch == '(': depth += 1
        if ch == ']' or ch == ')': depth -= 1
        if ch == ',' and depth == 0:
            ops.append(cur.strip()); cur = ''
        else:
            cur += ch
    if cur.strip(): ops.append(cur.strip())
    return ops

class Ins:
    def __init__(self, text):
        self.text = text
        t = text.split(';')[0].strip()
        self.label = None
        self.op = None
        self.d = set(); self.r = set()
        self.kind = 'other'
        if not t or t.startswith('.'):
            self.kind = 'dir'; return
        if t.endswith(':'):
            self.label = t[:-1]; self.kind = 'label'; return
        p = t.split(None, 1)
        op = self.op = p[0]
        ops = split_ops(p[1]) if len(p) > 1 else []
        self.ops = ops
        R = [regs_of(o) for o in ops]
        allr = lambda L: set().union(*L) if L else set()
        self.ws = 1
        if op == 's_nop':
            self.ws = int(ops[0], 0) + 1; self.kind = 'nop'
        elif op.startswith('v_mfma') or op.startswith('v_smfmac'):
            self.kind = 'mfma'
            self.passes = 8 if '32x32' in op else 4
            self.d = R[0]; self.ab = R[1] | R[2]
            if op.startswith('v_smfmac'):
                self.c = R[0]; self.ab |= R[3]
            else:
                self.c = R[3]
            self.r = self.ab | self.c
        elif op.startswith('v_'):
            self.kind = 'valu'
            self.trans = op.startswith(TRANS)
            self.dpp = ('_dpp' in op) or any(k in t for k in (' quad_perm', ' row_', ' wave_'))
            self.sdwa = ('_sdwa' in op) or ('op_sel' in t and not op.startswith('v_pk_'))
            if op.startswith('v_permlane') and 'swap' in op:
                self.d = R[0] | R[1]; self.r = R[0] | R[1]
            elif op.startswith(('v_add_co', 'v_sub_co', 'v_addc_co', 'v_subb_co', 'v_subrev_co', 'v_div_scale', 'v_mad_u64')):
                self.d = R[0] | R[1]; self.r = allr(R[2:])
            else:
                self.d = R[0]; self.r = allr(R[1:])
                if op.startswith(('v_fmac', 'v_pk_fmac', 'v_dot2c', 'v_writelane')) or self.dpp or self.sdwa:
                    self.r |= R[0]
                if op.startswith('v_cndmask') and len(ops) == 3:
                    self.r |= {('s', 106), ('s', 107)}
        elif op.startswith(('buffer_', 'global_', 'flat_')):
            self.kind = 'vmem'
            lds = bool(re.search(r'\blds\b', t)) or '_lds_' in op
            self.lds = lds
            self.wide = set()
            if 'load' in op and not lds:
                self.d = R[0]; self.r = allr(R[1:])
            elif 'atomic' in op:
                self.r = allr(R)
                if ' sc0' in t: self.d = R[0]
            else:
                self.r = allr(R)
                if 'store' in op and ('x3' in op or 'x4' in op):
                    self.wide = R[0] if op.startswith('buffer_') else R[1]
            if lds: self.r.add(('s', 124))
        elif op.startswith('ds_'):
            self.kind = 'ds'
            if op.startswith(('ds_read', 'ds_bpermute', 'ds_permute', 'ds_swizzle')) or '_rtn' in op:
                self.d = R[0]; self.r = allr(R[1:])
            else:
                self.r = allr(R)
        elif op.startswith('s_'):
            self.kind = 'salu'
            if op.startswith(('s_cbranch', 's_branch')):
                self.kind = 'branch'; self.target = ops[0]
            elif op == 's_endpgm':
                self.kind = 'end'
            elif op.startswith(('s_cmp', 's_bitcmp', 's_waitcnt', 's_barrier', 's_sleep', 's_setprio')):
                self.r = allr(R)
            else:
                self.d = R[0] if R else set(); self.r = allr(R[1:])
        else:
            raise ValueError('unknown instruction: ' + text)

def vonly(s): return {x for x in s if x[0] != 's'}
def sonly(s): return {x for x in s if x[0] == 's'}

def need(p, c):
    n = 0
    if p.kind == 'valu':
        pv, ps = vonly(p.d), sonly(p.d)
        if c.kind == 'mfma' and pv & c.r: n = max(n, 2)
        if c.kind == 'valu':
            if pv & c.r:
                if c.dpp or c.op.startswith('v_permlane'): n = max(n, 2)
                if c.op.startswith(('v_readlane', 'v_readfirstlane')): n = max(n, 1)
                if p.trans: n = max(n, 1)
            if p.sdwa and pv & (c.r | c.d): n = max(n, 1)
            if ps & c.r:
                n = max(n, 4 if c.op.startswith(('v_readlane', 'v_writelane', 'v_div_fmas')) else 2)
        if c.kind == 'vmem' and ps & c.r: n = max(n, 5)
        if p.op.startswith('v_cmpx'):
            if c.kind == 'mfma': n = max(n, 4)
            if c.kind == 'valu':
                if c.dpp: n = max(n, 5)
                if c.op.startswith(('v_permlane', 'v_readlane', 'v_readfirstlane', 'v_writelane')): n = max(n, 4)
    if p.kind == 'mfma':
        P = p.passes
        if c.kind == 'mfma':
            if p.d & c.ab: n = max(n, P + 4)
            if p.d & c.c:
                if not (p.d == c.c and p.op == c.op): n = max(n, P + 2)
            elif p.d & c.d: n = max(n, P + 2)
        if c.kind == 'valu':
            if p.d & (c.r | c.d): n = max(n, P + 4)
            if p.c & c.d: n = max(n, P - 1)
        if c.kind in ('vmem', 'ds') and p.d & (c.r | c.d): n = max(n, P + 4)
    if p.kind == 'vmem' and p.wide:
        if c.kind == 'valu' and p.wide & c.d: n = max(n, 2)
        elif c.kind in ('vmem', 'ds', 'mfma') and p.wide & c.d: n = max(n, 1)
    if p.kind == 'salu' and ('s', 124) in p.d:
        if (c.kind == 'vmem' and c.lds) or (c.kind == 'ds' and 'addtid' in c.op): n = max(n, 1)
    return n

MAXD = 13

def fix_hazards(lines, verbose=False):
    ins = [Ins(l) for l in lines]
    def build():
        src = {}
        for i, x in enumerate(ins):
            if x.kind == 'branch': src.setdefault(x.target, []).append(i)
        return src
    src = build()
    added = 0
    i = 0
    while i < len(ins):
        c = ins[i]
        if c.kind in ('valu', 'mfma', 'vmem', 'ds'):
            worst = 0
            stack = [(i - 1, (), True)]
            nvis = 0
            while stack:
                j, path, fall = stack.pop()
                dist = sum(x.ws for x in path)
                while j >= 0 and dist < MAXD:
                    nvis += 1
                    assert nvis < 100000
                    p = ins[j]
                    if p.kind == 'label':
                        for b in src.get(p.label, []): stack.append((b, path, False))
                        j -= 1; fall = True; continue
                    if p.kind == 'dir':
                        j -= 1; continue
                    if fall and (p.kind == 'end' or (p.kind == 'branch' and p.op == 's_branch')):
                        break
                    fall = True
                    k = need(p, c)
                    if k > dist:
                        t = 1; free = p.passes if p.kind == 'mfma' else 0
                        for x in reversed(path):
                            if x.kind == 'mfma':
                                t = max(t, free); free = t + x.passes
                            t += x.ws
                        if k - (t - 1) > worst: worst = k - (t - 1)
                    path = path + (p,)
                    dist += p.ws
                    j -= 1
            if worst > 0:
                if verbose: print('nop', worst, 'before', c.text)
                ins.insert(i, Ins('s_nop %d' % (worst - 1)))
                added += worst
                src = build()
                i += 1
        i += 1
    return [x.text for x in ins], added

class Asm:
    def __init__(self):
        self.L = []
        self.uid = 0
    def __call__(self, s):
        for l in s.split('\n'):
            l = l.strip()
            if l and l != ';': self.L.append(l)
    def lab(self, base='L'):
        self.uid += 1
        return '%s_%d' % (base, self.uid)
    def text(self, verbose=False):
        out, added = fix_hazards(self.L, verbose)
        return '\n'.join(('' if (l.endswith(':') or l.startswith(('.', ';'))) else '  ') + l for l in out) + '\n'

def vr(base, n=1, k='v'):
    return '%s%d' % (k, base) if n == 1 else '%s[%d:%d]' % (k, base, base + n - 1)

def wreg(i, n, vbase):
    if i + n <= 256: return vr(i, n, 'a')
    assert i >= 256
    return vr(vbase + i - 256, n, 'v')

def kd(name, vgpr=512, accum=256, sgpr=102, karg=120):
    return f'''.amdhsa_kernel {name}
  .amdhsa_next_free_vgpr {vgpr}
  .amdhsa_next_free_sgpr {sgpr}
  .amdhsa_accum_offset {accum}
  .amdhsa_group_segment_fixed_size 0
  .amdhsa_kernarg_size {karg}
  .amdhsa_user_sgpr_count 2
  .amdhsa_user_sgpr_kernarg_segment_ptr 1
  .amdhsa_system_sgpr_workgroup_id_x 1
  .amdhsa_float_denorm_mode_32 3
.end_amdhsa_kernel
'''

def lanefn(e, dst, f, vlane, tmp, stmp='s100'):
    M = 0xffffffff
    vals = [f(l) & M for l in range(64)]
    dv = sorted(set(vals))
    if len(dv) == 2:
        mask = sum(1 << l for l in range(64) if vals[l] == dv[1])
        e(f's_mov_b32 vcc_lo, 0x{mask & M:x}\ns_mov_b32 vcc_hi, 0x{mask >> 32:x}')
        e(f'v_mov_b32 v{dst}, 0x{dv[0]:x}\nv_mov_b32 v{tmp[0]}, 0x{dv[1]:x}')
        e(f'v_cndmask_b32 v{dst}, v{dst}, v{tmp[0]}, vcc')
        return
    def affine(fixed):
        free = [b for b in range(6) if b not in fixed]
        base = sum(v << b for b, v in fixed.items())
        c0 = vals[base]
        w = {b: (vals[base | 1 << b] - c0) & M for b in free}
        for x in range(1 << len(free)):
            l = base; exp = c0
            for i, b in enumerate(free):
                if x >> i & 1: l |= 1 << b; exp += w[b]
            if vals[l] != exp & M: return None
        return c0, w
    def cost(fixed, depth):
        if affine(fixed) is not None: return (1, None)
        if depth == 0: return (999, None)
        best = (999, None)
        for b in range(6):
            if b in fixed: continue
            k = cost({**fixed, b: 0}, depth - 1)[0] + cost({**fixed, b: 1}, depth - 1)[0]
            if k < best[0]: best = (k, b)
        return best
    def emit(d, fixed, tmp):
        a = affine(fixed)
        if a is not None:
            c0, w = a
            e(f'v_mov_b32 v{d}, 0x{c0:x}')
            bits = [b for b in sorted(w) if w[b]]
            i = 0
            while i < len(bits):
                j = i
                while j + 1 < len(bits) and bits[j + 1] == bits[j] + 1 and w[bits[j + 1]] == (2 * w[bits[j]]) & M: j += 1
                e(f'v_bfe_u32 v{tmp[0]}, v{vlane}, {bits[i]}, {j - i + 1}')
                e(f's_mov_b32 {stmp}, 0x{w[bits[i]]:x}')
                e(f'v_mul_lo_u32 v{tmp[0]}, v{tmp[0]}, {stmp}')
                e(f'v_add_u32 v{d}, v{d}, v{tmp[0]}')
                i = j + 1
            return
        for depth in range(1, 6):
            k, b = cost(fixed, depth)
            if k < 999: break
        emit(d, {**fixed, b: 0}, tmp)
        emit(tmp[1], {**fixed, b: 1}, [tmp[0]] + tmp[2:])
        e(f'v_and_b32 v{tmp[0]}, {1 << b}, v{vlane}')
        e(f'v_cmp_ne_u32 vcc, 0, v{tmp[0]}')
        e(f'v_cndmask_b32 v{d}, v{d}, v{tmp[1]}, vcc')
    emit(dst, {}, tmp)
```

```python
import math
from asmlib import *
from layout import *
from rec import WSR, S_W, S_ID, S_LAY, BIG, DPPM, load_weights, chk, interleave, trace, cst
from k0 import fhex, allreduce_g

S_FIRST = 's23'
g = lambda l: l >> 4
c = lambda l: l & 15
z2 = lambda r: f'v_mov_b64 {vr(r, 2)}, 0'
pk = lambda d, a, b: f'v_cvt_pk_bf16_f32 v{d}, v{a}, v{b}'
def mm(d, a, b, cc): return f'v_mfma_f32_16x16x32_bf16 {d}, {a}, {b}, {cc}'

class LQ:
    def __init__(self, e): self.e = e; self.q = []
    def issue(self, text, tag=None):
        self.e(text); self.q.append(tag)
    def wait(self, tag):
        if tag not in self.q: return
        i = len(self.q) - 1 - self.q[::-1].index(tag)
        n = len(self.q) - 1 - i
        assert n <= 15
        self.e(f's_waitcnt lgkmcnt({n})'); self.q = self.q[i + 1:]
    def drain(self):
        self.e('s_waitcnt lgkmcnt(0)'); self.q = []

SLEEP = [0]
def spin(e): e('s_sub_u32 s99, s99, 1\ns_cbranch_scc1 FAIL')
def nap(e):
    if SLEEP[0]: e(f's_sleep {SLEEP[0]}')

def stage_tile(e, sbase, sT, STG, STL, R, CHK, extra=None, pre=None):
    L = e.lab('stg')
    e(f's_add_u32 {sT}, {sbase}, 4096')
    e(f'{L}:')
    nap(e)
    for i in range(7):
        e(f'buffer_load_dwordx4 {vr(R + 4 * i, 4)}, v{STG}, {WSR}, {sbase if i < 4 else sT} offen offset:{(i % 4) * 1024} sc1')
    spin(e)
    if pre: pre()
    ck = chk(range(R, R + 28), CHK, True)
    for i in range(7):
        e(f's_waitcnt vmcnt({6 - i})')
        e(f'ds_write_b128 v{STL}, {vr(R + 4 * i, 4)} offset:{i * 1024}')
        if i: e(ck.pop(0))
        e(ck.pop(0))
        if extra: extra(i)
    for x in ck: e(x)
    e(f'v_cmp_eq_u32 vcc, -1, v{CHK}\ns_waitcnt lgkmcnt(0)\ns_cbranch_vccnz {L}')

def vm_compute(e, VB, MF, ACC, AC7, WT, VM, IDX0, LWT, LMA, extra=()):
    for kb in range(7): e(f'ds_read_b128 {vr(MF + 4 * kb, 4)}, v{LMA} offset:{kb * 1024}')
    acc = lambda t: AC7 if t == 7 else ACC + 4 * (t & 1)
    W = lambda t, kb: wreg((t * 7 + kb) * 8, 8, VB) if t < 7 else vr(WT + 8 * (kb & 1), 8)
    S = lambda t, kb: f'v_smfmac_f32_16x16x64_bf16 {vr(acc(t), 4)}, {vr(MF + 4 * kb, 4)}, {W(t, kb)}, v{IDX0}'
    wrd = lambda kb: [f'ds_read_b128 {vr(WT + 8 * (kb & 1) + 4 * i, 4)}, v{LWT} offset:{(2 * kb + i) * 1024}' for i in range(2)]
    for x in wrd(0): e(x)
    for r in (ACC, ACC + 2, ACC + 4, ACC + 6, AC7, AC7 + 2): e(z2(r))
    def post(t):
        a = acc(t); hh, ct = t >> 1, t & 1
        return [f'v_add_f32 v{a}, v{a}, v{a + 1}', f'v_add_f32 v{a + 2}, v{a + 2}, v{a + 3}',
                pk(VM + 4 * ct + hh, a, a + 2)] + ([z2(a), z2(a + 2)] if t < 7 else [])
    for t in range(7):
        fill = (post(t - 1) if t else [''] * 5) + (wrd(t + 1) if t < 6 else [])
        for kb in range(7):
            if t == 0: e(f's_waitcnt lgkmcnt({8 - kb if kb < 6 else 3})')
            e(S(t, kb))
            if fill: e(fill.pop(0))
        e(f's_waitcnt lgkmcnt({2 if t < 6 else 0})')
        e(S(7, t))
        if t < len(extra): e(extra[t])
    for x in post(6) + post(7): e(x)

def load_wb(e, L16, LWT, sT, sT2, VB):
    e(f's_lshl_b32 {sT}, {S_ID}, 2\ns_add_u32 {sT}, {sT}, {S_W}\ns_mul_i32 {sT}, {sT}, {112 * 1024}\ns_add_u32 {sT}, {sT}, {WS_WB}')
    load_weights(e, 98, L16, sT, VB)
    e(f's_add_u32 {sT}, {sT}, 2048\ns_mul_i32 {sT2}, {S_W}, 14336')
    for i in range(14):
        e(f's_add_u32 m0, {sT2}, {i * 1024}\nbuffer_load_dwordx4 v{L16}, {WSR}, {sT} offen lds\ns_add_u32 {sT}, {sT}, 1024')
    e(f'v_add_u32 v{LWT}, {sT2}, v{L16}')

def dma_tile(sbase, sT, STG, sLds):
    out = []
    for i in range(7):
        pre = ''
        if i == 0: pre = f's_mov_b32 m0, {sLds}\n'
        if i == 4: pre = f's_add_u32 m0, {sLds}, 4096\ns_add_u32 {sT}, {sbase}, 4096\n'
        out.append(pre + f'buffer_load_dwordx4 v{STG}, {WSR}, {sbase if i < 4 else sT} offen offset:{(i % 4) * 1024} sc1 lds')
    return out

def check_tile(e, sbase, sT, STG, STL, R, CHK, extra=None, pre=None):
    ok = e.lab('tok')
    for i in range(7): e(f'ds_read_b128 {vr(R + 4 * i, 4)}, v{STL} offset:{i * 1024}')
    if pre: pre()
    ck = chk(range(R, R + 28), CHK, True)
    for i in range(7):
        e(f's_waitcnt lgkmcnt({6 - i})')
        if i: e(ck.pop(0))
        e(ck.pop(0))
        if extra: extra(i)
    for x in ck: e(x)
    e(f'v_cmp_eq_u32 vcc, -1, v{CHK}\ns_cbranch_vccz {ok}')
    stage_tile(e, sbase, sT, STG, STL, R, CHK, extra, pre)
    e(f'{ok}:')

def role_v(e, cfg):
    VB = 120
    L16, IDX0, XA, LWT, HW, STG, L4, TA, RD, CHK, LMA = range(1, 12)
    LANE = 0
    PX = 12; PM = 44; RES = 52
    XF = 56; WT = 72; MT = 80; ACCS = (12, 88)
    VM = 56; VXR = 64; OA = 96
    XBUF = 57344; MBUF = 114688; HOLD = 122880
    sX, sVX, sVF, sM, sP, sR, sO, sT, sT2, sPre, sPost = 's12', 's13', 's14', 's15', 's16', 's17', 's18', 's19', 's20', 's21', 's22'
    sXd, sP1, sP2, sM1, sXL, sHL, sVP, sVB = 's24', 's25', 's26', 's27', 's40', 's41', 's42', 's43'
    tmp = list(range(60, 70))
    e(f'v_and_b32 v{LANE}, 63, v0\nv_lshlrev_b32 v{L16}, 4, v{LANE}')
    e(f's_mul_i32 {sT}, {S_W}, 7168\nv_add_u32 v{STG}, {sT}, v{L16}\ns_add_u32 {sXL}, {sT}, {XBUF}')
    def xaddr(seg):
        e(f's_min_u32 {sT}, {seg}, 63\ns_mul_i32 {sT}, {sT}, {TILE}\ns_mul_i32 {sX}, {S_LAY}, {X_LAYER}\ns_add_u32 {sX}, {sX}, {sT}\ns_add_u32 {sX}, {sX}, {WS_XN0}')
    load_wb(e, L16, LWT, sT, sT2, VB)
    xaddr(S_FIRST)
    for x in dma_tile(sX, sT, STG, sXL): e(x)
    lanefn(e, IDX0, lambda l: 0xeeeeeeee if l & 1 else 0x44444444, LANE, tmp)
    lanefn(e, XA, lambda l: g(l) * 512 + c(l) * 16, LANE, tmp)
    e(f's_and_b32 {sT}, {S_W}, 1\ns_lshl_b32 {sT2}, {sT}, 8\nv_add_u32 v{TA}, {sT2}, v{XA}\ns_lshl_b32 {sT2}, {S_ID}, 11\nv_add_u32 v{TA}, {sT2}, v{TA}')
    e(f'v_add_u32 v{XA}, {XBUF}, v{XA}')
    e(f's_lshl_b32 {sT2}, {sT}, 11\ns_add_u32 {sT2}, {sT2}, {HOLD}\nv_add_u32 v{RD}, {sT2}, v{L16}')
    e(f's_lshl_b32 {sT}, {S_W}, 13\ns_add_u32 {sHL}, {sT}, {HOLD}\nv_add_u32 v{HW}, {sHL}, v{L16}')
    e(f'v_lshlrev_b32 v{L4}, 2, v{LANE}\nv_add_u32 v{LMA}, {MBUF}, v{L16}')
    e(f's_cmp_eq_u32 {S_LAY}, 0\ns_cselect_b32 {sT}, {cfg.get("vl0", 6)}, {cfg.get("vl1", 3)}\ns_mov_b32 {sPre}, {S_FIRST}\ns_sub_i32 {sPost}, {S_FIRST}, {sT}')
    e(f's_mov_b32 {sXd}, {TILE}')
    e(f's_lshl_b32 {sT}, {S_ID}, 2\ns_add_u32 {sT}, {sT}, {S_W}\ns_lshl_b32 {sT}, {sT}, 13\ns_mul_i32 {sVB}, {S_LAY}, {VX_LAYER}\ns_add_u32 {sVB}, {sVB}, {sT}\ns_add_u32 {sVB}, {sVB}, {WS_VX}')
    W = lambda t, ks: wreg((t * 14 + ks) * 4, 4, VB)
    ldm = [f'buffer_load_dwordx4 {vr(MT, 4)}, v{L16}, {WSR}, {sM} offen sc1', f'buffer_load_dwordx4 {vr(MT + 4, 4)}, v{L16}, {WSR}, {sM1} offen sc1']
    ldp = [f'buffer_load_dwordx4 {vr(PX + 4 * f, 4)}, v{L16}, {WSR}, {sP if f < 4 else sP1} offen offset:{(f % 4) * 1024} sc1' for f in range(8)]
    ldp += [f'buffer_load_dword v{PM + 4 * qt + hh}, v{L4}, {WSR}, {sP2} offen offset:{(2 * hh + qt) * 256} sc1' for hh in range(4) for qt in range(2)]
    ldp += [f'buffer_load_dwordx4 {vr(RES, 4)}, v{TA}, {WSR}, {sR} offen sc1']
    vdma = []
    for f in range(8):
        pre = f's_mov_b32 m0, {sHL}\n' if f == 0 else (f's_add_u32 m0, {sHL}, 4096\ns_add_u32 {sVP}, {sVP}, 4096\n' if f == 4 else '')
        vdma.append(pre + f'buffer_load_dwordx4 v{L16}, {WSR}, {sVP} offen offset:{(f % 4) * 1024} sc1 lds')
    def flag():
        e(f'v_mov_b32 v{CHK}, 1\ns_mov_b64 exec, 1\nbuffer_store_dword v{CHK}, off, {WSR}, {sVF} sc1\ns_mov_b64 exec, -1')
        trace(e, cfg, 3, sPre, CHK)
    e('s_waitcnt vmcnt(0)')
    e('V_loop:')
    e(f's_max_i32 {sT2}, {sPost}, 0')
    e(f's_mul_i32 {sVP}, {sT2}, {VX_SEG}\ns_add_u32 {sVP}, {sVP}, {sVB}')
    e(f's_mul_i32 {sM}, {sT2}, {MA_STEP}\ns_mul_i32 {sT}, {S_LAY}, {MA_LAYER}\ns_add_u32 {sM}, {sM}, {sT}\ns_lshl_b32 {sT}, {S_W}, 11\ns_add_u32 {sM}, {sM}, {sT}\ns_add_u32 {sM}, {sM}, {WS_MA + 14336}')
    e(f's_mul_i32 {sR}, {sT2}, {TILE}\ns_mul_i32 {sT}, {S_LAY}, {X_LAYER}\ns_add_u32 {sR}, {sR}, {sT}\ns_add_u32 {sR}, {sR}, {WS_XR0}')
    e(f's_lshl_b32 {sT}, {S_LAY}, 6\ns_add_u32 {sT2}, {sT2}, {sT}\ns_mul_i32 {sO}, {sT2}, {TILE}\ns_add_u32 {sO}, {sO}, {WS_X1}')
    e(f's_mul_i32 {sP}, {sT2}, {PG_SEG}\ns_add_u32 {sP}, {sP}, {WS_PG}')
    e(f's_lshl_b32 {sT}, {S_W}, 11\ns_add_u32 {sP2}, {sP}, {sT}\ns_add_u32 {sP2}, {sP2}, 32768')
    e(f's_lshl_b32 {sT}, {S_W}, 13\ns_add_u32 {sP}, {sP}, {sT}\ns_add_u32 {sP1}, {sP}, 4096')
    e(f's_cmp_eq_u32 {S_W}, 3\ns_cselect_b32 {sT}, 0, 1024\ns_add_u32 {sM1}, {sM}, {sT}')
    e(f's_cmp_lt_u32 {sPre}, 64\ns_cbranch_scc1 V_pre')
    e('s_barrier')
    for x in vdma + ldm: e(x)
    e('s_waitcnt vmcnt(0)\ns_branch V_mchk')
    e('V_pre:')
    trace(e, cfg, 0, sPre, CHK)
    e(f'v_add_u32 v{LANE}, {sXL}, v{L16}')
    check_tile(e, sX, sT, STG, LANE, 88, CHK)
    e('s_barrier')
    trace(e, cfg, 1, sPre, CHK)
    lq = LQ(e)
    def rd(hf, ks):
        n = hf * 14 + ks
        out = [(f'ds_read_b128 {vr(XF + 8 * (n & 1) + 4 * tau, 4)}, v{XA} offset:{ks * 2048 + tau * 256}', ('x', n)) for tau in range(2)]
        if hf: out.append((f'ds_read_b128 {vr(WT + 4 * (n & 1), 4)}, v{LWT} offset:{ks * 1024}', ('x', n)))
        return out
    def epi(hf):
        out = []
        for tl in range(4):
            t = 4 * hf + tl; hh, ct = t >> 1, t & 1
            f = (hh >> 1) * 4 + ct * 2 + (hh & 1)
            a = ACCS[hf] + 8 * tl
            out += [pk(a + i, a + i, a + 4 + i) for i in range(4)]
            out.append(f'buffer_store_dwordx4 {vr(a, 4)}, v{L16}, {WSR}, {sVX} offen offset:{(f % 4) * 1024} sc1')
        return out
    def emit(x):
        if isinstance(x, tuple): lq.issue(*x)
        else: e(x)
    for x in rd(0, 0): emit(x)
    e(f's_mul_i32 {sVX}, {sPre}, {VX_SEG}\ns_add_u32 {sVX}, {sVX}, {sVB}')
    e(f's_lshl_b32 {sT}, {S_ID}, 2\ns_add_u32 {sT}, {sT}, {S_W}')
    e(f's_lshl_b32 {sVF}, {S_LAY}, 6\ns_add_u32 {sVF}, {sVF}, {sPre}\ns_lshl_b32 {sVF}, {sVF}, 6\ns_add_u32 {sVF}, {sVF}, {sT}\ns_lshl_b32 {sVF}, {sVF}, 2\ns_add_u32 {sVF}, {sVF}, {WS_VF}')
    e(f's_add_u32 {sT2}, {sPre}, 3\ns_add_u32 {sXL}, {sXL}, {sXd}')
    xaddr(sT2)
    for hf in range(2):
        cst(e, cfg, hf)
        fill = epi(0) if hf else []
        lds_ = (dma_tile(sX, sT, STG, sXL) + ldm) if hf else list(vdma)
        last = epi(1) if hf else []
        for ks in range(14):
            n = hf * 14 + ks
            nxt = rd(hf, ks + 1) if ks < 13 else (rd(1, 0) if hf == 0 else [])
            lq.wait(('x', n))
            if hf and ks == 13: e(f's_add_u32 {sVX}, {sVX}, 4096')
            k = 0
            for tl in range(4):
                t = 4 * hf + tl
                for tau in range(2):
                    a = vr(ACCS[hf] + 8 * tl + 4 * tau, 4)
                    e(mm(a, vr(XF + 8 * (n & 1) + 4 * tau, 4), W(t, ks) if t < 7 else vr(WT + 4 * (n & 1), 4), a if ks else 0))
                    if nxt: emit(nxt.pop(0))
                    elif fill and k >= 3: emit(fill.pop(0))
                    elif lds_ and (k == 4 or (hf and k == 6)): emit(lds_.pop(0))
                    elif hf and ks == 13 and k >= 3:
                        emit(last.pop(0)); emit(last.pop(0))
                    k += 1
        assert not fill and not lds_
    cst(e, cfg, 2)
    for x in last: emit(x)
    cst(e, cfg, 3)
    trace(e, cfg, 2, sPre, CHK)
    e(f'v_add_u32 v{XA}, {sXd}, v{XA}\ns_sub_i32 {sXd}, 0, {sXd}')
    e(f's_cmp_lt_i32 {sPost}, 0\ns_cbranch_scc1 V_nopost')
    e('s_waitcnt vmcnt(4)')
    e('V_mchk:')
    for x in chk(range(MT, MT + 8), CHK, True): e(x)
    e(f'v_cmp_eq_u32 vcc, -1, v{CHK}\ns_cbranch_vccz V_mok')
    nap(e)
    for x in ldm: e(x)
    spin(e)
    e('s_waitcnt vmcnt(0)\ns_branch V_mchk')
    e('V_mok:')
    e(f's_lshl_b32 {sT}, {S_W}, 11\nv_add_u32 v{LANE}, {sT}, v{LMA}')
    e(f'ds_write_b128 v{LANE}, {vr(MT, 4)}\nds_write_b128 v{LANE}, {vr(MT + 4, 4)} offset:1024')
    for x in ldp[:5]: e(x)
    e('s_waitcnt lgkmcnt(0)\ns_barrier')
    trace(e, cfg, 4, sPost, CHK)
    vm_compute(e, VB, 64, 92, 100, 104, VM, IDX0, LWT, LMA, ['\n'.join(ldp[5 + 3 * i: 8 + 3 * i]) for i in range(4)])
    trace(e, cfg, 5, sPost, CHK)
    for f in range(8): e(f'ds_read_b128 {vr(VXR + 4 * f, 4)}, v{HW} offset:{f * 1024}')
    e(f's_cmp_ge_u32 {sPre}, 64\ns_cbranch_scc1 V_pw\ns_cmp_eq_u32 {S_LAY}, 0\ns_cbranch_scc1 V_pw')
    e('s_waitcnt vmcnt(17)')
    flag()
    e('s_waitcnt vmcnt(1)\ns_branch V_pchk')
    e('V_pw:\ns_waitcnt vmcnt(0)')
    e('V_pchk:')
    for x in chk(range(PX, PX + 44), CHK, True): e(x)
    e(f'v_cmp_eq_u32 vcc, -1, v{CHK}\ns_cbranch_vccz V_pok')
    nap(e)
    for x in ldp: e(x)
    spin(e)
    e('s_branch V_pw')
    e('V_pok:')
    trace(e, cfg, 6, sPost, CHK)
    e('s_waitcnt lgkmcnt(0)')
    for qt in range(2):
        for ct in range(2):
            a = vr(OA + 8 * qt + 4 * ct, 4)
            e(mm(a, vr(VM + 4 * ct, 4), vr(PM + 4 * qt, 4), 0))
            for hh in range(4):
                f = (hh >> 1) * 4 + ct * 2 + (hh & 1)
                e(mm(a, vr(VXR + 4 * f, 4), vr(PX + 8 * hh + 4 * qt, 4), a))
                if hh == 1 and (qt, ct) != (0, 0):
                    k = 2 * qt + ct - 1
                    e(f'ds_write_b128 v{HW}, {vr(OA + 4 * k, 4)} offset:{k * 1024}')
    U = PM
    for i in range(4): e(f'v_lshlrev_b32 v{U + i}, 16, v{RES + i}\nv_and_b32 v{U + 4 + i}, 0xffff0000, v{RES + i}')
    e(f'ds_write_b128 v{HW}, {vr(OA + 12, 4)} offset:3072')
    e('s_waitcnt lgkmcnt(0)\ns_barrier')
    e(f's_cmp_ge_u32 {S_W}, 2\ns_cbranch_scc1 V_lf')
    R = PX
    for w in range(4):
        for ct in range(2): e(f'ds_read_b128 {vr(R + 8 * w + 4 * ct, 4)}, v{RD} offset:{w * 8192 + ct * 1024}')
    for w in range(4):
        e(f's_waitcnt lgkmcnt({6 - 2 * w})')
        for i in range(0, 8, 2): e(f'v_pk_add_f32 {vr(U + i, 2)}, {vr(U + i, 2)}, {vr(R + 8 * w + i, 2)}')
    for i in range(4): e(pk(U + i, U + i, U + 4 + i))
    for i in range(4): e(f'v_min_u32 v{U + i}, -2, v{U + i}')
    e(f'buffer_store_dwordx4 {vr(U, 4)}, v{TA}, {WSR}, {sO} offen sc1')
    trace(e, cfg, 7, sPost, CHK)
    e('V_lf:')
    e(f's_cmp_ge_u32 {sPre}, 64\ns_cbranch_scc1 V_next\ns_cmp_eq_u32 {S_LAY}, 0\ns_cbranch_scc0 V_next\ns_branch V_fl')
    e('V_nopost:\ns_waitcnt vmcnt(0)')
    e('V_fl:')
    flag()
    e('V_next:')
    e(f's_add_u32 {sPre}, {sPre}, 3\ns_add_i32 {sPost}, {sPost}, 3\ns_cmp_lt_i32 {sPost}, 64\ns_cbranch_scc1 V_loop')
    e('s_branch DONE')

def role_q(e, cfg):
    VB = 120
    L16, XA, STG, KA0, KA1, KA2, MA0, MA1, MA2, EW, ER, CHK = range(1, 13)
    LANE = 0; L4 = 13; STL = 58
    XB2 = 45056; sXL, sXd, sXn = 's17', 's18', 's21'
    XF = 14; K1 = 30; MK = 44; ACC = 60
    EX = 28672
    sX, sM, sP, sP2, sS, sT, sT2 = 's12', 's13', 's14', 's15', 's16', 's19', 's20'
    tmp = list(range(60, 70))
    e(f'v_and_b32 v{LANE}, 63, v0\nv_lshlrev_b32 v{L16}, 4, v{LANE}')
    e(f's_lshl_b32 {sT}, {S_ID}, 2\ns_add_u32 {sT}, {sT}, {S_W}\ns_mul_i32 {sT}, {sT}, {98 * 1024}')
    if WS_WA: e(f's_add_u32 {sT}, {sT}, {WS_WA}')
    load_weights(e, 98, L16, sT, VB)
    def xaddr(d, seg):
        e(f's_min_u32 {sT}, {seg}, 63\ns_mul_i32 {sT}, {sT}, {TILE}\ns_mul_i32 {d}, {S_LAY}, {X_LAYER}\ns_add_u32 {d}, {d}, {sT}\ns_add_u32 {d}, {d}, {WS_XN0}')
    e(f's_mul_i32 {sXL}, {S_W}, 7168\nv_add_u32 v{STG}, {sXL}, v{L16}\nv_mov_b32 v{STL}, v{STG}\ns_mov_b32 {sXd}, {XB2}')
    xaddr(sXn, S_FIRST)
    for x in dma_tile(sXn, sT, STG, sXL): e(x)
    lanefn(e, XA, lambda l: g(l) * 512 + c(l) * 16, LANE, tmp)
    e(f's_mul_i32 {sT}, {S_W}, 7168')
    lanefn(e, KA0, lambda l: 2 * g(l) * 512 + c(l) * 16, LANE, tmp)
    lanefn(e, KA1, lambda l: (8 + g(l)) * 512 + c(l) * 16, LANE, tmp)
    lanefn(e, KA2, lambda l: (12 + (g(l) & 1)) * 512 + c(l) * 16 + 4 * (g(l) >> 1), LANE, tmp)
    for r in (KA0, KA1, KA2): e(f'v_add_u32 v{r}, {sT}, v{r}')
    mrow = lambda l: 2 * (c(l) >> 2) + (c(l) & 1)
    lanefn(e, MA0, lambda l: 2 * g(l) * 128 + mrow(l) * 16, LANE, tmp)
    lanefn(e, MA1, lambda l: (8 + g(l)) * 128 + mrow(l) * 16, LANE, tmp)
    lanefn(e, MA2, lambda l: (12 + (g(l) & 1)) * 128 + mrow(l) * 16 + 4 * (g(l) >> 1), LANE, tmp)
    e(f's_lshl_b32 {sT}, {S_W}, 12\ns_add_u32 {sT}, {sT}, {EX}\nv_add_u32 v{EW}, {sT}, v{L16}')
    e(f's_and_b32 {sT}, {S_W}, 1\ns_lshl_b32 {sT}, {sT}, 10\ns_add_u32 {sT}, {sT}, {EX}\nv_add_u32 v{ER}, {sT}, v{L16}')
    e(f'v_lshlrev_b32 v{L4}, 2, v{LANE}')
    for i in range(4):
        m = sum(1 << l for l in range(64) if 4 * g(l) + i <= c(l))
        e(f's_mov_b32 s{56 + 2 * i}, 0x{m & 0xffffffff:x}\ns_mov_b32 s{57 + 2 * i}, 0x{m >> 32:x}')
    e(f's_bitcmp1_b32 {S_W}, 0')
    for i in range(4):
        e(f's_cselect_b64 s[{40 + 2 * i}:{41 + 2 * i}], -1, s[{56 + 2 * i}:{57 + 2 * i}]')
        e(f's_cselect_b64 s[{48 + 2 * i}:{49 + 2 * i}], s[{56 + 2 * i}:{57 + 2 * i}], 0')
    e(f's_mov_b32 {sS}, {S_FIRST}')
    W = lambda t, ks: wreg((t * 14 + ks) * 4, 4, VB)
    A = lambda tau, t: ACC + 28 * tau + 4 * t
    e('s_waitcnt vmcnt(0)')
    e('Q_loop:')
    trace(e, cfg, 0, sS, CHK)
    check_tile(e, sXn, sT, STG, STL, ACC, CHK)
    e('s_barrier')
    trace(e, cfg, 1, sS, CHK)
    e(f's_mul_i32 {sM}, {sS}, {MA_STEP}\ns_mul_i32 {sT}, {S_LAY}, {MA_LAYER}\ns_add_u32 {sM}, {sM}, {sT}\ns_mul_i32 {sT}, {S_W}, {14 * 128}\ns_add_u32 {sM}, {sM}, {sT}\ns_add_u32 {sM}, {sM}, {WS_MA + 21504}')
    e(f's_lshl_b32 {sT}, {S_LAY}, 6\ns_add_u32 {sT}, {sT}, {sS}\ns_mul_i32 {sP}, {sT}, {PG_SEG}\ns_add_u32 {sP}, {sP}, {WS_PG}')
    e(f's_lshl_b32 {sT}, {S_ID}, 1\ns_and_b32 {sT2}, {S_W}, 1\ns_add_u32 {sT}, {sT}, {sT2}\ns_lshl_b32 {sT2}, {sT}, 8\ns_add_u32 {sP2}, {sP}, {sT2}\ns_add_u32 {sP2}, {sP2}, 32768\ns_lshl_b32 {sT2}, {sT}, 10\ns_add_u32 {sP}, {sP}, {sT2}')
    lq = LQ(e)
    rd = lambda ks: [(f'ds_read_b128 {vr(XF + 8 * (ks & 1) + 4 * tau, 4)}, v{XA} offset:{ks * 2048 + tau * 256}', ks) for tau in range(2)]
    def keys(kt, R):
        return [(f'ds_read_b128 {vr(R, 4)}, v{KA0} offset:{kt * 256}', ('k', kt)),
                (f'ds_read_b128 {vr(R + 4, 4)}, v{KA0} offset:{kt * 256 + 512}', ('k', kt)),
                (f'ds_read_b128 {vr(R + 8, 4)}, v{KA1} offset:{kt * 256}', ('k', kt)),
                (f'ds_read2_b32 {vr(R + 12, 2)}, v{KA2} offset0:{kt * 64} offset1:{kt * 64 + 2}', ('k', kt))]
    def ldm():
        e(f'buffer_load_dwordx4 {vr(MK, 4)}, v{MA0}, {WSR}, {sM} offen sc1\nbuffer_load_dwordx4 {vr(MK + 4, 4)}, v{MA0}, {WSR}, {sM} offen offset:128 sc1')
        e(f'buffer_load_dwordx4 {vr(MK + 8, 4)}, v{MA1}, {WSR}, {sM} offen sc1')
        e(f'buffer_load_dword v{MK + 12}, v{MA2}, {WSR}, {sM} offen sc1\nbuffer_load_dword v{MK + 13}, v{MA2}, {WSR}, {sM} offen offset:8 sc1')
    def pack(tau):
        out = []
        for u in range(3):
            a, b = A(tau, 2 * u), A(tau, 2 * u + 1)
            out += [pk(a, a, a + 1), pk(a + 1, b, b + 1), pk(a + 2, a + 2, a + 3), pk(a + 3, b + 2, b + 3)]
        a = A(tau, 6)
        return out + [pk(a, a, a + 1), pk(a + 1, a + 2, a + 3)]
    e(f's_add_u32 {sT2}, {sS}, 2\ns_add_u32 {sXL}, {sXL}, {sXd}')
    xaddr(sXn, sT2)
    dma = dma_tile(sXn, sT, STG, sXL)
    cst(e, cfg, 0)
    for x in rd(0): lq.issue(*x)
    for ks in range(14):
        nxt = rd(ks + 1) if ks < 13 else keys(1, K1)
        lq.wait(ks)
        fill = []
        for tau in (1, 0):
            if ks == 13 and tau == 0: fill = pack(1)
            for t in range(7):
                a = vr(A(tau, t), 4)
                e(mm(a, W(t, ks), vr(XF + 8 * (ks & 1) + 4 * tau, 4), a if ks else 0))
                if nxt: lq.issue(*nxt.pop(0))
                elif dma and ks >= cfg.get('qdma', 7) and t == 3: e(dma.pop(0))
                for _ in range(2):
                    if fill: e(fill.pop(0))
        if ks == 11:
            assert not dma
            ldm()
    cst(e, cfg, 1)
    for x in keys(0, XF): lq.issue(*x)
    def scores(d, KR, tau):
        out = [mm(vr(d, 4), vr(KR + 4 * u, 4), vr(A(tau, 2 * u), 4), vr(d, 4) if u else 0) for u in range(3)]
        return out + [f'v_mfma_f32_16x16x16_bf16 {vr(d, 4)}, {vr(KR + 12, 2)}, {vr(A(tau, 6), 2)}, {vr(d, 4)}']
    S11, S01, S00, SM0, SM1 = A(1, 1), A(1, 3), A(1, 5), A(0, 1), A(0, 3)
    lq.wait(('k', 1))
    p0 = pack(0)
    a, b, d = scores(S11, K1, 1), scores(S01, XF, 1), scores(S00, XF, 0)
    interleave(e, a[:3], p0[:6])
    lq.wait(('k', 0))
    interleave(e, b[:3] + a[3:], p0[6:])
    for x in d[:3]: e(x)
    e(f'ds_write_b128 v{EW}, {vr(S11, 4)} offset:2048')
    e(b[3]); e(d[3])
    e(f'ds_write_b128 v{EW}, {vr(S01, 4)} offset:1024')
    e(f'ds_write_b128 v{EW}, {vr(S00, 4)}')
    e('s_waitcnt lgkmcnt(0)\ns_barrier')
    cst(e, cfg, 2)
    SC = XF; MX = XF + 10; T0 = XF + 11
    e(f's_cmp_ge_u32 {S_W}, 2\ns_cbranch_scc1 Q_m')
    R2 = [XF, XF + 8, K1, None]
    q4 = [SC, SC + 4, XF + 8, XF + 12, K1, K1 + 4, K1 + 8, S11]
    for w in range(4):
        for kt in range(2): e(f'ds_read_b128 {vr(q4[2 * w + kt], 4)}, v{ER} offset:{w * 4096 + kt * 1024}')
    for w in range(1, 4):
        e(f's_waitcnt lgkmcnt({6 - 2 * w})')
        for kt in range(2):
            for i in (0, 2): e(f'v_pk_add_f32 {vr(SC + 4 * kt + i, 2)}, {vr(SC + 4 * kt + i, 2)}, {vr(q4[2 * w + kt] + i, 2)}')
    e(f'v_mov_b32 v{T0}, 0xff800000')
    for kt in range(2):
        for i in range(4): e(f'v_cndmask_b32 v{SC + 4 * kt + i}, v{T0}, v{SC + 4 * kt + i}, s[{40 + 8 * kt + 2 * i}:{41 + 8 * kt + 2 * i}]')
    e(f'v_max3_f32 v{MX}, v{SC}, v{SC + 1}, v{SC + 2}\nv_max3_f32 v{MX}, v{MX}, v{SC + 3}, v{SC + 4}\nv_max3_f32 v{MX}, v{MX}, v{SC + 5}, v{SC + 6}\nv_max_f32 v{MX}, v{MX}, v{SC + 7}')
    cst(e, cfg, 3)
    trace(e, cfg, 2, sS, CHK)
    e('Q_m:')
    e('s_waitcnt vmcnt(0)')
    for x in chk(range(MK, MK + 14), CHK, True): e(x)
    e(f'v_cmp_eq_u32 vcc, -1, v{CHK}\ns_cbranch_vccz Q_mok')
    nap(e)
    ldm(); spin(e)
    e('s_branch Q_m')
    e('Q_mok:')
    cst(e, cfg, 4)
    trace(e, cfg, 3, sS, CHK)
    a, b = scores(SM0, MK, 0), scores(SM1, MK, 1)
    for x in a[:3] + b[:3] + a[3:] + b[3:]: e(x)
    e(f'ds_write_b64 v{EW}, {vr(SM0, 2)} offset:3072')
    e(f'ds_write_b64 v{EW}, {vr(SM1, 2)} offset:3080')
    e(f's_and_b32 {sT}, {S_W}, 1\ns_mul_i32 {sT}, {sT}, 1016\nv_subrev_u32 v{LANE}, {sT}, v{ER}')
    e('s_waitcnt lgkmcnt(0)\ns_barrier')
    e(f's_cmp_ge_u32 {S_W}, 2\ns_cbranch_scc1 Q_next')
    for w in range(4): e(f'ds_read_b64 {vr(K1 + 2 * w, 2)}, v{LANE} offset:{w * 4096 + 3072}')
    e('s_waitcnt lgkmcnt(0)')
    pa = lambda d, a, b: e(f'v_pk_add_f32 {vr(d, 2)}, {vr(a, 2)}, {vr(b, 2)}')
    pa(K1, K1, K1 + 2); pa(K1 + 4, K1 + 4, K1 + 6); pa(SC + 8, K1, K1 + 4)
    e(f'v_max3_f32 v{MX}, v{MX}, v{SC + 8}, v{SC + 9}')
    allreduce_g(e, MX, T0, 'v_max_f32')
    for i in range(0, 10, 2): e(f'v_pk_add_f32 {vr(SC + i, 2)}, {vr(SC + i, 2)}, {vr(MX, 2)} op_sel_hi:[1,0] neg_lo:[0,1] neg_hi:[0,1]')
    for i in range(10): e(f'v_exp_f32 v{SC + i}, v{SC + i}')
    pa(K1, SC, SC + 2); pa(K1 + 2, SC + 4, SC + 6); pa(K1, K1, K1 + 2); pa(K1, K1, SC + 8)
    e(f'v_add_f32 v{MX}, v{K1}, v{K1 + 1}')
    allreduce_g(e, MX, T0, 'v_add_f32')
    e(f'v_rcp_f32 v{MX}, v{MX}')
    for i in range(0, 10, 2): e(f'v_pk_mul_f32 {vr(SC + i, 2)}, {vr(SC + i, 2)}, {vr(MX, 2)} op_sel_hi:[1,0]')
    for i in range(4): e(f'v_cvt_pk_bf16_f32 v{K1 + i}, |v{SC + i}|, |v{SC + 4 + i}|')
    e(f'buffer_store_dwordx4 {vr(K1, 4)}, v{L16}, {WSR}, {sP} offen sc1')
    e(f'v_cvt_pk_bf16_f32 v{K1 + 4}, |v{SC + 8}|, |v{SC + 9}|')
    e(f'buffer_store_dword v{K1 + 4}, v{L4}, {WSR}, {sP2} offen sc1')
    cst(e, cfg, 5)
    trace(e, cfg, 4, sS, CHK)
    e('Q_next:')
    for r in (XA, KA0, KA1, KA2, STL): e(f'v_add_u32 v{r}, {sXd}, v{r}')
    e(f's_sub_i32 {sXd}, 0, {sXd}')
    e(f's_add_u32 {sS}, {sS}, 2\ns_cmp_lt_u32 {sS}, 64\ns_cbranch_scc1 Q_loop')
    e('s_branch DONE')

def order(d0, d1):
    key = [(s, 0, s) for s in range(64)]
    for s in range(64):
        lag = d0 + (d1 - d0) * min(1.0, s / max(1, 63 - d1))
        key.append((s + lag - 0.5, 1, s))
    return [(l, s) for _, l, s in sorted(key)]

def set_order(e, od, r):
    m = sum(l << n for n, (l, s) in enumerate(od))
    for k in range(4): e(f's_mov_b32 s{r + k}, 0x{(m >> (32 * k)) & 0xffffffff:x}')

def decode(e, r, sN, sLay, sS, t):
    e(f's_cmp_ge_u32 {sN}, 64\ns_cselect_b64 s[{t}:{t + 1}], s[{r + 2}:{r + 3}], s[{r}:{r + 1}]\ns_cselect_b64 s[{t + 2}:{t + 3}], s[{r}:{r + 1}], 0')
    e(f's_bcnt1_i32_b64 {sS}, s[{t + 2}:{t + 3}]\ns_bfm_b64 s[{t + 2}:{t + 3}], {sN}, 0\ns_and_b64 s[{t + 2}:{t + 3}], s[{t + 2}:{t + 3}], s[{t}:{t + 1}]')
    e(f's_bcnt1_i32_b64 {sLay}, s[{t + 2}:{t + 3}]\ns_add_u32 {sS}, {sS}, {sLay}\ns_sub_u32 s{t + 2}, {sN}, {sS}')
    e(f's_bitcmp1_b64 s[{t}:{t + 1}], {sN}\ns_cselect_b32 {sS}, {sS}, s{t + 2}\ns_cselect_b32 {sLay}, 1, 0')

def cost(x):
    if isinstance(x, tuple): return 0 if x[0] == 'wait' else 1
    return sum(2 if l.startswith(TRANS) else (0.3 if l.startswith('s_') else 1) for l in x.split('\n') if l)

def sched(e, lq, ms, reads, la, st, fill, skip=0, nxt=None):
    fill = list(fill)
    ismem = lambda x: (isinstance(x, tuple) and x[0] != 'wait') or (isinstance(x, str) and 'buffer_' in x)
    def emit(x):
        if isinstance(x, tuple):
            if x[0] == 'wait': lq.wait(x[1])
            else: lq.issue(*x)
        else: e(x)
    if ms: lq.wait(ms[0][1])
    carry = 0.0
    for k, (m, tag, ri) in enumerate(ms):
        e(m)
        follow = ms[k + 1][1] if k + 1 < len(ms) else nxt
        if follow is not None: lq.wait(follow)
        used = 0
        if ri is not None and st['n'] < len(reads) and st['n'] <= ri + la:
            lq.issue(*reads[st['n']]); st['n'] += 1; used += 1
        if k < skip: continue
        if fill and ismem(fill[0]): emit(fill.pop(0)); used += 1
        left = len(ms) - k
        nrd = sum(1 for a, b in zip(ms[k + 1:], ms[k:]) if a[2] is not None and a[2] != b[2])
        over = max(0.0, sum(cost(x) for x in fill) + nrd + used - 2 * left) / left
        quota = 2 - used + over + carry
        while fill and not ismem(fill[0]) and cost(fill[0]) <= quota + 0.01:
            quota -= cost(fill[0]); emit(fill.pop(0))
        carry = min(quota, 1.0) if over > 0 else 0.0
    for x in fill: emit(x)

def role_mlp(e, cfg):
    VB = 92
    L16, XA, STG, HWA, PA, PB, CVA = range(1, 8)
    LANE = 0; CHK = 8; ONE = 9
    K1 = 10; K2 = 12; IR = 14; BA = 16; GT = 20; XF = 24; AC = 32; OA = 60
    XB = 29696
    B2A = 28672; ZA = B2A + 896
    HID = 2 * XB; STAT = HID + 14336; STAT2 = STAT + 1024; CV = STAT2 + 1024
    OUT_SRD = 's[28:31]'; WSD = 's[52:55]'
    sX, sPt, sPf, sN, sS, sIt, sXL, sT, sT2, sLay, sXd = 's12', 's13', 's14', 's15', 's16', 's17', 's18', 's19', 's20', 's21', 's22'
    sTb, sSh, sXo, sSn, sLn = 's24', 's25', 's27', 's44', 's45'
    tmp = list(range(30, 40))
    e(f'v_and_b32 v{LANE}, 63, v0\nv_lshlrev_b32 v{L16}, 4, v{LANE}')
    e(f's_lshr_b32 {sT}, {S_W}, 1\ns_mul_i32 {sT}, {sT}, 7\ns_add_u32 {sSh}, {sT}, 3\ns_and_b32 {sT2}, {S_W}, 1\ns_lshl_b32 {sT2}, {sT2}, 2\ns_add_u32 {sTb}, {sT}, {sT2}')
    W1 = lambda lt, ks, n=4, o=0: wreg((lt * 14 + ks) * 4 + o, n, VB)
    W2 = lambda t, p, n=4, o=0: wreg((56 + t * 7 + p) * 4 + o, n, VB)
    e('s_load_dwordx2 s[52:53], s[0:1], 64\ns_load_dwordx2 s[56:57], s[0:1], 80')
    e(f's_mov_b32 s54, {D * F * 2}\ns_mov_b32 s55, 0x20000')
    RS = 928
    DA, TR0, TR1, TR2, TR3 = 10, 11, 12, 13, 14
    e(f'v_cmp_le_u32 vcc, 28, v{LANE}\nv_mov_b32 v{DA}, {3584 - 448}\nv_cndmask_b32 v{DA}, 0, v{DA}, vcc\nv_add_u32 v{DA}, v{DA}, v{L16}')
    rr = lambda l: c(l) >> 2
    lanefn(e, TR0, lambda l: (4 * g(l) + (rr(l) >> 1)) * RS + (rr(l) & 1) * 448 + (l & 3) * 8, LANE, tmp)
    e(f's_lshl_b32 {sT}, {sSh}, 5\nv_add_u32 v{TR1}, {sT}, v{TR0}\ns_lshl_b32 {sT}, {sTb}, 5\nv_add_u32 v{TR0}, {sT}, v{TR0}')
    lanefn(e, TR2, lambda l: (4 * g(l) + rr(l)) * RS + (l & 3) * 16, LANE, tmp)
    lanefn(e, TR3, lambda l: (4 * g(l) + rr(l)) * RS + (l & 3) * 8 + 192, LANE, tmp)
    e(f's_mul_i32 {sT}, {S_W}, 224\nv_add_u32 v{TR2}, {sT}, v{TR2}\nv_add_u32 v{TR3}, {sT}, v{TR3}')
    e('s_waitcnt lgkmcnt(0)')
    def wstage(va, n, start, gstride):
        L = e.lab('wl')
        e(f's_mul_i32 m0, {S_W}, {RS}\ns_mov_b32 {sT2}, {n}\ns_mov_b32 exec_hi, 0xffffff')
        e(f'{L}:\nbuffer_load_dwordx4 v{va}, {WSD}, {start} offen lds')
        e(f's_add_u32 m0, m0, {4 * RS}\ns_add_u32 {start}, {start}, {4 * gstride}\ns_sub_u32 {sT2}, {sT2}, 1\ns_cmp_lg_u32 {sT2}, 0\ns_cbranch_scc1 {L}')
        e('s_mov_b32 exec_hi, -1\ns_waitcnt vmcnt(0)\ns_barrier')
    e(f's_mul_i32 s26, {S_W}, {2 * 3584}\ns_mul_i32 {sT}, {S_ID}, 448\ns_add_u32 s26, s26, {sT}')
    for st in range(2):
        wstage(DA, 28, 's26', 2 * 3584)
        e(f'v_mov_b32 v15, v{TR0}\nv_mov_b32 v16, v{TR1}')
        for kl in range(7):
            if kl == 4: e(f'v_add_u32 v15, {64 * RS}, v15\nv_add_u32 v16, {64 * RS}, v16')
            for lt in range(4):
                for hb in range(2):
                    e(f'ds_read_b64_tr_b16 {W1(lt, 7 * st + kl, 2, 2 * hb)}, v{15 if lt < 3 else 16} offset:{((kl & 3) * 16 + 2 * hb) * RS + (32 * lt if lt < 3 else 0)}')
        e('s_waitcnt lgkmcnt(0)\ns_barrier')
    e('s_mov_b32 s52, s56\ns_mov_b32 s53, s57')
    e(f's_mul_i32 s26, {S_ID}, 224\ns_add_u32 s26, s26, {S_W}\ns_mul_i32 s26, s26, 896')
    for st, (p0, np_) in enumerate(((0, 4), (4, 3))):
        wstage(L16, 8 * np_, 's26', 896)
        e(f'v_mov_b32 v15, v{TR2}\nv_mov_b32 v16, v{TR3}')
        for pl in range(np_):
            if pl == 2: e(f'v_add_u32 v15, {64 * RS}, v15\nv_add_u32 v16, {64 * RS}, v16')
            for t in range(7):
                for hb in range(2):
                    e(f'ds_read_b64_tr_b16 {W2(t, p0 + pl, 2, 2 * hb)}, v{15 if t < 6 else 16} offset:{((pl & 1) * 32 + 16 * hb) * RS + (64 * (t >> 1) + 8 * (t & 1) if t < 6 else 0)}')
        e('s_waitcnt lgkmcnt(0)\ns_barrier')
    set_order(e, order(cfg.get('mlp_d0', 14), cfg.get('mlp_d1', 24)), 48)
    e(f's_mul_i32 {sXL}, {S_W}, 7168\nv_add_u32 v{STG}, {sXL}, v{L16}\ns_mov_b32 {sXd}, {XB}\ns_mov_b32 {sXo}, 0')
    def nxt(n):
        e(f's_min_u32 {sT}, {n}, 127')
        decode(e, 48, sT, sLn, sSn, 56)
        e(f's_lshl_b32 {sT}, {sLn}, 6\ns_add_u32 {sT}, {sT}, {sSn}\ns_mul_i32 {sX}, {sT}, {TILE}\ns_add_u32 {sX}, {sX}, {WS_X1}')
    nxt(S_FIRST)
    for x in dma_tile(sX, sT, STG, sXL): e(x)
    e(f'v_and_b32 v{CHK}, 15, v{LANE}\nv_lshlrev_b32 v{CHK}, 1, v{CHK}')
    e(f's_mul_i32 {sT2}, {S_ID}, 14\ns_add_u32 {sT}, {sT2}, {sTb}\ns_lshl_b32 {sT}, {sT}, 5')
    for lt in range(3): e(f'buffer_load_ushort v{62 + lt}, v{CHK}, s[32:35], {sT} offen offset:{32 * lt}')
    e(f's_add_u32 {sT}, {sT2}, {sSh}\ns_lshl_b32 {sT}, {sT}, 5')
    e(f'buffer_load_ushort v65, v{CHK}, s[32:35], {sT} offen')
    e(f'buffer_load_dwordx4 {vr(72, 4)}, v{L16}, s[36:39], 0 offen')
    lanefn(e, XA, lambda l: g(l) * 512 + c(l) * 16, LANE, tmp)
    lanefn(e, PA, lambda l: (c(l) >> 2) * TILE + g(l) * 64 + (c(l) & 3) * 16, LANE, tmp)
    lanefn(e, PB, lambda l: (c(l) >> 2) * TILE + (g(l) >> 1) * 64 + (g(l) & 1) * 8 + (c(l) & 3) * 16, LANE, tmp)
    e(f'v_add_u32 v{HWA}, {HID}, v{L16}\nv_mov_b32 v{ONE}, 0x3f803f80')
    e(f's_mul_i32 {sT}, {S_W}, 6144\ns_add_u32 {sT}, {sT}, {CV}\nv_add_u32 v{CVA}, {sT}, v{L16}')
    Gm = (0, 2, 1, 3)
    bad = lambda l: g(l) == 3 and c(l) >= 8
    for hb in range(2):
        for q in range(4):
            lanefn(e, 40, lambda l: 0x3f80 if c(l) == 8 * hb + 2 * q else 0, LANE, tmp)
            lanefn(e, 41, lambda l: 0x3f800000 if c(l) == 8 * hb + 2 * q + 1 else 0, LANE, tmp)
            e(f'v_or_b32 v{44 + 4 * hb + q}, v40, v41')
    lanefn(e, 52, lambda l: g(l) * 3584 + c(l) * 16, LANE, tmp)
    lanefn(e, 53, lambda l: g(l) * 3584 + c(l) * 16 if c(l) < 8 else BIG, LANE, tmp)
    lanefn(e, 54, lambda l: BIG if bad(l) else (4 * Gm[g(l)] + (c(l) >> 2)) * 512 + (c(l) & 3) * 16, LANE, tmp)
    lanefn(e, 55, lambda l: BIG if bad(l) else (4 * Gm[g(l)] + (c(l) >> 2)) * 16 + (c(l) & 3) * 896, LANE, tmp)
    e(f's_mul_i32 {sT}, {S_W}, 7168\ns_lshl_b32 s26, {S_ID}, 6\ns_add_u32 {sT}, {sT}, s26\ns_mul_i32 s26, {S_W}, 224')
    lanefn(e, 40, lambda l: (c(l) >> 2) * 512 + (c(l) & 3) * 16, LANE, tmp)
    lanefn(e, 41, lambda l: B2A + (c(l) >> 2) * 16, LANE, tmp)
    e(f'v_add_u32 v40, {sT}, v40\nv_add_u32 v41, s26, v41')
    for G in range(4):
        e(f'v_mov_b32 v{56 + G}, {ZA}')
        for gg, r in ((0, 40), (1, 41)):
            m = sum(1 << l for l in range(64) if g(l) == gg and (G < 3 or c(l) < 8))
            e(f's_mov_b32 vcc_lo, 0x{m:x}\ns_mov_b32 vcc_hi, 0\nv_cndmask_b32 v{56 + G}, v{56 + G}, v{r}, vcc')
        e('v_add_u32 v40, 2048, v40\nv_add_u32 v41, 64, v41')
    for k in range(4): e(f'ds_write_b128 v{CVA}, {vr(44 + 4 * k, 4)} offset:{k * 1024}')
    for i in range(4): e(f'v_mov_b32 v{XF + i}, v{ONE}')
    for lt in range(4):
        a = vr(76 + 4 * lt, 4)
        for ks in range(14): e(mm(a, vr(XF, 4), W1(lt, ks), a if ks else 0))
    e('s_waitcnt vmcnt(0) lgkmcnt(0)')
    e(f'v_add_u32 v{CHK}, {B2A}, v{L16}\nds_write_b128 v{CHK}, {vr(72, 4)}\nds_write_b128 v{CHK}, {vr(72, 4)} offset:{XB}')
    e('s_mov_b32 s60, 0xffff\ns_mov_b32 s61, 0\ns_mov_b32 s62, 0xffff0000\ns_mov_b32 s63, 0')
    for lt in range(4):
        a = 76 + 4 * lt; o = 44 + 2 * lt
        e(f'v_and_b32 v{a + 1}, 0xffff0000, v{a}\nv_sub_f32 v{a + 2}, v{a}, v{a + 1}')
        e(pk(a + 1, a + 1, a + 1)); e(pk(a + 2, a + 2, a + 2))
        e(f'v_lshl_or_b32 v{a + 3}, v{62 + lt}, 16, v{62 + lt}')
        e(f'v_cndmask_b32 v{o}, 0, v{a + 3}, s[62:63]\nv_cndmask_b32 v{o}, v{o}, v{a + 1}, s[60:61]\nv_cndmask_b32 v{o + 1}, 0, v{a + 2}, s[60:61]')
    for k in range(2): e(f'ds_write_b128 v{CVA}, {vr(44 + 4 * k, 4)} offset:{4096 + k * 1024}')
    sH = ['s40', 's41', 's42', 's43']
    for lt in range(4):
        if lt < 3: e(f's_add_u32 {sT}, {sTb}, {lt}')
        else: e(f's_mov_b32 {sT}, {sSh}')
        e(f's_lshr_b32 {sH[lt]}, {sT}, 1\ns_lshl_b32 {sH[lt]}, {sH[lt]}, 10\ns_and_b32 {sT}, {sT}, 1\ns_lshl_b32 {sT}, {sT}, 3\ns_add_u32 {sH[lt]}, {sH[lt]}, {sT}')
    c1 = -2 * math.sqrt(2 / math.pi) * math.log2(math.e)
    e(f's_mov_b32 {sN}, {S_FIRST}\ns_mov_b32 {sIt}, 1')
    e(f's_lshl_b32 {sPf}, {S_FIRST}, 2\ns_add_u32 {sPf}, {sPf}, {S_W}\ns_lshl_b32 {sPf}, {sPf}, 8\ns_add_u32 {sPf}, {sPf}, {WS_PF}')
    e('s_waitcnt lgkmcnt(0)')
    e('P_loop:')
    e(f's_mov_b32 {sLay}, {sLn}\ns_mov_b32 {sS}, {sSn}')
    SMq = GT
    def pre(): e(z2(SMq))
    def extra(i):
        for k in range(4):
            r = OA + 4 * i + k
            e(f'v_dot2c_f32_bf16 v{SMq}, v{r}, v{ONE}\nv_dot2c_f32_bf16 v{SMq + 1}, v{r}, v{r}')
    trace(e, cfg, 0, sN, CHK)
    e(f'v_add_u32 v{LANE}, {sXL}, v{L16}')
    check_tile(e, sX, sT, STG, LANE, OA, CHK, extra, pre)
    trace(e, cfg, 1, sN, CHK)
    e(f'v_bfe_u32 v{LANE}, v{L16}, 1, 8\ns_lshl_b32 {sT}, {S_W}, 8\ns_add_u32 {sT}, {sT}, {STAT}\nv_add_u32 v{CHK}, {sT}, v{LANE}')
    e(f'v_mov_b64 {vr(SMq + 2, 2)}, {vr(SMq, 2)}')
    e(f'v_and_b32 v{LANE}, 0x7f, v{LANE}\nv_add_u32 v{LANE}, {STAT}, v{LANE}')
    e(f'v_permlane32_swap_b32 v{SMq + 2}, v{SMq}\nv_permlane32_swap_b32 v{SMq + 3}, v{SMq + 1}')
    e(f'v_pk_add_f32 {vr(SMq, 2)}, {vr(SMq, 2)}, {vr(SMq + 2, 2)}')
    e(f'ds_write_b64 v{CHK}, {vr(SMq, 2)}')
    e(f's_and_b32 {sT}, {sIt}, 1\ns_lshl_b32 {sT2}, {S_FIRST}, 1\ns_add_u32 {sT}, {sT}, {sT2}\ns_mul_i32 {sPt}, {sT}, {PART_SLOT}\ns_mul_i32 {sT}, {S_W}, 896\ns_add_u32 {sPt}, {sPt}, {sT}\ns_add_u32 {sPt}, {sPt}, {WS_PART}')
    e('s_waitcnt lgkmcnt(0)\ns_barrier')
    trace(e, cfg, 2, sN, CHK)
    e(f's_bitcmp1_b32 {S_W}, 0\ns_cbranch_scc1 P_odd')
    def body(par):
        lq = LQ(e)
        def emit(x):
            if isinstance(x, tuple):
                if x[0] == 'wait': lq.wait(x[1])
                else: lq.issue(*x)
            else: e(x)
        units = [[(0, 0), (1, 0)], [(2, 0), (3, par)], [(0, 1), (1, 1), (2, 1)]]
        areg = {}
        for u in units:
            for x in u: areg[x] = AC + 4 * len(areg)
        reads = []; ms = []
        for u in units:
            lst = []
            for ks in range(14):
                got = {}
                for lt, tau in u:
                    if tau not in got:
                        got[tau] = len(reads)
                        reads.append((f'ds_read_b128 {vr(OA + 4 * (len(reads) % 7), 4)}, v{XA} offset:{ks * 2048 + tau * 256}', ('x', len(reads))))
                    a = vr(areg[lt, tau], 4)
                    lst.append((mm(a, W1(lt, ks), vr(OA + 4 * (got[tau] % 7), 4), a if ks else 0), ('x', got[tau]), got[tau]))
            ms.append(lst)
        LA = 5
        def stats(tau):
            o = AC + 8 + 8 * tau
            out = [('wait', ('s', tau))]
            for k in range(2):
                out += [f'v_add_f32 v{o + k}, v{o + k}, v{o + 2 + k}', f'v_add_f32 v{o + 4 + k}, v{o + 4 + k}, v{o + 6 + k}']
            out += [f'v_add_f32 v{o + k}, v{o + k}, v{o + 4 + k}' for k in range(2)]
            out += [f'v_mul_f32 v{o}, {fhex(-1 / D)}, v{o}', f'v_mul_f32 v{o + 1}, {fhex(1 / D)}, v{o + 1}',
                    f'v_fma_f32 v{o + 1}, -v{o}, v{o}, v{o + 1}', f'v_max_f32 v{o + 1}, 0, v{o + 1}',
                    f'v_mul_f32 v{o + 1}, {fhex(1 + 1e-5)}, v{o + 1}', f'v_add_f32 v{o + 1}, {fhex(1e-10)}, v{o + 1}',
                    f'v_rsq_f32 v{o + 2}, v{o + 1}',
                    f'v_mul_f32 v{IR + tau}, v{o + 1}, v{o + 2}', f'v_mul_f32 v{K1 + tau}, {fhex(c1)}, v{o + 2}',
                    f'v_cndmask_b32 v{o}, v{IR + tau}, v{o}, s[60:61]', f'v_mul_f32 v{o + 2}, v{o + 2}, v{o + 2}',
                    f'v_and_b32 v{o + 1}, 0xffff0000, v{o}', f'v_mul_f32 v{o + 2}, {fhex(0.044715)}, v{o + 2}',
                    f'v_sub_f32 v{o}, v{o}, v{o + 1}', f'v_mul_f32 v{K2 + tau}, v{o + 2}, v{K1 + tau}',
                    pk(BA + 2 * tau, o + 1, o), pk(BA + 2 * tau + 1, o + 1, o)]
            return out
        aug = lambda u: [f'v_mfma_f32_16x16x16_bf16 {vr(areg[x], 4)}, {vr(XF + 2 * x[0], 2)}, {vr(BA + 2 * x[1], 2)}, {vr(areg[x], 4)}' for x in u]
        head = lambda lst, u: lst[:2] + [(m, None, None) for m in aug(u)] + lst[2:]
        def gelu(u):
            out = []
            for lt, tau in u:
                a = areg[lt, tau]
                R4 = range(4)
                out += [f'v_mul_f32 v{GT + i}, v{a + i}, v{a + i}' for i in R4]
                out += [f'v_fma_f32 v{GT + i}, v{GT + i}, v{K2 + tau}, v{K1 + tau}' for i in R4]
                out += [f'v_mul_f32 v{GT + i}, v{GT + i}, v{a + i}' for i in R4]
                out += [f'v_exp_f32 v{GT + i}, v{GT + i}' for i in R4]
                out += [f'v_fma_f32 v{GT + i}, v{GT + i}, v{IR + tau}, v{IR + tau}' for i in R4]
                out += [f'v_rcp_f32 v{GT + i}, v{GT + i}' for i in R4]
                out.append(f'v_add_u32 v{LANE}, {sH[lt]}, v{HWA}')
                out += [f'v_mul_f32 v{a + i}, v{a + i}, v{GT + i}' for i in R4]
                out += [pk(a, a, a + 1), pk(a + 1, a + 2, a + 3)]
                out.append((f'ds_write_b64 v{LANE}, {vr(a, 2)} offset:{tau * 7168}', 'w'))
            return out
        hreg = lambda p: (88, XF + 4, XF)[p % 3]
        hrd = lambda tau: [(f'ds_read_b128 {vr(hreg(p), 4)}, v{HWA} offset:{tau * 7168 + p * 1024}', ('h', tau, p)) for p in range(7)]
        def s2(tau, O):
            od = [(p, t) for p in range(7) for t in range(7)]
            if tau: od = od[:35] + [(p, t) for t in range(7) for p in (5, 6)]
            return [(mm(vr(O + 4 * t, 4), W2(t, p), vr(hreg(p), 4), vr(O + 4 * t, 4) if p else 0), ('h', tau, p), p) for p, t in od]
        def epi(O, so):
            out = []
            for pr in range(3):
                a = O + 8 * pr
                out += [pk(a, a, a + 1), pk(a + 1, a + 2, a + 3), pk(a + 2, a + 4, a + 5), pk(a + 3, a + 6, a + 7)]
                out.append(f'buffer_store_dwordx4 {vr(a, 4)}, v{PA}, {WSR}, {so} offen offset:{pr * 256}')
            a = O + 24
            out += [pk(a, a, a + 1), pk(a + 1, a + 2, a + 3), f'buffer_store_dwordx2 {vr(a, 2)}, v{PB}, {WSR}, {so} offen offset:768']
            return out
        cst(e, cfg, 0)
        for n in range(2): lq.issue(*reads[n])
        for tau in range(2):
            for w in range(2): lq.issue(f'ds_read2_b64 {vr(AC + 8 + 8 * tau + 4 * w, 4)}, v{LANE} offset0:{w * 64 + tau * 16} offset1:{w * 64 + 32 + tau * 16}', ('s', tau))
        for n in range(2, 5): lq.issue(*reads[n])
        st = {'n': 5}
        af = [(f'ds_read_b128 {vr(XF + 4 * k, 4)}, v{CVA} offset:{4096 + k * 1024}', 'a') for k in range(2)]
        sched(e, lq, ms[0], reads, LA, st, stats(0)[:8] + af[:1] + stats(0)[8:] + af[1:] + stats(1), 3, ms[1][0][1])
        cst(e, cfg, 1)
        nb = cfg.get('pbar', 40)
        u1 = head(ms[1], units[0]); u2 = head(ms[2], units[1])
        g0 = gelu(units[0]); ns = cfg.get('psplit', 50)
        sched(e, lq, u1[:2], reads, LA, st, [], 0, 'a')
        sched(e, lq, u1[2:], reads, LA, st, g0[:ns], 2, u2[0][1])
        cst(e, cfg, 2)
        sched(e, lq, u2[:nb], reads, LA, st, g0[ns:] + gelu(units[1]), 0)
        lq.wait('w'); e('s_barrier')
        h0 = hrd(0)
        lq.issue(*h0[0])
        n0 = len(e.L)
        e(f's_add_u32 {sT2}, {sN}, 5\ns_add_u32 {sXL}, {sXL}, {sXd}')
        nxt(sT2)
        sal = e.L[n0:]; del e.L[n0:]
        sched(e, lq, u2[nb:], reads, LA, st, sal, 0, ('h', 0, 0))
        cst(e, cfg, 3)
        g2 = gelu(units[2]); dma = dma_tile(sX, sT, STG, sXL)
        for k, x in enumerate(dma): g2.insert(9 * k, x)
        z = head(s2(0, OA), units[2])
        sched(e, lq, z[:5], [], 0, {'n': 0}, [])
        sched(e, lq, z[5:], h0, 2, {'n': 1}, g2)
        cst(e, cfg, 4)
        lq.drain(); e('s_barrier')
        h1 = hrd(1)
        lq.issue(*h1[0]); lq.issue(*h1[1])
        cst(e, cfg, 5)
        e(f's_mul_i32 s26, {S_ID}, 3584\ns_add_u32 s26, s26, {sPt}\ns_add_u32 {sT2}, s26, {4 * TILE}')
        z = s2(1, AC); st = {'n': 2}; ep = epi(AC, sT2)
        sched(e, lq, z[:40], h1, 2, st, epi(OA, 's26'))
        sched(e, lq, z[40:44], h1, 2, st, ep[:5])
        sched(e, lq, z[44:48], h1, 2, st, ep[5:10])
        sched(e, lq, z[48:], h1, 2, st, [])
        cst(e, cfg, 6)
        for x in ep[10:]: e(x)
        cst(e, cfg, 7)
    body(0)
    e('s_branch P_red')
    e('P_odd:')
    body(1)
    e('P_red:')
    trace(e, cfg, 3, sN, CHK)
    SEL = 10; AD = 18; PR = 28; RSD = 60; DD = 76
    for k in range(4): e(f'ds_read_b128 {vr(SEL + 4 * k, 4)}, v{CVA} offset:{k * 1024}')
    e(f'v_lshrrev_b32 v{LANE}, 2, v{L16}\nv_mov_b32 v{CHK}, {sIt}\ns_lshl_b32 {sT}, {S_ID}, 2\ns_add_u32 {sT}, {sT}, {sPf}')
    e(f'v_add_u32 v{XA}, {sXd}, v{XA}')
    e('s_waitcnt lgkmcnt(0)')
    for G in range(4): e(f'v_add_u32 v{AD + 4 + G}, {sXo}, v{AD + 4 + G}\nds_read_b128 {vr(RSD + 4 * G, 4)}, v{AD + 4 + G}')
    e(f's_add_u32 {sXo}, {sXo}, {sXd}\ns_sub_i32 {sXd}, 0, {sXd}')
    e('s_waitcnt vmcnt(0)')
    e(f's_mov_b64 exec, 1\nbuffer_store_dword v{CHK}, v{LANE}, {WSR}, {sT} offen\ns_mov_b64 exec, 0xff')
    e('P_fl:')
    e(f'buffer_load_dword v{CHK}, v{LANE}, {WSR}, {sPf} offen sc1')
    spin(e)
    e(f's_waitcnt vmcnt(0)\nv_cmp_gt_u32 vcc, {sIt}, v{CHK}\ns_cbranch_vccnz P_fl')
    e('s_mov_b64 exec, -1')
    trace(e, cfg, 4, sN, CHK)
    e(f's_mul_i32 {sT}, {S_ID}, {TILE}\ns_add_u32 {sT}, {sT}, {sPt}\ns_add_u32 {sT2}, {sT}, {4 * 3584}')
    for G in range(4):
        for sq in range(2): e(f'buffer_load_dwordx4 {vr(PR + 8 * G + 4 * sq, 4)}, v{AD + (G == 3)}, {WSR}, {(sT, sT2)[sq]} offen offset:{G * 256} sc1')
    e('s_waitcnt lgkmcnt(0)')
    for G in range(4):
        d = vr(DD + 4 * (G >> 1), 4); e(mm(d, vr(SEL + 4 * (G & 1), 4), vr(RSD + 4 * G, 4), d if G & 1 else 0))
    for G in range(4):
        for sq in range(2):
            d = vr(DD + 4 * (G >> 1), 4)
            e(f's_waitcnt vmcnt({7 - 2 * G - sq})'); e(mm(d, vr(SEL + 4 * (G & 1), 4), vr(PR + 8 * G + 4 * sq, 4), d))
    Y = PR
    for k in range(4): e(pk(Y + k, DD + 2 * k, DD + 2 * k + 1))
    e(f'v_permlane16_swap_b32 v{Y}, v{Y + 2}\nv_permlane16_swap_b32 v{Y + 1}, v{Y + 3}')
    e(f's_cmp_eq_u32 {sLay}, 0\ns_cbranch_scc1 P_l0')
    e(f's_lshl_b32 {sT}, {sS}, 3\ns_add_u32 {sT}, {sT}, {S_ID}\ns_mul_i32 {sT}, {sT}, 3584\ns_mul_i32 {sT2}, {S_W}, 224\ns_add_u32 {sT}, {sT}, {sT2}')
    e(f'buffer_store_dwordx4 {vr(Y, 4)}, v{AD + 3}, {OUT_SRD}, {sT} offen')
    e('s_branch P_next')
    e('P_l0:')
    SQ = Y + 4
    e(z2(SQ))
    for k in range(4): e(f'v_min_u32 v{Y + k}, -2, v{Y + k}')
    for k in range(4): e(f'v_dot2c_f32_bf16 v{SQ}, v{Y + k}, v{ONE}\nv_dot2c_f32_bf16 v{SQ + 1}, v{Y + k}, v{Y + k}')
    e(f'v_bfe_u32 v{LANE}, v{L16}, 1, 5\ns_lshl_b32 s26, {S_W}, 5\ns_add_u32 s26, s26, {STAT2}\nv_add_u32 v{CHK}, s26, v{LANE}\nv_add_u32 v{LANE}, {STAT2}, v{LANE}')
    pa = lambda d, a, b: e(f'v_pk_add_f32 {vr(d, 2)}, {vr(a, 2)}, {vr(b, 2)}')
    for n in (4, 8):
        for k in range(2): e(f'v_add_f32_dpp v{SQ + k}, v{SQ + k}, v{SQ + k} row_ror:{n} {DPPM}')
    for n in (16, 32):
        e(f'v_mov_b64 {vr(SQ + 2, 2)}, {vr(SQ, 2)}')
        e(f'v_permlane{n}_swap_b32 v{SQ + 2}, v{SQ}\nv_permlane{n}_swap_b32 v{SQ + 3}, v{SQ + 1}')
        pa(SQ, SQ, SQ + 2)
    e(f'ds_write_b64 v{CHK}, {vr(SQ, 2)}')
    e(f's_mul_i32 {sT}, {sS}, {TILE}\ns_mul_i32 {sT2}, {S_W}, 7168\ns_add_u32 {sT}, {sT}, {sT2}\ns_lshl_b32 {sT2}, {S_ID}, 6\ns_add_u32 {sT}, {sT}, {sT2}\ns_add_u32 {sT2}, {sT}, {WS_XR1}\ns_add_u32 {sT}, {sT}, {WS_XN1}')
    e('s_waitcnt lgkmcnt(0)\ns_barrier')
    for w in range(2): e(f'ds_read2_b64 {vr(SQ + 4 * w, 4)}, v{LANE} offset0:{w * 8} offset1:{w * 8 + 4}')
    U = Y + 16
    for k in range(4): e(f'v_lshlrev_b32 v{U + 2 * k}, 16, v{Y + k}\nv_and_b32 v{U + 2 * k + 1}, 0xffff0000, v{Y + k}')
    e('s_waitcnt lgkmcnt(0)')
    pa(SQ, SQ, SQ + 2); pa(SQ + 4, SQ + 4, SQ + 6); pa(SQ, SQ, SQ + 4)
    e(f'v_mul_f32 v{SQ}, {fhex(-1 / D)}, v{SQ}\nv_mul_f32 v{SQ + 1}, {fhex(1 / D)}, v{SQ + 1}')
    e(f'v_fma_f32 v{SQ + 1}, -v{SQ}, v{SQ}, v{SQ + 1}\nv_max_f32 v{SQ + 1}, 0, v{SQ + 1}\nv_add_f32 v{SQ + 1}, {fhex(1e-5)}, v{SQ + 1}\nv_rsq_f32 v{SQ + 2}, v{SQ + 1}')
    e(f'v_mul_f32 v{SQ}, v{SQ}, v{SQ + 2}')
    for k in range(0, 8, 2): e(f'v_pk_fma_f32 {vr(U + k, 2)}, {vr(U + k, 2)}, {vr(SQ + 2, 2)}, {vr(SQ, 2)} op_sel_hi:[1,0,0]')
    for k in range(4): e(pk(U + 8 + k, U + 2 * k, U + 2 * k + 1))
    for k in range(4): e(f'v_min_u32 v{U + 8 + k}, -2, v{U + 8 + k}')
    e(f'buffer_store_dwordx4 {vr(U + 8, 4)}, v{AD + 2}, {WSR}, {sT} offen sc1')
    e(f'buffer_store_dwordx4 {vr(Y, 4)}, v{AD + 2}, {WSR}, {sT2} offen sc1')
    e('P_next:')
    trace(e, cfg, 5, sN, CHK)
    e(f's_add_u32 {sN}, {sN}, 5\ns_add_u32 {sIt}, {sIt}, 1\ns_cmp_lt_u32 {sN}, 128\ns_cbranch_scc1 P_loop')
    e('s_branch DONE')
```

```python
import math
from asmlib import *
from layout import *

def srd(e, r, ptr, size):
    e(f's_mov_b32 s{r}, s{ptr}\ns_mov_b32 s{r + 1}, s{ptr + 1}\ns_mov_b32 s{r + 2}, {size}\ns_mov_b32 s{r + 3}, 0x20000')

def fhex(x):
    import struct
    return '0x%08x' % struct.unpack('<I', struct.pack('<f', x))[0]

def div7(e, d, s):
    e(f's_mul_i32 {d}, {s}, 9363\ns_lshr_b32 {d}, {d}, 16')

def allreduce_g(e, v, t, op):
    e(f'v_mov_b32 v{t}, v{v}\nv_permlane16_swap_b32 v{t}, v{v}\n{op} v{v}, v{v}, v{t}')
    e(f'v_mov_b32 v{t}, v{v}\nv_permlane32_swap_b32 v{t}, v{v}\n{op} v{v}, v{v}, v{t}')

def k0(e, cfg):
    WS = 's[4:7]'; S_W = 's8'
    g = lambda l: l >> 4
    c = lambda l: l & 15
    LANE, L16 = 1, 2
    tmp = list(range(10, 20))
    e('s_cmp_ge_u32 s2, 256\ns_cbranch_scc1 K0_end')
    def st(i):
        if cfg.get('prof'): e(f's_memrealtime s[{80 + 2 * i}:{81 + 2 * i}]')
    st(0); st(1); st(2); st(3)
    e('s_load_dwordx4 s[40:43], s[0:1], 0\ns_load_dwordx8 s[44:51], s[0:1], 16\ns_load_dwordx2 s[52:53], s[0:1], 64\ns_load_dwordx2 s[54:55], s[0:1], 80\ns_load_dwordx2 s[4:5], s[0:1], 112')
    e(f'v_lshrrev_b32 v1, 6, v0\nv_readfirstlane_b32 {S_W}, v1')
    e(f'v_and_b32 v{LANE}, 63, v0\nv_lshlrev_b32 v{L16}, 4, v{LANE}')
    e('s_and_b32 s9, s2, 7\ns_lshr_b32 s10, s2, 3')
    e('s_waitcnt lgkmcnt(0)')
    e('s_mov_b32 s6, 0x10000000\ns_mov_b32 s7, 0x20000')
    e('s_cmp_ge_u32 s10, 28\ns_cbranch_scc1 K0_misc')
    sH, sB, sTy, sT, sT2, sO0, sO1, sSc = 's11', 's12', 's13', 's14', 's15', 's16', 's17', 's18'
    div7(e, sT, 's10')
    e(f's_mul_i32 {sT2}, {sT}, 7\ns_sub_u32 {sB}, s10, {sT2}')
    e(f's_lshl_b32 {sT2}, s9, 2\ns_add_u32 {sT}, {sT}, {sT2}\ns_and_b32 {sTy}, {sT}, 1\ns_lshr_b32 {sH}, {sT}, 1')
    KS = 's[20:23]'; NS = 's[24:27]'
    e(f's_cmp_eq_u32 {sTy}, 0\ns_cselect_b32 s20, s44, s48\ns_cselect_b32 s21, s45, s49\ns_cselect_b32 s24, s46, s50\ns_cselect_b32 s25, s47, s51')
    e(f's_mov_b32 s22, {D * H * DH * 2}\ns_mov_b32 s23, 0x20000\ns_mov_b32 s26, {D * H * DH * 2}\ns_mov_b32 s27, 0x20000')
    KA, TC, NA0, NA1, RA = 3, 4, 5, 6, 7
    e(f'v_lshrrev_b32 v10, 3, v{LANE}\nv_lshlrev_b32 v{KA}, 13, v10')
    e(f'v_bfe_u32 v10, v{LANE}, 4, 1\ns_lshl_b32 {sT}, {S_W}, 1\nv_add_u32 v10, {sT}, v10\nv_and_b32 v11, 7, v{LANE}\nv_xor_b32 v10, v10, v11\nv_lshlrev_b32 v10, 4, v10\nv_add_u32 v{KA}, v{KA}, v10')
    sK = 's28'; sL = 's29'
    e(f's_lshl_b32 {sK}, {S_W}, 16\ns_lshl_b32 {sT}, {sH}, 9\ns_add_u32 {sK}, {sK}, {sT}')
    e(f's_lshl_b32 {sL}, {S_W}, 10')
    def stage(st):
        for i in range(14):
            e(f's_add_u32 {sT}, {sK}, {i * 4 * 65536 + st * 128}\ns_add_u32 m0, {sL}, {(st & 1) * 57344 + i * 4096}')
            e(f'buffer_load_dwordx4 v{KA}, {KS}, {sT} offen lds')
    e(f'v_lshrrev_b32 v10, 1, v{LANE}\nv_and_b32 v10, 15, v10\nv_lshlrev_b32 v{TC}, 13, v10\nv_and_b32 v10, 1, v{LANE}\nv_lshlrev_b32 v10, 7, v10\nv_add_u32 v{TC}, v{TC}, v10')
    e(f's_lshl_b32 {sT}, {sB}, 2\ns_add_u32 {sT}, {sT}, {S_W}\ns_lshl_b32 {sT}, {sT}, 17\ns_lshl_b32 {sT2}, {sH}, 9\ns_add_u32 {sT}, {sT}, {sT2}')
    e(f'buffer_load_dword v9, v{TC}, {KS}, {sT} offen offset:256')
    stage(0)
    NF = 64; RAW = 128; ACC = 0
    sNJ = 's30'; sKH = 's31'
    e(f's_and_b32 {sNJ}, {S_W}, 1\ns_lshr_b32 {sKH}, {S_W}, 1')
    e(f's_cmp_eq_u32 {sTy}, 1\ns_cbranch_scc1 K0_nB')
    P0, P1, P2 = 20, 21, 22
    lanefn(e, P0, lambda l: (16 * (c(l) >> 2) + 4 * ((c(l) >> 1) & 1) + (c(l) & 1)) * 8192 + 16 * g(l), LANE, tmp)
    lanefn(e, P1, lambda l: (8 * (c(l) >> 2) + 4 * ((c(l) >> 1) & 1) + (c(l) & 1)) * 8192 + 16 * g(l), LANE, tmp)
    lanefn(e, P2, lambda l: (8 * ((c(l) >> 2) & 1) + 4 * ((c(l) >> 1) & 1) + 2 * (c(l) >> 3) + (c(l) & 1)) * 8192 + 16 * g(l), LANE, tmp)
    for k, (NA, sO) in enumerate(((NA0, sO0), (NA1, sO1))):
        l1, l2, l3 = e.lab('k0a'), e.lab('k0b'), e.lab('k0c')
        e(f's_lshl_b32 s32, {sB}, 2\ns_lshl_b32 s33, {sNJ}, 1\ns_add_u32 s32, s32, s33\ns_add_u32 s32, s32, {k}')
        e(f's_mul_i32 {sO}, {sH}, 28\ns_add_u32 {sO}, {sO}, s32\ns_mul_i32 {sO}, {sO}, {14 * 1024}')
        if WS_WA: e(f's_add_u32 {sO}, {sO}, {WS_WA}')
        div7(e, 's33', 's32')
        e('s_mul_i32 s34, s33, 7\ns_sub_u32 s34, s32, s34\ns_mul_i32 s33, s33, 112')
        e(f's_cmp_ge_u32 s34, 4\ns_cbranch_scc1 {l1}')
        e(f's_lshr_b32 s35, s34, 1\ns_lshl_b32 s35, s35, 3\ns_and_b32 s36, s34, 1\ns_lshl_b32 s36, s36, 1\ns_add_u32 s35, s35, s36\nv_mov_b32 v{NA}, v{P0}\ns_branch {l3}')
        e(f'{l1}:\ns_cmp_eq_u32 s34, 6\ns_cbranch_scc1 {l2}')
        e(f's_lshl_b32 s35, s34, 1\ns_add_u32 s35, s35, 56\nv_mov_b32 v{NA}, v{P1}\ns_branch {l3}')
        e(f'{l2}:\ns_mov_b32 s35, 96\nv_mov_b32 v{NA}, v{P2}')
        e(f'{l3}:\ns_add_u32 s33, s33, s35\ns_lshl_b32 s33, s33, 13\ns_lshl_b32 s35, {sH}, 9\ns_add_u32 s33, s33, s35')
        for es in range(8):
            e(f'buffer_load_dwordx4 {vr(NF + 8 * es + 4 * k, 4)}, v{NA}, {NS}, s33 offen offset:{es * 64}')
    e(f's_mov_b32 {sSc}, {fhex(DH ** -0.5 * math.log2(math.e))}')
    stage(1)
    e('s_waitcnt vmcnt(14)')
    e('s_branch K0_mm')
    e('K0_nB:')
    lanefn(e, NA0, lambda l: 8 * g(l) * 896 + 4 * c(l), LANE, tmp)
    e(f's_lshl_b32 s32, {sB}, 1\ns_add_u32 s32, s32, {sNJ}')
    e(f's_mul_i32 s33, {sH}, {DH * 896}\ns_lshl_b32 s34, s32, 6\ns_add_u32 s33, s33, s34')
    for es in range(8):
        for i in range(8):
            if i % 4 == 0: e(f's_add_u32 s34, s33, {(32 * es + i) * 896}')
            e(f'buffer_load_dword v{RAW + 8 * es + i}, v{NA0}, {NS}, s34 offen offset:{(i % 4) * 896}')
    e(f's_lshl_b32 {sO0}, s32, 4\ns_add_u32 {sO0}, {sO0}, {sH}\ns_mul_i32 {sO0}, {sO0}, {2 * 14 * 1024}\ns_add_u32 {sO0}, {sO0}, {WS_WB}\ns_add_u32 {sO1}, {sO0}, {14 * 1024}')
    e(f's_mov_b32 {sSc}, 1.0')
    stage(1)
    e('s_mov_b32 s34, 0x05040100\ns_mov_b32 s35, 0x07060302')
    e('s_waitcnt vmcnt(14)')
    for es in range(8):
        for q in range(4):
            a = RAW + 8 * es + 2 * q
            e(f'v_perm_b32 v{NF + 8 * es + q}, v{a + 1}, v{a}, s34\nv_perm_b32 v{NF + 8 * es + 4 + q}, v{a + 1}, v{a}, s35')
    e('K0_mm:')
    st(1)
    RB = 8
    lanefn(e, RA, lambda l: (8 * (c(l) >> 2) + (c(l) & 3)) * 128, LANE, tmp)
    e(f'v_bfe_u32 v10, v{LANE}, 1, 3\nv_lshrrev_b32 v11, 4, v{LANE}\nv_xor_b32 v10, v10, v11\nv_xor_b32 v11, 4, v10')
    e(f's_mul_i32 {sT}, {sKH}, {224 * 128}\nv_add_u32 v{RA}, {sT}, v{RA}')
    e(f'v_lshl_add_u32 v{RB}, v11, 4, v{RA}\nv_lshl_add_u32 v{RA}, v10, 4, v{RA}')
    RA2, RB2 = 23, 24
    e(f'v_add_u32 v{RA2}, 57344, v{RA}\nv_add_u32 v{RB2}, 57344, v{RB}')
    KF = 192
    for st_ in range(4):
        e('s_barrier')
        rd = []
        for eh in range(2):
            for kt in range(14):
                base = ((RA, RB), (RA2, RB2))[st_ & 1][eh]
                rd.append((eh, kt, f'v{base} offset:{(kt >> 1) * 4096 + (kt & 1) * 512}'))
        for i in range(6): e(f'ds_read_b128 {vr(KF + 4 * (i % 8), 4)}, {rd[i][2]}')
        for i, (eh, kt, _) in enumerate(rd):
            if i + 6 < len(rd): e(f'ds_read_b128 {vr(KF + 4 * ((i + 6) % 8), 4)}, {rd[i + 6][2]}')
            e(f's_waitcnt lgkmcnt({min(6, len(rd) - 1 - i)})')
            es = 2 * st_ + eh
            for k in range(2):
                a = vr(ACC + 8 * kt + 4 * k, 4, 'a')
                e(f'v_mfma_f32_16x16x32_bf16 {a}, {vr(KF + 4 * (i % 8), 4)}, {vr(NF + 8 * es + 4 * k, 4)}, {a if es else 0}')
        if st_ < 2:
            e('s_barrier')
            stage(st_ + 2)
            e('s_waitcnt vmcnt(14)')
        elif st_ == 2:
            e('s_waitcnt vmcnt(0)')
    st(2)
    e(f's_mul_i32 {sT}, {sKH}, {7 * 1024}\ns_add_u32 {sO0}, {sO0}, {sT}\ns_add_u32 {sO1}, {sO1}, {sT}')
    n = 0
    for ks in range(7):
        for k, sO in enumerate((sO0, sO1)):
            t0 = RAW + 8 * (n % 4); o = RAW + 32 + 4 * (n % 8); n += 1
            for hf in range(2):
                for i in range(4):
                    e(f'v_accvgpr_read_b32 v{t0 + 4 * hf + i}, a{ACC + 8 * (2 * ks + hf) + 4 * k + i}')
            for i in range(8): e(f'v_mul_f32 v{t0 + i}, {sSc}, v{t0 + i}')
            for q in range(4): e(f'v_cvt_pk_bf16_f32 v{o + q}, v{t0 + 2 * q}, v{t0 + 2 * q + 1}')
            if ks == 4: e(f's_add_u32 {sO}, {sO}, 4096')
            e(f'buffer_store_dwordx4 {vr(o, 4)}, v{L16}, {WS}, {sO} offen offset:{(ks % 4) * 1024}')
    e('s_branch K0_common')
    e('K0_misc:')
    sU = 's11'
    e(f's_lshl_b32 {sU}, s9, 2\ns_add_u32 {sU}, {sU}, s10\ns_sub_u32 {sU}, {sU}, 28')
    srd(e, 20, 40, S * D * 2)
    XA, TA = 3, 4
    XV = 64
    lanefn(e, XA, lambda l: c(l) * 896 + 16 * g(l), LANE, tmp)
    lanefn(e, TA, lambda l: g(l) * 512 + 16 * c(l), LANE, tmp)
    e(f's_lshl_b32 s12, {sU}, 2\ns_add_u32 s12, s12, {S_W}\ns_mul_i32 s13, s12, {16 * 896}')
    for i in range(14): e(f'buffer_load_dwordx4 {vr(XV + 4 * i, 4)}, v{XA}, s[20:23], s13 offen offset:{64 * i}')
    e(f's_lshr_b32 s14, s12, 1\ns_mul_i32 s14, s14, {TILE}\ns_and_b32 s15, s12, 1\ns_lshl_b32 s15, s15, 8\ns_add_u32 s14, s14, s15')
    e(f's_add_u32 s15, s14, {WS_XR0}\ns_add_u32 s14, s14, {WS_XN0}')
    SM, SQ, ONE = 5, 6, 7
    e(f'v_mov_b32 v{SM}, 0\nv_mov_b32 v{SQ}, 0\nv_mov_b32 v{ONE}, 0x3f803f80')
    e('s_waitcnt vmcnt(0)')
    for i in range(56):
        e(f'v_min_u32 v{XV + i}, -2, v{XV + i}')
        e(f'v_dot2c_f32_bf16 v{SM}, v{XV + i}, v{ONE}\nv_dot2c_f32_bf16 v{SQ}, v{XV + i}, v{XV + i}')
    for i in range(14):
        if i and i % 2 == 0: e('s_add_u32 s15, s15, 4096')
        e(f'buffer_store_dwordx4 {vr(XV + 4 * i, 4)}, v{TA}, {WS}, s15 offen offset:{(i % 2) * 2048}')
    e('s_nop 2')
    allreduce_g(e, SM, 10, 'v_add_f32'); allreduce_g(e, SQ, 10, 'v_add_f32')
    e(f'v_mul_f32 v{SM}, {fhex(1 / D)}, v{SM}\nv_mul_f32 v{SQ}, {fhex(1 / D)}, v{SQ}')
    e(f'v_fma_f32 v{SQ}, -v{SM}, v{SM}, v{SQ}\nv_max_f32 v{SQ}, 0, v{SQ}\nv_add_f32 v{SQ}, {fhex(1e-5)}, v{SQ}\nv_rsq_f32 v{SQ}, v{SQ}')
    e(f'v_mul_f32 v{SM}, v{SM}, v{SQ}')
    YV = 128
    for i in range(56):
        e(f'v_lshlrev_b32 v10, 16, v{XV + i}\nv_and_b32 v11, 0xffff0000, v{XV + i}')
        e(f'v_fma_f32 v10, v10, v{SQ}, -v{SM}\nv_fma_f32 v11, v11, v{SQ}, -v{SM}')
        e(f'v_cvt_pk_bf16_f32 v{YV + i}, v10, v11\nv_min_u32 v{YV + i}, -2, v{YV + i}')
        if i % 4 == 3:
            k = i // 4
            if k and k % 2 == 0: e('s_add_u32 s14, s14, 4096')
            e(f'buffer_store_dwordx4 {vr(YV + 4 * k, 4)}, v{TA}, {WS}, s14 offen offset:{(k % 2) * 2048}')
    e(f's_lshl_b32 s12, {sU}, 11\ns_lshl_b32 s13, {S_W}, 9\ns_add_u32 s12, s12, s13\ns_add_u32 s13, s12, {WS_ZERO}')
    e(f's_and_b32 s12, s12, 0x1d000\ns_cmp_eq_u32 s12, 0\ns_cselect_b32 s12, 1, 0')
    e(f'v_cmp_gt_u32 vcc, 56, v{LANE}\nv_mov_b32 v10, s12\nv_cndmask_b32 v10, 0, v10, vcc\nv_lshlrev_b32 v11, 2, v{LANE}')
    e(f'buffer_store_dword v10, v11, {WS}, s13 offen\nbuffer_store_dword v10, v11, {WS}, s13 offen offset:256')
    e(f's_cmp_ge_u32 {sU}, 7\ns_cbranch_scc1 K0_common')
    srd(e, 24, 42, MM * D * 2)
    lanefn(e, XA, lambda l: (c(l) >> 1) * 896 + 32 * g(l) + 4 * (l & 1), LANE, tmp)
    lanefn(e, TA, lambda l: (l & 7) * 896 + 16 * (l >> 3), LANE, tmp)
    e(f's_lshl_b32 s12, {sU}, 7')
    for q in range(4): e(f'buffer_load_dword v{XV + q}, v{XA}, s[24:27], s12 offen offset:{8 * q}')
    e(f'buffer_load_dwordx4 {vr(XV + 4, 4)}, v{TA}, s[24:27], s12 offen')
    e(f's_mul_i32 s13, {S_W}, 14336\ns_lshl_b32 s12, {sU}, 10\ns_add_u32 s13, s13, s12\ns_add_u32 s13, s13, {WS_MA}\ns_add_u32 s14, s13, 7168')
    e('s_waitcnt vmcnt(0)')
    for i in range(8): e(f'v_min_u32 v{XV + i}, -2, v{XV + i}')
    e(f'buffer_store_dwordx4 {vr(XV, 4)}, v{L16}, {WS}, s13 offen\nbuffer_store_dwordx4 {vr(XV + 4, 4)}, v{L16}, {WS}, s14 offen')
    e('K0_common:')
    st(3)
    sG = 's11'
    e(f's_lshl_b32 {sG}, s2, 2\ns_add_u32 {sG}, {sG}, {S_W}')
    e('K0_fill:')
    for i in range(4): e(f'v_mov_b32 v{12 + i}, -1')
    e(f's_mul_i32 s12, {sG}, {FILL_PER_WAVE * 1024}\ns_add_u32 s12, s12, {WS_FILL}')
    for i in range(FILL_PER_WAVE):
        if i and i % 4 == 0: e('s_add_u32 s12, s12, 4096')
        e(f'buffer_store_dwordx4 v[12:15], v{L16}, {WS}, s12 offen offset:{(i % 4) * 1024}')
    if cfg.get('prof'):
        st(4)
        e('s_waitcnt vmcnt(0)')
        st(5)
        e(f's_waitcnt lgkmcnt(0)\ns_lshl_b32 s12, {sG}, 5\ns_add_u32 s12, s12, 0xf100000\ns_mov_b64 exec, 1')
        for i in range(6): e(f'v_mov_b32 v4, s{80 + 2 * i}\nbuffer_store_dword v4, off, {WS}, s12 offset:{4 * i}')
    e('K0_end:\ns_endpgm')
```

```python
from asmlib import *
from layout import *
import rec, bulk
from k0 import srd

def k1(e, cfg):
    bulk.SLEEP[0] = cfg.get('sleep', 0)
    e('s_cmp_ge_u32 s2, 256\ns_cbranch_scc1 K1_end')
    e('s_load_dwordx2 s[40:41], s[0:1], 72\ns_load_dwordx4 s[44:47], s[0:1], 88\ns_load_dwordx2 s[48:49], s[0:1], 104\ns_load_dwordx2 s[4:5], s[0:1], 112')
    e('s_getreg_b32 s9, hwreg(HW_REG_XCC_ID, 0, 3)')
    e('v_lshrrev_b32 v1, 6, v0\nv_readfirstlane_b32 s8, v1')
    e('s_waitcnt lgkmcnt(0)')
    e('s_mov_b32 s6, 0x10000000\ns_mov_b32 s7, 0x20000')
    srd(e, 28, 46, S * D * 2); srd(e, 32, 40, F * 2); srd(e, 36, 44, D * 2); srd(e, 92, 48, 256)
    e('s_cmp_lg_u32 s8, 0\ns_cbranch_scc1 K1_wt')
    e('s_lshl_b32 s22, s9, 2\nv_mov_b32 v3, s22\nv_mov_b32 v5, 1\nv_mov_b32 v6, 0\ns_mov_b64 exec, 1')
    e('buffer_atomic_add v5, v3, s[92:95], 0 offen sc0\ns_waitcnt vmcnt(0)\nds_write_b32 v6, v5\ns_waitcnt lgkmcnt(0)\ns_mov_b64 exec, -1')
    e('K1_wt:\ns_barrier\nv_mov_b32 v6, 0\nds_read_b32 v5, v6\ns_waitcnt lgkmcnt(0)\nv_readfirstlane_b32 s3, v5\ns_barrier')
    e(f's_mov_b32 s99, {cfg.get("spin", 1 << 21)}\ns_mov_b32 s98, 0')
    if cfg.get('prof'): e('s_memrealtime s[90:91]\ns_memtime s[82:83]')
    if cfg.get('prof'):
        for k in range(64, 80): e(f's_mov_b32 s{k}, 0')
    if cfg.get('trace'): e('s_lshl_b32 s84, s9, 5\ns_add_u32 s84, s84, s3\ns_lshl_b32 s84, s84, 12\ns_add_u32 s84, s84, 0xe000000')
    e('s_cmp_ge_u32 s3, 32\ns_cbranch_scc1 K1_end')
    e('s_cmp_ge_u32 s9, 2\ns_cbranch_scc1 K1_bulk')
    e('s_mov_b32 s11, s9\ns_cmp_ge_u32 s3, 30\ns_cbranch_scc1 K1_h\ns_cmp_ge_u32 s3, 16\ns_cbranch_scc1 K1_b')
    e('s_mov_b32 s10, s3')
    rec.rec_a(e, cfg)
    e('K1_b:\ns_sub_u32 s10, s3, 16')
    rec.rec_b(e, cfg)
    e('K1_h:\ns_sub_u32 s10, s3, 30')
    rec.rec_h(e, cfg)
    e('K1_bulk:')
    e('s_mov_b32 s12, s3\ns_cmp_eq_u32 s9, 7\ns_cbranch_scc1 K1_vq')
    e('s_sub_u32 s12, s3, 8\ns_cmp_ge_u32 s3, 8\ns_cbranch_scc1 K1_vq')
    e('s_mov_b32 s10, s3\ns_sub_u32 s23, s9, 2')
    bulk.role_mlp(e, cfg)
    e('K1_vq:')
    e('s_cmp_ge_u32 s12, 28\ns_cbranch_scc1 K1_end')
    e('s_mov_b32 s13, 0\ns_cmp_eq_u32 s9, 2\ns_cbranch_scc1 K1_v')
    e('s_lshl_b32 s13, s9, 1\ns_sub_u32 s13, s13, 2\ns_cmp_lt_u32 s12, 12\ns_cbranch_scc1 K1_v')
    e('s_sub_u32 s12, s12, 12\ns_sub_u32 s13, s9, 3\ns_mul_i32 s13, s13, 3\ns_lshr_b32 s10, s12, 2\ns_add_u32 s10, s10, s13')
    e('s_bfe_u32 s11, s12, 0x10001\ns_and_b32 s23, s12, 1')
    bulk.role_q(e, cfg)
    e('K1_v:')
    e('s_mul_i32 s14, s12, 43\ns_lshr_b32 s14, s14, 8\ns_add_u32 s10, s13, s14\ns_mul_i32 s14, s14, 6\ns_sub_u32 s14, s12, s14')
    e('s_cmp_ge_u32 s14, 3\ns_cselect_b32 s11, 1, 0\ns_mul_i32 s15, s11, 3\ns_sub_u32 s23, s14, s15')
    bulk.role_v(e, cfg)
    e('FAIL:\ns_mov_b64 exec, 1\nv_mov_b32 v3, 64\nv_mov_b32 v5, 1\nbuffer_atomic_add v5, v3, s[92:95], 0 offen')
    e('DONE:')
    if cfg.get('prof'):
        e('s_mov_b64 exec, 1\ns_memrealtime s[88:89]\ns_memtime s[80:81]\ns_waitcnt vmcnt(0) lgkmcnt(0)')
        e('s_lshl_b32 s12, s9, 5\ns_add_u32 s12, s12, s3\ns_lshl_b32 s12, s12, 2\ns_add_u32 s12, s12, s8\ns_lshl_b32 s12, s12, 6\ns_add_u32 s12, s12, 0xf000000\nv_mov_b32 v3, s12')
        for i, r in enumerate(['s90', 's88', 's98', 's99', 's82', 's80', 's80', 's80'] + ['s%d' % (64 + 2 * k) for k in range(8)]):
            e(f'v_mov_b32 v4, {r}\nbuffer_store_dword v4, v3, s[4:7], 0 offen offset:{4 * i}')
    e('K1_end:\ns_endpgm')
```

```python
from asmlib import *
from layout import *

WSR = 's[4:7]'
S_W = 's8'
S_ID = 's10'
S_LAY = 's11'
BIG = 0x7ff00000
DPPM = 'row_mask:0xf bank_mask:0xf'
NR = 8

def trace(e, cfg, ev, sitem, vt, wave=0):
    if not cfg.get('trace') or (cfg['trace'] == 'rec' and wave == 0 and vt != 20): return
    l = e.lab('tr')
    e(f's_cmp_lg_u32 {S_W}, {wave}\ns_cbranch_scc1 {l}')
    e(f's_memrealtime s[86:87]\ns_lshl_b32 s85, {sitem}, 5\ns_add_u32 s85, s85, s84\ns_waitcnt lgkmcnt(0)')
    e(f'v_mov_b32 v{vt}, s86\ns_mov_b64 exec, 1\nbuffer_store_dword v{vt}, off, {WSR}, s85 offset:{4 * ev}\ns_mov_b64 exec, -1')
    e(f'{l}:')

def cst(e, cfg, i):
    if cfg.get('cst') is True: e(f's_memtime s[{64 + 2 * i}:{65 + 2 * i}]')

def load_weights(e, nfrag, vl16, sbase, vbase, first=0):
    for i in range(nfrag):
        if i % 4 == 0 and i: e(f's_add_u32 {sbase}, {sbase}, 4096')
        e(f'buffer_load_dwordx4 {wreg((first + i) * 4, 4, vbase)}, v{vl16}, {WSR}, {sbase} offen offset:{(i % 4) * 1024}')

def sig_poll(e, vaddr, soff, stag, regs, mask, fail, cnt='s99', gap=7):
    n = len(regs)
    L = e.lab('sp'); Dn = e.lab('spd')
    if mask: e(f's_mov_b64 exec, {mask}')
    ld = lambda r: e(f'buffer_load_dword v{r}, v{vaddr}, {WSR}, {soff} offen sc1')
    for r in regs[:-1]:
        ld(r); e(f's_nop {gap}')
    e(f'{L}:')
    for i in range(n):
        ld(regs[(i + n - 1) % n])
        e(f's_waitcnt vmcnt({n - 1})')
        e(f'v_cmp_gt_u32 vcc, {stag}, v{regs[i]}')
        e(f's_cbranch_vccz {Dn}')
    e(f's_sub_u32 {cnt}, {cnt}, 1\ns_cbranch_scc1 {fail}\ns_branch {L}')
    e(f'{Dn}:')
    if mask: e('s_mov_b64 exec, -1')

def chk(regs, acc, first):
    out = []; r = list(regs)
    if first:
        out.append(f'v_max3_u32 v{acc}, v{r[0]}, v{r[1]}, v{r[2]}'); r = r[3:]
    while len(r) >= 2:
        out.append(f'v_max3_u32 v{acc}, v{acc}, v{r[0]}, v{r[1]}'); r = r[2:]
    if r: out.append(f'v_max_u32 v{acc}, v{acc}, v{r[0]}')
    return out

def interleave(e, main, fill, per=2):
    fill = list(fill)
    for m in main:
        e(m)
        for _ in range(per):
            if fill: e(fill.pop(0))
    for f in fill: e(f)

def rec_a(e, cfg):
    stamp = lambda e, i: cst(e, cfg, i)
    nsteps = cfg.get('nsteps', 63)
    VB = 120
    (L16, MKA, MKB, X0, X1, X2, IDX0, IDX1, LW, RD, PX, PM, SGP, SGS, CHK, LANE) = range(1, 17)
    SEL = 18
    PL = [0, 17, 22, 23]
    MF = 24; ACC = 52; XK = 80; MK = 112
    tmp = list(range(52, 62))
    sX, sMS, sMN, sP, sTag, sSigP, sSigS, sT, sT2 = 's12', 's13', 's14', 's15', 's16', 's17', 's18', 's19', 's20'
    e(f'v_and_b32 v{LANE}, 63, v0\nv_lshlrev_b32 v{L16}, 4, v{LANE}')
    e(f's_lshl_b32 {sT}, {S_ID}, 2\ns_add_u32 {sT}, {sT}, {S_W}\ns_mul_i32 {sT}, {sT}, {98 * 1024}')
    if WS_WA: e(f's_add_u32 {sT}, {sT}, {WS_WA}')
    sK = ['s%d' % (40 + i) for i in range(7)]
    e(f's_lshl_b32 {sT2}, {S_ID}, 2\ns_add_u32 {sT2}, {sT2}, {S_W}\ns_mul_i32 {sT2}, {sT2}, {cfg.get("rot", 1)}\ns_mul_i32 s47, {sT2}, 9363\ns_lshr_b32 s47, s47, 16\ns_mul_i32 s47, s47, 7\ns_sub_u32 {sT2}, {sT2}, s47')
    for i in range(7):
        e(f's_lshl_b32 {sK[i]}, {sT2}, 11\ns_add_u32 {sK[i]}, {sK[i]}, {sT}')
        e(f's_add_u32 {sT2}, {sT2}, 1\ns_cmp_eq_u32 {sT2}, 7\ns_cselect_b32 {sT2}, 0, {sT2}')
    e(f'v_mov_b32 v{MKA}, v{L16}')
    for t in range(7):
        for i in range(7):
            for hf in range(2):
                e(f'buffer_load_dwordx4 {wreg((t * 14 + 2 * i + hf) * 4, 4, VB)}, v{MKA}, {WSR}, {sK[i]} offen offset:{hf * 1024}')
        if t < 6: e(f'v_add_u32 v{MKA}, {14 * 1024}, v{MKA}')
    e(f's_mul_i32 {sT2}, {S_LAY}, {MA_LAYER}\ns_add_u32 {sT2}, {sT2}, {WS_MA}')
    for i in range(7): e(f's_sub_u32 {sK[i]}, {sK[i]}, {sT}\ns_lshr_b32 {sK[i]}, {sK[i]}, 1\ns_add_u32 {sK[i]}, {sK[i]}, {sT2}')
    g = lambda l: l >> 4
    c = lambda l: l & 15
    def g1(l, half): return 8 + ((2 * half + (g(l) >> 1)) if g(l) % 2 == 0 else 4 + (g(l) >> 1))
    lanefn(e, MKA, lambda l: (c(l) & 7) * 16 + 128 * (g(l) if c(l) < 8 else g1(l, 0)), LANE, tmp)
    lanefn(e, MKB, lambda l: (c(l) & 7) * 16 + 128 * (4 + g(l) if c(l) < 8 else g1(l, 1)), LANE, tmp)
    lanefn(e, X0, lambda l: c(l) * 16 + 512 * g(l), LANE, tmp)
    lanefn(e, X1, lambda l: c(l) * 16 + 512 * g1(l, 0), LANE, tmp)
    lanefn(e, X2, lambda l: c(l) * 16 + 512 * g1(l, 1), LANE, tmp)
    e(f's_mul_i32 {sT}, {S_W}, {14 * 128}')
    for r in (MKA, MKB): e(f'v_add_u32 v{r}, {sT}, v{r}')
    e(f's_mul_i32 {sT}, {S_W}, {14 * 512}')
    for r in (X0, X1, X2): e(f'v_add_u32 v{r}, {sT}, v{r}')
    lanefn(e, IDX0, lambda l: 0xeeeeeeee if l & 1 else 0x44444444, LANE, tmp)
    lanefn(e, IDX1, lambda l: (0xeeeeeeee if l & 1 else (0xee44ee44 if g(l) >= 2 else 0x44444444)), LANE, tmp)
    for rho in range(4):
        lanefn(e, SEL + rho, lambda l: 0x3f803f80 if ((l & 1) == rho >> 1 and (c(l) >> 1) == 2 * g(l) + (rho & 1)) else 0, LANE, tmp)
    e(f'v_lshlrev_b32 v{RD}, 2, v{LANE}\ns_mul_i32 {sT}, {S_W}, 768\nv_add_u32 v{LW}, {sT}, v{RD}')
    dl = lambda l: 8 * (c(l) >> 3) + 2 * (c(l) & 3) + ((c(l) >> 2) & 1)
    lanefn(e, RD, lambda l: (g(l) & 1) * 3072 + ((g(l) >> 1) * 16 + dl(l)) * 4, LANE, tmp)
    e(f's_and_b32 {sT}, {S_W}, 1\ns_lshl_b32 {sT2}, {sT}, 7\nv_add_u32 v{RD}, {sT2}, v{RD}')
    lanefn(e, PM, lambda l: g(l) * 16 + c(l) * 4 if c(l) < 4 else BIG, LANE, tmp)
    lanefn(e, PX, lambda l: (c(l) >> 3) * 256 + g(l) * 32 + (c(l) & 7) * 4, LANE, tmp)
    e(f's_lshl_b32 {sT2}, {sT}, 7\nv_add_u32 v{PX}, {sT2}, v{PX}\ns_lshl_b32 {sT2}, {sT}, 6\nv_add_u32 v{PM}, {sT2}, v{PM}')
    e(f's_and_b32 s21, {S_ID}, 3\ns_lshr_b32 {sT}, {S_ID}, 2\ns_mul_i32 {sT}, {sT}, 2560\ns_lshl_b32 {sT2}, s21, 9\ns_add_u32 {sT2}, {sT2}, {sT}\nv_add_u32 v{PX}, {sT2}, v{PX}')
    e(f's_lshl_b32 {sT2}, s21, 7\ns_add_u32 {sT2}, {sT2}, {sT}\ns_add_u32 {sT2}, {sT2}, 2048\nv_add_u32 v{PM}, {sT2}, v{PM}')
    e(f'v_min_u32 v{SGP}, 55, v{LANE}\nv_lshlrev_b32 v{SGP}, 2, v{SGP}\ns_and_b32 {sT}, {S_ID}, {NR - 1}\ns_lshl_b32 {sT}, {sT}, 8\nv_add_u32 v{SGP}, {sT}, v{SGP}')
    lanefn(e, SGS, lambda l: l * 256 if l < NR else BIG, LANE, tmp)
    e(f's_lshl_b32 {sT}, {S_ID}, 1\ns_and_b32 {sT2}, {S_W}, 1\ns_add_u32 {sT}, {sT}, {sT2}\ns_lshl_b32 {sT}, {sT}, 2\nv_add_u32 v{SGS}, {sT}, v{SGS}')
    e(f's_mul_i32 {sT}, {S_LAY}, {MA_LAYER}\ns_add_u32 {sMS}, {sT}, {WS_MA}\ns_add_u32 {sMN}, {sMS}, 7168')
    e(f's_mul_i32 {sT}, {S_LAY}, {64 * PR_STEP}\ns_add_u32 {sP}, {sT}, {WS_PR}')
    e(f's_lshl_b32 {sT}, {S_LAY}, 13\ns_add_u32 {sSigP}, {sT}, {WS_SIG}\ns_add_u32 {sSigS}, {sSigP}, 4096')
    e(f's_mul_i32 {sX}, {S_LAY}, {X_LAYER}\ns_add_u32 {sX}, {sX}, {WS_XN0}')
    e(f's_mov_b32 {sTag}, 1')
    sV = 's21'; TCH = 0; sVer = 's22'
    e(f's_mov_b32 {sVer}, 0')
    PL = [17, 22, 23, LANE]
    def xload(f0=0):
        for kt in range(2):
            for grp in range(2):
                for half in range(2):
                    f = kt * 4 + grp * 2 + half
                    va = X0 if grp == 0 else (X1, X2)[half]
                    off = kt * 256 + (2048 if (grp == 0 and half == 1) else 0)
                    if f >= f0: e(f'buffer_load_dwordx4 {vr(XK + 4 * f, 4)}, v{va}, {WSR}, {sX} offen offset:{off} sc1')
    xload()
    XS = 17; sM0 = 's21'; sXn = 's24'
    PL = [22, 23, LANE, CHK]
    e(f's_lshl_b32 {sM0}, {S_W}, 13\ns_add_u32 {sM0}, {sM0}, 8192\nv_add_u32 v{XS}, {sM0}, v{L16}')
    xdma = []
    for kt in range(2):
        for grp in range(2):
            for half in range(2):
                f = kt * 4 + grp * 2 + half
                va = X0 if grp == 0 else (X1, X2)[half]
                off = kt * 256 + (2048 if (grp == 0 and half == 1) else 0)
                xdma.append((f's_add_i32 m0, {sM0}, {f * 1024 - off}', f'buffer_load_dwordx4 v{va}, {WSR}, {sX} offen offset:{off} sc1 lds'))
    TAG = 0
    def poison():
        e(f'v_mov_b32 v{CHK}, -1')
        for k in range(6): e(f'ds_write2st64_b32 v{RD}, v{CHK}, v{CHK} offset0:{2 * k} offset1:{2 * k + 1}')
        e('s_waitcnt lgkmcnt(0)')
    poison()
    W = lambda t, kb: wreg((t * 7 + kb) * 8, 8, VB)
    S = lambda t, kb: f'v_smfmac_f32_16x16x64_bf16 {vr(ACC + 4 * t, 4)}, {vr(MF + 4 * kb, 4)}, {W(t, kb)}, v{IDX0}'
    pk = lambda d, a: f'v_cvt_pk_bf16_f32 v{d}, v{a}, v{a + 1}'
    e('A_loop:')
    for i in range(0, 28, 2): e(f'v_mov_b64 {vr(ACC + i, 2)}, 0')
    e('A_xchk:')
    ck = chk(range(XK, XK + 32), CHK, True)
    e('s_waitcnt vmcnt(0) lgkmcnt(0)')
    for x in ck: e(x)
    e(f'v_cmp_eq_u32 vcc, -1, v{CHK}\ns_cbranch_vccnz A_xbad')
    e(f's_add_u32 {sX}, {sX}, 28672')
    stamp(e, 0)
    if cfg.get('cst'): e(f's_cmp_lg_u32 {sTag}, 9\ns_cbranch_scc1 A_c9\ns_memtime s[78:79]\nA_c9:')
    e(f'v_mov_b32 v{TAG}, {sTag}\ns_add_u32 {sT}, {sMS}, 4096')
    e(f's_cmp_lg_u32 {S_W}, 3\ns_cbranch_scc1 A_go')
    sig_poll(e, SGP, sSigP, sTag, PL[:cfg.get('pd', 4)], 0, 'FAIL')
    if cfg.get('dA'): e(f's_nop {cfg["dA"] - 1}')
    e('A_go:\ns_barrier')
    e('A_retry:')
    stamp(e, 1)
    ldm = lambda kb: f'buffer_load_dwordx4 {vr(MF + 4 * kb, 4)}, v{L16}, {WSR}, {sK[kb]} offen sc1'
    gap = cfg.get('gap', 2)
    for kb in range(4):
        e(ldm(kb))
        if kb < 3 and gap: e(f's_nop {gap}')
    later = [ldm(4), ldm(5), ldm(6),
             f'buffer_load_dwordx4 {vr(MK, 4)}, v{MKA}, {WSR}, {sMN} offen sc1',
             f'buffer_load_dwordx4 {vr(MK + 4, 4)}, v{MKB}, {WSR}, {sMN} offen sc1']
    z2 = lambda r: f'v_mov_b64 {vr(r, 2)}, 0'
    e('s_waitcnt vmcnt(3)')
    stamp(e, 2)
    for t in range(7):
        e(S(t, 0))
        if t in (0, 2, 4): e(later.pop(0))
    e('s_waitcnt vmcnt(5)')
    for t in range(7):
        e(S(t, 1))
        if t in (0, 3): e(later.pop(0))
    e('s_waitcnt vmcnt(6)')
    interleave(e, [S(t, 2) for t in range(7)], [z2(MF + i) for i in (0, 2, 4, 6)], 1)
    e('s_waitcnt vmcnt(5)')
    interleave(e, [S(t, 3) for t in range(7)], [z2(MF + i) for i in (8, 10)], 1)
    e('s_waitcnt vmcnt(2)')
    stamp(e, 3)
    T = lambda d, a: f'v_mfma_f32_16x16x32_bf16 {vr(d, 4)}, {vr(a, 4)}, {vr(SEL, 4)}, 0'
    C = lambda d, a, b, idx: f'v_smfmac_f32_16x16x64_bf16 {vr(d, 4)}, {vr(a, 4)}, {vr(b, 8)}, v{idx}'
    S0, S1, S2A, S2B = MF, MF + 4, MF + 8, MF + 12
    E0, E1 = ACC, ACC + 4
    A = ACC
    add = lambda d, a: f'v_add_f32 v{d}, v{a}, v{a + 1}'
    seq = [
        (S(6, 4), z2(MF + 12)), (S(6, 5), z2(MF + 14)), (S(6, 6), ''),
        (S(4, 4), ''), (S(4, 5), pk(A + 24, A + 24)), (S(4, 6), pk(A + 25, A + 26)),
        (S(5, 4), ''),
        (f'v_mfma_f32_16x16x16_bf16 {vr(A + 24, 4)}, {vr(A + 24, 2)}, {vr(SEL, 2)}, 0', pk(A + 16, A + 16) + '\n' + pk(A + 17, A + 18)),
        (S(5, 5), ''), (S(5, 6), ''),
        (S(0, 4), ''), (S(0, 5), pk(A + 18, A + 20)), (S(0, 6), pk(A + 19, A + 22)),
        (S(1, 4), ''),
        (T(A + 20, A + 16), pk(A + 18, A + 24) + '\n' + pk(A + 19, A + 26)),
        (S(1, 5), pk(A + 0, A + 0)), (S(1, 6), pk(A + 16, A + 20)),
        (S(2, 4), pk(A + 17, A + 22)), (S(2, 5), pk(A + 1, A + 2)), (S(2, 6), pk(A + 2, A + 4)),
        (S(3, 4), pk(A + 3, A + 6)), (S(3, 5), pk(A + 8, A + 8)), (S(3, 6), pk(A + 9, A + 10)),
        (T(A + 4, A + 0), 's_waitcnt vmcnt(NDMA)'),
        (C(S2B, A + 16, MK, IDX1), pk(A + 10, A + 12) + '\n' + pk(A + 11, A + 14)),
        (C(S0, A + 16, XK + 8, IDX1), pk(A + 0, A + 4)),
        (T(A + 12, A + 8), pk(A + 1, A + 6) + '\n' + add(S2B, S2B)),
        (C(S1, A + 16, XK + 24, IDX1), add(S2B + 2, S2B + 2)),
    ]
    xd = list(xdma)
    xpos = cfg.get('xpos', (2, 6, 10, 13))
    nd = 0
    for k, (m, f) in enumerate(seq):
        if k in xpos: e(xd[0][0])
        e(m)
        if k in xpos: e(xd.pop(0)[1]); nd += 1
        e(f.replace('NDMA', str(nd)))
    nlate = len(xd)
    e(f's_mov_b32 vcc_lo, 0xff00ff00\ns_mov_b32 vcc_hi, 0xff00ff00')
    e(pk(A + 2, A + 12)); e(pk(A + 3, A + 14))
    e(C(S2A, A, MK, IDX0))
    e(C(S0, A, XK, IDX0))
    e(C(S1, A, XK + 16, IDX0))
    wr = lambda kt, a, b: e(f'ds_write2st64_b32 v{LW}, v{a}, v{b} offset0:{kt} offset1:{12 + kt}')
    e(add(S2A, S2A)); e(add(S2A + 2, S2A + 2))
    e(f'v_cndmask_b32 v{S2A}, v{S2A}, v{S2B}, vcc\nv_cndmask_b32 v{S2A + 2}, v{S2A + 2}, v{S2B + 2}, vcc')
    e(add(S0, S0)); wr(2, S2A, S2A + 2); e(add(S0 + 2, S0 + 2))
    e(f'v_cmp_u_f32 vcc, v{S2A}, v{S2A + 2}')
    e(add(S1, S1)); wr(0, S0, S0 + 2); e(add(S1 + 2, S1 + 2))
    wr(1, S1, S1 + 2)
    e('s_cbranch_vccnz A_bad')
    e('A_ok:')
    stamp(e, 4)
    if cfg.get('ldsw'): e('s_waitcnt lgkmcnt(0)')
    e(f's_cmp_ge_u32 {S_W}, 2\ns_barrier\ns_cbranch_scc1 A_other')
    R = ACC; MX = R + 4
    sp = cfg.get('sigA', 1)
    pa = lambda d, a, b: e(f'v_pk_add_f32 {vr(d, 2)}, {vr(a, 2)}, {vr(b, 2)}')
    def softmax(fast):
        def sg(k):
            if fast and k == sp: e(f'buffer_store_dword v{TAG}, v{SGS}, {WSR}, {sSigS} offen')
        e(f'ds_read2st64_b32 {vr(R + 2, 2)}, v{RD} offset0:2 offset1:5\nds_read2st64_b32 {vr(R + 6, 2)}, v{RD} offset0:8 offset1:11')
        for w in range(4): e(f'ds_read2st64_b32 {vr(R + 8 + 2 * w, 2)}, v{RD} offset0:{3 * w} offset1:{3 * w + 1}')
        sg(0)
        e('s_waitcnt lgkmcnt(4)')
        pa(R + 2, R + 2, R + 6)
        e('s_waitcnt lgkmcnt(2)')
        e(f'v_add_f32 v{R + 2}, v{R + 2}, v{R + 3}')
        pa(R + 8, R + 8, R + 10)
        e('s_waitcnt lgkmcnt(0)')
        if fast: stamp(e, 5)
        pa(R + 12, R + 12, R + 14)
        e(f'v_add_f32_dpp v{R + 2}, v{R + 2}, v{R + 2} row_ror:8 {DPPM}')
        pa(R, R + 8, R + 12)
        e(f'v_max3_f32 v{MX}, v{R}, v{R + 1}, v{R + 2}')
        for k, n in enumerate((1, 2, 4, 8)):
            sg(1 + k); e(f'v_max_f32_dpp v{MX}, v{MX}, v{MX} row_ror:{n} {DPPM}')
        e(f'v_sub_f32 v{R + 2}, v{R + 2}, v{MX}')
        e(f'v_pk_add_f32 {vr(R, 2)}, {vr(R, 2)}, {vr(MX, 2)} op_sel_hi:[1,0] neg_lo:[0,1] neg_hi:[0,1]')
        for k in (2, 0, 1): e(f'v_exp_f32 v{R + k}, v{R + k}')
        e(f'v_fma_f32 v{MX}, v{R + 2}, 0.5, v{R}\nv_add_f32 v{MX}, v{MX}, v{R + 1}')
        e(f'v_mov_b32_dpp v{R + 3}, v{R + 2} row_ror:12 {DPPM}')
        for k, n in enumerate((1, 2, 4, 8)):
            sg(5 + k); e(f'v_add_f32_dpp v{MX}, v{MX}, v{MX} row_ror:{n} {DPPM}')
        e(f'v_rcp_f32 v{MX + 2}, v{MX}')
        if fast: e(f'v_cmpx_o_f32 vcc, v{MX}, v{MX}')
        e(f'v_pk_mul_f32 {vr(R, 2)}, {vr(R, 2)}, {vr(MX + 2, 2)} op_sel_hi:[1,0]')
        e(f'v_cvt_pk_bf16_f32 v{R}, |v{R}|, |v{R + 1}|')
        e(f'v_pk_mul_f32 {vr(R + 2, 2)}, {vr(R + 2, 2)}, {vr(MX + 2, 2)} op_sel_hi:[1,0]')
        e(f'buffer_store_dword v{R}, v{PX}, {WSR}, {sP} offen')
        e(f'v_cvt_pk_bf16_f32 v{R + 2}, |v{R + 2}|, |v{R + 3}|')
        e(f'buffer_store_dword v{R + 2}, v{PM}, {WSR}, {sP} offen')
    softmax(True)
    stamp(e, 6)
    e('s_cmp_lg_u64 exec, -1\ns_mov_b64 exec, -1\ns_barrier\ns_cbranch_scc1 A_sbad')
    e('A_sok:')
    poison()
    e('s_branch A_next')
    e('A_sbad:')
    e('s_add_u32 s98, s98, 0x10000\ns_nop 4')
    softmax(False)
    e('s_branch A_sok')
    e('A_other:')
    e('s_waitcnt lgkmcnt(0)\ns_barrier')
    e('A_next:')
    xload(8 - nlate)
    e(f's_waitcnt vmcnt({nlate})')
    for f in range(8 - nlate): e(f'ds_read_b128 {vr(XK + 4 * f, 4)}, v{XS} offset:{f * 1024}')
    trace(e, cfg, 0, sTag, CHK, 2)
    for i in range(7): e(f's_add_u32 {sK[i]}, {sK[i]}, {MA_STEP}')
    e(f's_add_u32 {sMN}, {sMN}, {MA_STEP}\ns_add_u32 {sP}, {sP}, {PR_STEP}\ns_add_u32 {sTag}, {sTag}, 1')
    e(f's_cmp_le_u32 {sTag}, {nsteps}\ns_cbranch_scc1 A_loop')
    e('s_branch DONE')
    e('A_xbad:')
    xload()
    e('s_sub_u32 s99, s99, 1\ns_cbranch_scc1 FAIL\ns_branch A_xchk')
    e('A_bad:')
    e(f's_cmp_eq_u32 {sVer}, {sTag}\ns_cbranch_scc1 A_ok')
    e('s_add_u32 s98, s98, 1')
    e('A_bad1:')
    for kb in range(7): e(ldm(kb))
    e(f'buffer_load_dwordx4 {vr(MK, 4)}, v{MKA}, {WSR}, {sMN} offen sc1')
    e(f'buffer_load_dwordx4 {vr(MK + 4, 4)}, v{MKB}, {WSR}, {sMN} offen sc1')
    e('s_sub_u32 s99, s99, 1\ns_cbranch_scc1 FAIL')
    e('s_waitcnt vmcnt(0)')
    for x in chk(list(range(MF, MF + 28)) + list(range(MK, MK + 8)), CHK, True): e(x)
    e(f'v_cmp_eq_u32 vcc, -1, v{CHK}\ns_cbranch_vccnz A_bad1')
    e(f's_mov_b32 {sVer}, {sTag}')
    for i in range(0, 28, 2): e(z2(ACC + i))
    e('s_branch A_retry')

def rec_b(e, cfg):
    stamp = lambda e, i: cst(e, cfg, i)
    nsteps = cfg.get('nsteps', 63)
    VB = 120
    (L16, L8, IDX0, LW, RD, OS, ON, SGP, SGS, CHK, LANE, LWT) = range(1, 13)
    PL = [13, 14, 15, 0]
    MF = 16; VX = 44; ACC = 76; VM = 84; WT = 92
    PP = MF
    tmp = list(range(44, 54))
    sV, sMS, sMN, sP, sTag, sSigP, sSigS, sT, sT2 = 's12', 's13', 's14', 's15', 's16', 's17', 's18', 's19', 's20'
    LM = 57344; LX = 65536
    g = lambda l: l >> 4
    c = lambda l: l & 15
    e(f'v_and_b32 v{LANE}, 63, v0\nv_lshlrev_b32 v{L16}, 4, v{LANE}')
    e(f's_lshl_b32 {sT}, {S_ID}, 2\ns_add_u32 {sT}, {sT}, {S_W}\ns_mul_i32 {sT}, {sT}, {112 * 1024}\ns_add_u32 {sT}, {sT}, {WS_WB}')
    load_weights(e, 98, L16, sT, VB)
    e(f's_add_u32 {sT}, {sT}, 2048\ns_mul_i32 {sT2}, {S_W}, 14336')
    for i in range(14):
        e(f's_add_u32 m0, {sT2}, {i * 1024}\nbuffer_load_dwordx4 v{L16}, {WSR}, {sT} offen lds\ns_add_u32 {sT}, {sT}, 1024')
    e(f'v_add_u32 v{LWT}, {sT2}, v{L16}')
    lanefn(e, IDX0, lambda l: 0xeeeeeeee if l & 1 else 0x44444444, LANE, tmp)
    e(f'v_lshlrev_b32 v{RD}, 2, v{LANE}\ns_lshl_b32 {sT}, {S_W}, 9\ns_add_u32 {sT}, {sT}, {LX}\nv_add_u32 v{LW}, {sT}, v{RD}')
    lm = lambda l: l >> 3
    lp = lambda l: (l >> 2) & 1
    lq_ = lambda l: l & 3
    lanefn(e, RD, lambda l: LX + (lm(l) & 1) * 2048 + ((lm(l) >> 1) * 16 + 2 * lq_(l) + lp(l)) * 4, LANE, tmp)
    e(f's_and_b32 {sT}, {S_W}, 1\ns_lshl_b32 {sT2}, {sT}, 5\nv_add_u32 v{RD}, {sT2}, v{RD}')
    lanefn(e, ON, lambda l: (lq_(l) >> 1) * 128 + lm(l) * 16 + (2 * (lq_(l) & 1) + lp(l)) * 4, LANE, tmp)
    e(f's_lshl_b32 {sT2}, {S_ID}, 1\ns_add_u32 {sT2}, {sT2}, {sT}\ns_lshl_b32 {sT2}, {sT2}, 8\nv_add_u32 v{ON}, {sT2}, v{ON}\nv_lshl_add_u32 v{OS}, v{LANE}, 2, {sT2}')
    e(f'v_lshlrev_b32 v{L8}, 3, v{LANE}')
    SGM = 109; TAG = 108
    e(f's_and_b32 {sT}, {S_ID}, {NR - 1}\ns_lshl_b32 {sT}, {sT}, 8')
    e(f'v_min_u32 v{SGP}, 31, v{LANE}\nv_lshl_add_u32 v{SGP}, v{SGP}, 2, {sT}')
    e(f'v_min_u32 v{SGM}, 56, v{LANE}\nv_lshl_add_u32 v{SGM}, v{SGM}, 2, {sT}')
    lanefn(e, SGS, lambda l: l * 256 if l < NR else BIG, LANE, tmp)
    e(f's_lshl_b32 {sT}, {S_ID}, 2\ns_add_u32 {sT}, {sT}, {S_W}\ns_lshl_b32 {sT}, {sT}, 2\nv_add_u32 v{SGS}, {sT}, v{SGS}')
    e(f's_mul_i32 {sT}, {S_LAY}, {MA_LAYER}\ns_add_u32 {sMS}, {sT}, {WS_MA}\ns_add_u32 {sMN}, {sMS}, 7168')
    e(f's_mul_i32 {sT}, {S_LAY}, {64 * PR_STEP}\ns_add_u32 {sP}, {sT}, {WS_PR}')
    e(f's_mul_i32 {sT}, {S_W}, 2560\ns_add_u32 {sP}, {sP}, {sT}')
    e(f's_lshl_b32 {sT}, {S_LAY}, 13\ns_add_u32 {sSigS}, {sT}, {WS_SIG}\ns_add_u32 {sSigP}, {sSigS}, 4096')
    e(f's_mul_i32 {sV}, {S_LAY}, {VX_LAYER}\ns_add_u32 {sV}, {sV}, {WS_VX}')
    e(f's_lshl_b32 {sT}, {S_ID}, 2\ns_add_u32 {sT}, {sT}, {S_W}\ns_lshl_b32 {sT}, {sT}, 13\ns_add_u32 {sV}, {sV}, {sT}')
    e(f's_mov_b32 {sTag}, 1')
    e('s_waitcnt vmcnt(0)')
    def poison():
        e(f'v_mov_b32 v{CHK}, -1')
        for k in range(4): e(f'ds_write2st64_b32 v{RD}, v{CHK}, v{CHK} offset0:{2 * k} offset1:{2 * k + 1}')
        e('s_waitcnt lgkmcnt(0)')
    poison()
    AC7 = 110
    z2 = lambda r: f'v_mov_b64 {vr(r, 2)}, 0'
    e('B_loop:')
    stamp(e, 0)
    e(f's_add_u32 {sT2}, {sV}, 4096\ns_add_u32 {sT}, {sMS}, 4096')
    vl = [f'buffer_load_dwordx4 {vr(VX + 4 * f, 4)}, v{L16}, {WSR}, {sV if f < 4 else sT2} offen offset:{(f % 4) * 1024} sc1' for f in range(8)]
    ldm = lambda kb: f'buffer_load_dwordx4 {vr(MF + 4 * kb, 4)}, v{L16}, {WSR}, {sMS if kb < 4 else sT} offen offset:{(kb % 4) * 1024} sc1'
    e(f's_cmp_lg_u32 {S_W}, 3\ns_cbranch_scc1 B_w012')
    e(f's_mov_b32 m0, {LM}')
    sig_poll(e, SGM, sSigS, sTag, PL[:cfg.get('pdm', 3)], 0, 'FAIL')
    if cfg.get('dBM', 2): e(f's_nop {cfg.get("dBM", 2) - 1}')
    for kb in range(7):
        if kb == 4: e(f's_mov_b32 m0, {LM + 4096}')
        e(f'buffer_load_dwordx4 v{L16}, {WSR}, {sMS if kb < 4 else sT} offen offset:{(kb % 4) * 1024} sc1 lds')
    e('B_w012:')
    e('s_barrier')
    acc = lambda t: AC7 if t == 7 else ACC + 4 * (t & 1)
    W = lambda t, kb: wreg((t * 7 + kb) * 8, 8, VB) if t < 7 else vr(WT + 8 * (kb & 1), 8)
    S = lambda t, kb: f'v_smfmac_f32_16x16x64_bf16 {vr(acc(t), 4)}, {vr(MF + 4 * kb, 4)}, {W(t, kb)}, v{IDX0}'
    wrd = lambda kb: [f'ds_read_b128 {vr(WT + 8 * (kb & 1) + 4 * i, 4)}, v{LWT} offset:{(2 * kb + i) * 1024}' for i in range(2)]
    nv0 = cfg.get('nv0', 8)
    for x in vl[:nv0]: e(x)
    def vinit():
        for x in wrd(0) + wrd(1): e(x)
        for r in (ACC, ACC + 2, ACC + 4, ACC + 6, AC7, AC7 + 2): e(z2(r))
    vinit()
    e(f's_waitcnt vmcnt({nv0})\ns_barrier')
    stamp(e, 1)
    for kb in range(7): e(f'ds_read_b128 {vr(MF + 4 * kb, 4)}, v{L16} offset:{LM + kb * 1024}')
    e('B_m1:')
    def post(t):
        a = acc(t); hh, ct = t >> 1, t & 1
        return [f'v_add_f32 v{a}, v{a}, v{a + 1}', f'v_add_f32 v{a + 2}, v{a + 2}, v{a + 3}' + (f'\nv_cmp_u_f32 vcc, v{a}, v{a + 2}' if t == 0 else ''),
                f'v_cvt_pk_bf16_f32 v{VM + 4 * ct + (0, 2, 1, 3)[hh]}, v{a}, v{a + 2}'] + ([z2(a), z2(a + 2)] if t < 7 else [])
    e('s_waitcnt lgkmcnt(6)')
    e(S(7, 0))
    for t in range(7):
        fill = (post(t - 1) if t else (vl[nv0:] + [''] * 5)[:5]) + (wrd(t + 2) if t < 5 else [])
        for kb in range(7):
            if t == 0 and kb: e(f's_waitcnt lgkmcnt({6 - kb if kb < 6 else 1})')
            e(S(t, kb))
            if fill: e(fill.pop(0))
        if t < 6:
            e(f's_waitcnt lgkmcnt({2 if t < 5 else 0})')
            e(S(7, t + 1))
        if t == 1: e('s_cbranch_vccnz B_mbad\nB_mok:')
    e(f's_add_u32 {sMS}, {sMS}, {MA_STEP}\ns_add_u32 {sMN}, {sMN}, {MA_STEP}')
    stamp(e, 2)
    e(f's_cmp_lg_u32 {S_W}, 3\ns_cbranch_scc1 B_go')
    sig_poll(e, SGP, sSigP, sTag, PL[:cfg.get('pd', 4)], 0, 'FAIL')
    if cfg.get('dB'): e(f's_nop {cfg["dB"] - 1}')
    e('B_go:\ns_barrier')
    sp = cfg.get('sigB', 2)
    def sg(k):
        if k == sp: e(f'buffer_store_dword v{TAG}, v{SGS}, {WSR}, {sSigS} offen')
    stamp(e, 4)
    gp = cfg.get('gapB', 2)
    def ldp():
        e(f'buffer_load_dwordx4 {vr(PP, 4)}, v{L16}, {WSR}, {sP} offen sc1\ns_nop {gp}')
        e(f'buffer_load_dwordx4 {vr(PP + 4, 4)}, v{L16}, {WSR}, {sP} offen offset:1024 sc1\ns_nop {gp}')
        e(f'buffer_load_dwordx2 {vr(PP + 8, 2)}, v{L8}, {WSR}, {sP} offen offset:2048 sc1')
    ldp()
    for x in post(6) + post(7): e(x)
    e(f's_add_u32 {sT}, {sTag}, 1\nv_mov_b32 v{TAG}, {sT}')
    for n, prs in ((32, ((0, 1), (2, 3))), (16, ((0, 2), (1, 3)))):
        for ct in range(2):
            for a, b in prs: e(f'v_permlane{n}_swap_b32 v{VM + 4 * ct + a}, v{VM + 4 * ct + b}')
    e('B_retry:')
    O = lambda pp, ct: f'v_smfmac_f32_16x16x64_bf16 {vr(ACC + 4 * ct, 4)}, {vr(PP + 4 * pp, 4)}, {vr(VX + 16 * pp + 8 * ct, 8)}, v{IDX0}'
    e('s_waitcnt vmcnt(2)')
    e(O(0, 0)); e(O(0, 1))
    e('s_waitcnt vmcnt(1)')
    e(O(1, 0)); e(O(1, 1))
    e('s_waitcnt vmcnt(0)')
    stamp(e, 5)
    e(f'v_smfmac_f32_16x16x32_bf16 {vr(ACC, 4)}, {vr(PP + 8, 2)}, {vr(VM, 4)}, v{IDX0}')
    sg(0)
    e(f'v_smfmac_f32_16x16x32_bf16 {vr(ACC + 4, 4)}, {vr(PP + 8, 2)}, {vr(VM + 4, 4)}, v{IDX0}')
    sg(1)
    E = WT + 4
    e(f'v_add_f32 v{E}, v{ACC}, v{ACC + 1}\nv_add_f32 v{E + 2}, v{ACC + 2}, v{ACC + 3}')
    e(f'ds_write2st64_b32 v{LW}, v{E}, v{E + 2} offset0:0 offset1:8')
    e(f'v_cmp_u_f32 vcc, v{E}, v{E + 2}')
    e(f'v_add_f32 v{E + 1}, v{ACC + 4}, v{ACC + 5}\nv_add_f32 v{E + 3}, v{ACC + 6}, v{ACC + 7}')
    e(f'ds_write2st64_b32 v{LW}, v{E + 1}, v{E + 3} offset0:1 offset1:9')
    e('s_cbranch_vccnz B_bad')
    e('B_ok:')
    sg(2)
    if cfg.get('ldsw'): e('s_waitcnt lgkmcnt(0)')
    e(f's_cmp_ge_u32 {S_W}, 2\ns_barrier\ns_cbranch_scc1 B_oth')
    pa = lambda d, a, b: e(f'v_pk_add_f32 {vr(d, 2)}, {vr(a, 2)}, {vr(b, 2)}')
    def final(fast):
        for w in range(4): e(f'ds_read2st64_b32 {vr(ACC + 2 * w, 2)}, v{RD} offset0:{2 * w} offset1:{2 * w + 1}')
        if fast: sg(3)
        e('s_waitcnt lgkmcnt(2)')
        pa(ACC, ACC, ACC + 2)
        e('s_waitcnt lgkmcnt(0)')
        pa(ACC + 4, ACC + 4, ACC + 6); pa(ACC, ACC, ACC + 4)
        e(f'v_cvt_pk_bf16_f32 v{E}, v{ACC}, v{ACC + 1}')
        e(f'v_cmpx_o_f32 vcc, v{ACC}, v{ACC + 1}' if fast else f'v_min_u32 v{E}, -2, v{E}')
        e(f'buffer_store_dword v{E}, v{OS}, {WSR}, {sMS} offen')
        e(f'buffer_store_dword v{E}, v{ON}, {WSR}, {sMN} offen')
    final(True)
    stamp(e, 6)
    e('s_cmp_lg_u64 exec, -1\ns_mov_b64 exec, -1\ns_barrier\ns_cbranch_scc0 B_fok')
    e('s_add_u32 s98, s98, 0x1000000')
    final(False)
    e('B_fok:')
    poison()
    e('s_branch B_next')
    e('B_oth:')
    sg(3)
    e('s_waitcnt lgkmcnt(0)\ns_barrier')
    e('B_next:')
    trace(e, cfg, 0, sTag, 115, 2)
    e(f's_add_u32 {sP}, {sP}, {PR_STEP}\ns_add_u32 {sV}, {sV}, {VX_SEG}\ns_add_u32 {sTag}, {sTag}, 1')
    e(f's_cmp_le_u32 {sTag}, {nsteps}\ns_cbranch_scc1 B_loop')
    e('s_branch DONE')
    e('B_bad:')
    for x in chk(range(PP, PP + 10), CHK, True): e(x)
    e(f'v_cmp_eq_u32 vcc, -1, v{CHK}\ns_cbranch_vccz B_ok')
    e('s_add_u32 s98, s98, 1')
    ldp()
    for i in range(0, 8, 2): e(z2(ACC + i))
    e('s_sub_u32 s99, s99, 1\ns_cbranch_scc1 FAIL\ns_branch B_retry')
    e('B_mbad:')
    for x in chk(range(MF, MF + 28), CHK, True): e(x)
    e(f'v_cmp_eq_u32 vcc, -1, v{CHK}\ns_cbranch_vccz B_mok')
    e('s_add_u32 s98, s98, 0x10000')
    for kb in range(7): e(ldm(kb))
    e('s_waitcnt lgkmcnt(0)')
    vinit()
    e('s_sub_u32 s99, s99, 1\ns_cbranch_scc1 FAIL\ns_waitcnt vmcnt(0) lgkmcnt(0)\ns_branch B_m1')

def rec_h(e, cfg):
    nsteps = cfg.get('nsteps', 63)
    LANE, L128, L4, L16, SGS = 1, 2, 3, 4, 5
    sF, sSig, sX, sTag, sT, sD, sDs = 's12', 's13', 's14', 's16', 's19', 's21', 's22'
    e(f'v_and_b32 v{LANE}, 63, v0')
    e(f's_lshl_b32 {sSig}, {S_LAY}, 13\ns_add_u32 {sSig}, {sSig}, {WS_SIG}')
    e(f's_cmp_eq_u32 {S_ID}, 1\ns_cbranch_scc1 H_fwd')
    e(f'v_lshlrev_b32 v{L128}, 7, v{LANE}')
    e(f'v_min_u32 v{L4}, 55, v{LANE}\nv_lshlrev_b32 v{L4}, 2, v{L4}')
    e(f'v_lshlrev_b32 v{SGS}, 8, v{LANE}')
    e(f's_lshl_b32 {sF}, {S_LAY}, 14\ns_add_u32 {sF}, {sF}, {WS_VF}')
    e(f's_mov_b32 {sTag}, 1')
    e(f's_lshl_b32 {sT}, {S_W}, 13\ns_mul_i32 {sX}, {S_LAY}, {X_LAYER}\ns_add_u32 {sX}, {sX}, {WS_XN0 + TILE}\ns_add_u32 {sX}, {sX}, {sT}')
    e(f's_mul_i32 {sD}, {S_LAY}, {64 * PR_STEP}\ns_add_u32 {sD}, {sD}, {WS_PR}\ns_add_u32 {sD}, {sD}, {sT}\ns_mov_b32 {sDs}, {PR_STEP}')
    e(f's_cmp_lt_u32 {S_W}, 2\ns_cbranch_scc1 H_loop')
    e(f's_mul_i32 {sD}, {S_LAY}, {MA_LAYER}\ns_add_u32 {sD}, {sD}, {WS_MA + MA_STEP}\ns_sub_u32 {sT}, {S_W}, 2\ns_mul_i32 {sT}, {sT}, 6144\ns_add_u32 {sD}, {sD}, {sT}\ns_mov_b32 {sDs}, {MA_STEP}')
    e('H_loop:')
    e(f'buffer_load_dword v11, v{L4}, {WSR}, {sF} offen sc1')
    e('s_sub_u32 s99, s99, 1\ns_cbranch_scc1 FAIL')
    e('s_waitcnt vmcnt(0)')
    e('v_cmp_eq_u32 vcc, 0, v11\ns_cbranch_vccnz H_loop')
    e(f's_cmp_lg_u32 {S_W}, 0\ns_cbranch_scc1 H_ns')
    e(f'v_mov_b32 v12, {sTag}\ns_mov_b64 exec, {(1 << NR) - 1}\nbuffer_store_dword v12, v{SGS}, {WSR}, {sSig} offen offset:224\ns_mov_b64 exec, -1')
    e('H_ns:')
    trace(e, cfg, 0, sTag, 20)
    e(f'buffer_load_dword v10, v{L128}, {WSR}, {sD} offen sc1')
    e(f'buffer_load_dword v10, v{L128}, {WSR}, {sX} offen sc1')
    e(f's_add_u32 {sF}, {sF}, 256\ns_add_u32 {sD}, {sD}, {sDs}\ns_add_u32 {sX}, {sX}, {TILE}\ns_add_u32 {sTag}, {sTag}, 1')
    e(f's_cmp_le_u32 {sTag}, {nsteps}\ns_cbranch_scc1 H_loop')
    e('s_branch DONE')
    e('H_fwd:')
    e(f'v_min_u32 v{L4}, 55, v{LANE}\nv_lshlrev_b32 v{L4}, 2, v{L4}\nv_add_u32 v{L4}, {(NR - 1) * 256}, v{L4}')
    e(f's_mul_i32 {sT}, {S_W}, 3584\nv_lshlrev_b32 v{L16}, 4, v{LANE}\nv_add_u32 v{L16}, {sT}, v{L16}')
    e(f's_mul_i32 {sD}, {S_LAY}, {MA_LAYER}\ns_add_u32 {sD}, {sD}, {WS_MA + MA_STEP}\ns_mov_b32 {sTag}, 2')
    offs = (0, 1024, 2048, 2560)
    e('H_f0:')
    sig_poll(e, L4, sSig, sTag, [6, 7], 0, 'FAIL')
    e('s_nop 7')
    e('H_f1:')
    for i, o in enumerate(offs): e(f'buffer_load_dwordx4 {vr(12 + 4 * i, 4)}, v{L16}, {WSR}, {sD} offen offset:{o} sc1')
    e(f's_add_u32 {sT}, {sD}, 14336\ns_sub_u32 s99, s99, 1\ns_cbranch_scc1 FAIL')
    e('s_waitcnt vmcnt(0)')
    for x in chk(range(12, 28), 9, True): e(x)
    e('v_cmp_eq_u32 vcc, -1, v9\ns_cbranch_vccnz H_f1')
    for i, o in enumerate(offs[:3]): e(f'buffer_store_dwordx4 {vr(12 + 4 * i, 4)}, v{L16}, {WSR}, {sT} offen offset:{o} sc1')
    e(f's_mov_b32 exec_lo, 0\nbuffer_store_dwordx4 {vr(24, 4)}, v{L16}, {WSR}, {sT} offen offset:2560 sc1\ns_mov_b32 exec_lo, -1')
    trace(e, cfg, 1, sTag, 9)
    e(f's_add_u32 {sD}, {sD}, {MA_STEP}\ns_add_u32 {sTag}, {sTag}, 1')
    e(f's_cmp_le_u32 {sTag}, {nsteps + 1}\ns_cbranch_scc1 H_f0')
    e('s_branch DONE')
```

```python
import math
from asmlib import *
from layout import *
from rec import WSR, S_W, S_ID, S_LAY, BIG, DPPM, load_weights, chk, interleave, trace, cst, cstk
from k0 import fhex, allreduce_g

S_FIRST = 's23'
g = lambda l: l >> 4
c = lambda l: l & 15
z2 = lambda r: f'v_mov_b64 {vr(r, 2)}, 0'
pk = lambda d, a, b: f'v_cvt_pk_bf16_f32 v{d}, v{a}, v{b}'
def mm(d, a, b, cc): return f'v_mfma_f32_16x16x32_bf16 {d}, {a}, {b}, {cc}'

class LQ:
    def __init__(self, e): self.e = e; self.q = []
    def issue(self, text, tag=None):
        self.e(text); self.q.append(tag)
    def wait(self, tag):
        if tag not in self.q: return
        i = len(self.q) - 1 - self.q[::-1].index(tag)
        n = len(self.q) - 1 - i
        assert n <= 15
        self.e(f's_waitcnt lgkmcnt({n})'); self.q = self.q[i + 1:]
    def drain(self):
        self.e('s_waitcnt lgkmcnt(0)'); self.q = []

SLEEP = [0]
def spin(e): e('s_sub_u32 s99, s99, 1\ns_cbranch_scc1 FAIL')
def nap(e):
    if SLEEP[0]: e(f's_sleep {SLEEP[0]}')

def stage_tile(e, sbase, sT, STG, STL, R, CHK, extra=None, pre=None):
    L = e.lab('stg')
    e(f's_add_u32 {sT}, {sbase}, 4096')
    e(f'{L}:')
    nap(e)
    for i in range(7):
        e(f'buffer_load_dwordx4 {vr(R + 4 * i, 4)}, v{STG}, {WSR}, {sbase if i < 4 else sT} offen offset:{(i % 4) * 1024} sc1')
    spin(e)
    if pre: pre()
    ck = chk(range(R, R + 28), CHK, True)
    for i in range(7):
        e(f's_waitcnt vmcnt({6 - i})')
        e(f'ds_write_b128 v{STL}, {vr(R + 4 * i, 4)} offset:{i * 1024}')
        if i: e(ck.pop(0))
        e(ck.pop(0))
        if extra: extra(i)
    for x in ck: e(x)
    e(f'v_cmp_eq_u32 vcc, -1, v{CHK}\ns_waitcnt lgkmcnt(0)\ns_cbranch_vccnz {L}')

def vm_compute(e, VB, MF, ACC, AC7, WT, VM, IDX0, LWT, LMA, extra=()):
    acc = lambda t: AC7 if t == 7 else ACC + 4 * (t & 1)
    W = lambda t, kb: wreg((t * 7 + kb) * 8, 8, VB) if t < 7 else vr(WT + 8 * (kb & 1), 8)
    S = lambda t, kb: f'v_smfmac_f32_16x16x64_bf16 {vr(acc(t), 4)}, {vr(MF + 4 * kb, 4)}, {W(t, kb)}, v{IDX0}'
    wrd = lambda kb: [f'ds_read_b128 {vr(WT + 8 * (kb & 1) + 4 * i, 4)}, v{LWT} offset:{(2 * kb + i) * 1024}' for i in range(2)]
    for x in wrd(0) + wrd(1): e(x)
    for kb in range(7): e(f'ds_read_b128 {vr(MF + 4 * kb, 4)}, v{LMA} offset:{kb * 1024}')
    for r in (ACC, ACC + 2, ACC + 4, ACC + 6, AC7, AC7 + 2): e(z2(r))
    def post(t):
        a = acc(t); hh, ct = t >> 1, t & 1
        return [f'v_add_f32 v{a}, v{a}, v{a + 1}', f'v_add_f32 v{a + 2}, v{a + 2}, v{a + 3}',
                pk(VM + 4 * ct + hh, a, a + 2)] + ([z2(a), z2(a + 2)] if t < 5 else [])
    sw = lambda ct: [f'v_permlane{n}_swap_b32 v{VM + 4 * ct + a}, v{VM + 4 * ct + b}' for n, prs in ((32, ((0, 2), (1, 3))), (16, ((0, 1), (2, 3)))) for a, b in prs]
    e('s_waitcnt lgkmcnt(6)')
    e(S(7, 0))
    for t in range(7):
        fill = (post(t - 1) if t else [extra[0], '', extra[1], '', extra[2]]) + (wrd(t + 2) if t < 5 else []) + (post(7) if t == 6 else [])
        for kb in range(7):
            if t == 0 and kb: e(f's_waitcnt lgkmcnt({6 - kb if kb < 6 else 1})')
            e(S(t, kb))
            if fill: e(fill.pop(0))
        if t < 6:
            e(f's_waitcnt lgkmcnt({2 if t < 5 else 0})')
            e(S(7, t + 1))
            if t < 4: e(extra[3 + t])
    for x in sw(1) + post(6) + sw(0): e(x)

def load_wb(e, L16, LWT, sT, sT2, VB):
    e(f's_lshl_b32 {sT}, {S_ID}, 2\ns_add_u32 {sT}, {sT}, {S_W}\ns_mul_i32 {sT}, {sT}, {112 * 1024}\ns_add_u32 {sT}, {sT}, {WS_WB}')
    load_weights(e, 98, L16, sT, VB)
    e(f's_add_u32 {sT}, {sT}, 2048\ns_mul_i32 {sT2}, {S_W}, 14336')
    for i in range(14):
        e(f's_add_u32 m0, {sT2}, {i * 1024}\nbuffer_load_dwordx4 v{L16}, {WSR}, {sT} offen lds\ns_add_u32 {sT}, {sT}, 1024')
    e(f'v_add_u32 v{LWT}, {sT2}, v{L16}')

def cost(x):
    if isinstance(x, tuple): return 0 if x[0] == 'wait' else 1
    return sum(2 if l.startswith(TRANS) else (0.34 if l.startswith(('s_', ';')) else 1) for l in x.split('\n') if l)

def sched(e, lq, ms, reads, la, st, fill, skip=0, nxt=None):
    fill = list(fill)
    ismem = lambda x: (isinstance(x, tuple) and x[0] != 'wait') or (isinstance(x, str) and 'buffer_' in x)
    def emit(x):
        if isinstance(x, tuple):
            if x[0] == 'wait': lq.wait(x[1])
            else: lq.issue(*x)
        else: e(x)
    if ms: lq.wait(ms[0][1])
    carry = 0.0
    for k, (m, tag, ri) in enumerate(ms):
        e(m)
        follow = ms[k + 1][1] if k + 1 < len(ms) else nxt
        if follow is not None: lq.wait(follow)
        used = 0
        if ri is not None and st['n'] < len(reads) and st['n'] <= ri + la:
            lq.issue(*reads[st['n']]); st['n'] += 1; used += 1
        if k < skip: continue
        if fill and ismem(fill[0]): emit(fill.pop(0)); used += 1
        left = len(ms) - k
        nrd = sum(1 for a, b in zip(ms[k + 1:], ms[k:]) if a[2] is not None and a[2] != b[2])
        over = max(0.0, sum(cost(x) for x in fill) + nrd + used - 2 * left) / left
        quota = 2 - used + over + carry
        while fill and not ismem(fill[0]) and cost(fill[0]) <= quota + 0.01:
            quota -= cost(fill[0]); emit(fill.pop(0))
        carry = min(quota, 1.0) if over > 0 else 0.0
    for x in fill: emit(x)

def dma_tile(sbase, sT, STG, sLds):
    out = []
    for i in range(7):
        pre = ''
        if i == 0: pre = f's_mov_b32 m0, {sLds}\n'
        if i == 4: pre = f's_add_u32 m0, {sLds}, 4096\ns_add_u32 {sT}, {sbase}, 4096\n'
        out.append(pre + f'buffer_load_dwordx4 v{STG}, {WSR}, {sbase if i < 4 else sT} offen offset:{(i % 4) * 1024} sc1 lds')
    return out

def check_tile(e, sbase, sT, STG, STL, R, CHK, extra=None, pre=None):
    ok = e.lab('tok')
    for i in range(7): e(f'ds_read_b128 {vr(R + 4 * i, 4)}, v{STL} offset:{i * 1024}')
    if pre: pre()
    ck = chk(range(R, R + 28), CHK, True)
    for i in range(7):
        e(f's_waitcnt lgkmcnt({6 - i})')
        if i: e(ck.pop(0))
        e(ck.pop(0))
        if extra: extra(i)
    for x in ck: e(x)
    e(f'v_cmp_eq_u32 vcc, -1, v{CHK}\ns_cbranch_vccz {ok}')
    stage_tile(e, sbase, sT, STG, STL, R, CHK, extra, pre)
    e(f'{ok}:')

def role_v(e, cfg):
    VB = 120
    L16, IDX0, XA, LWT, HW, STG, L4, TA, RD, CHK, LMA = range(1, 12)
    LANE = 0
    PX = 12; PM = 44; RES = 52
    XF = 56; WT = 72; MT = 80; ACCS = (12, 88)
    VM = 56; VXR = 64; OA = 96
    XBUF = 57344; MBUF = 114688; HOLD = 122880
    sX, sVX, sVF, sM, sP, sR, sO, sT, sT2, sPre, sPost = 's12', 's13', 's14', 's15', 's16', 's17', 's18', 's19', 's20', 's21', 's22'
    sXd, sP1, sP2, sM1, sXL, sHL, sVP, sVB = 's24', 's25', 's26', 's27', 's40', 's41', 's42', 's43'
    tmp = list(range(60, 70))
    e(f'v_and_b32 v{LANE}, 63, v0\nv_lshlrev_b32 v{L16}, 4, v{LANE}')
    e(f's_mul_i32 {sT}, {S_W}, 7168\nv_add_u32 v{STG}, {sT}, v{L16}\ns_add_u32 {sXL}, {sT}, {XBUF}')
    def xaddr(seg):
        e(f's_min_u32 {sT}, {seg}, 63\ns_mul_i32 {sT}, {sT}, {TILE}\ns_mul_i32 {sX}, {S_LAY}, {X_LAYER}\ns_add_u32 {sX}, {sX}, {sT}\ns_add_u32 {sX}, {sX}, {WS_XN0}')
    load_wb(e, L16, LWT, sT, sT2, VB)
    xaddr(S_FIRST)
    for x in dma_tile(sX, sT, STG, sXL): e(x)
    lanefn(e, IDX0, lambda l: 0xeeeeeeee if l & 1 else 0x44444444, LANE, tmp)
    lanefn(e, XA, lambda l: g(l) * 512 + c(l) * 16, LANE, tmp)
    e(f's_and_b32 {sT}, {S_W}, 1\ns_lshl_b32 {sT2}, {sT}, 8\nv_add_u32 v{TA}, {sT2}, v{XA}\ns_lshl_b32 {sT2}, {S_ID}, 11\nv_add_u32 v{TA}, {sT2}, v{TA}')
    e(f'v_mov_b32 v{L4}, v{XA}\nv_add_u32 v{XA}, {XBUF}, v{XA}')
    e(f's_lshl_b32 {sT2}, {sT}, 11\ns_add_u32 {sT2}, {sT2}, {HOLD}\nv_add_u32 v{RD}, {sT2}, v{L16}')
    e(f's_lshl_b32 {sT}, {S_W}, 13\ns_add_u32 {sHL}, {sT}, {HOLD}\nv_add_u32 v{HW}, {sHL}, v{L16}')
    e(f'v_add_u32 v{LMA}, {MBUF}, v{L16}')
    e(f's_cmp_eq_u32 {S_LAY}, 0\ns_cselect_b32 {sT}, {cfg.get("vl0", 6)}, {cfg.get("vl1", 6)}\ns_mov_b32 {sPre}, {S_FIRST}\ns_sub_i32 {sPost}, {S_FIRST}, {sT}')
    e(f's_mov_b32 {sXd}, {TILE}')
    e(f's_lshl_b32 {sT}, {S_ID}, 2\ns_add_u32 {sT}, {sT}, {S_W}\ns_lshl_b32 {sT}, {sT}, 13\ns_mul_i32 {sVB}, {S_LAY}, {VX_LAYER}\ns_add_u32 {sVB}, {sVB}, {sT}\ns_add_u32 {sVB}, {sVB}, {WS_VX}')
    W = lambda t, ks: wreg((t * 14 + ks) * 4, 4, VB)
    ldm = [f'buffer_load_dwordx4 {vr(MT, 4)}, v{L16}, {WSR}, {sM} offen sc1', f'buffer_load_dwordx4 {vr(MT + 4, 4)}, v{L16}, {WSR}, {sM1} offen sc1']
    ldp = [f'buffer_load_dwordx4 {vr(PX + 4 * f, 4)}, v{L16}, {WSR}, {sP if f < 4 else sP1} offen offset:{(f % 4) * 1024} sc1' for f in range(8)]
    ldp += [f'buffer_load_dwordx4 {vr(PM + 4 * qt, 4)}, v{L4}, {WSR}, {sP2} offen offset:{qt * 256} sc1' for qt in range(2)]
    ldp += [f'buffer_load_dwordx4 {vr(RES, 4)}, v{TA}, {WSR}, {sR} offen sc1']
    vdma = []
    for f in range(8):
        pre = f's_mov_b32 m0, {sHL}\n' if f == 0 else (f's_add_u32 m0, {sHL}, 4096\ns_add_u32 {sVP}, {sVP}, 4096\n' if f == 4 else '')
        vdma.append(pre + f'buffer_load_dwordx4 v{L16}, {WSR}, {sVP} offen offset:{(f % 4) * 1024} sc1 lds')
    def flag():
        e(f'v_mov_b32 v{CHK}, 1\ns_mov_b64 exec, 1\nbuffer_store_dword v{CHK}, off, {WSR}, {sVF} sc1\ns_mov_b64 exec, -1')
        trace(e, cfg, 3, sPre, CHK)
    e('s_waitcnt vmcnt(0)')
    e('V_loop:')
    e(f's_max_i32 {sT2}, {sPost}, 0')
    e(f's_mul_i32 {sVP}, {sT2}, {VX_SEG}\ns_add_u32 {sVP}, {sVP}, {sVB}')
    e(f's_mul_i32 {sM}, {sT2}, {MA_STEP}\ns_mul_i32 {sT}, {S_LAY}, {MA_LAYER}\ns_add_u32 {sM}, {sM}, {sT}\ns_lshl_b32 {sT}, {S_W}, 11\ns_add_u32 {sM}, {sM}, {sT}\ns_add_u32 {sM}, {sM}, {WS_MA + 14336}')
    e(f's_mul_i32 {sR}, {sT2}, {TILE}\ns_mul_i32 {sT}, {S_LAY}, {X_LAYER}\ns_add_u32 {sR}, {sR}, {sT}\ns_add_u32 {sR}, {sR}, {WS_XR0}')
    e(f's_lshl_b32 {sT}, {S_LAY}, 6\ns_add_u32 {sT2}, {sT2}, {sT}\ns_mul_i32 {sO}, {sT2}, {TILE}\ns_add_u32 {sO}, {sO}, {WS_X1}')
    e(f's_mul_i32 {sP}, {sT2}, {PG_SEG}\ns_add_u32 {sP}, {sP}, {WS_PG}')
    e(f's_lshl_b32 {sT}, {S_W}, 11\ns_add_u32 {sP2}, {sP}, {sT}\ns_add_u32 {sP2}, {sP2}, 32768')
    e(f's_lshl_b32 {sT}, {S_W}, 13\ns_add_u32 {sP}, {sP}, {sT}\ns_add_u32 {sP1}, {sP}, 4096')
    e(f's_cmp_eq_u32 {S_W}, 3\ns_cselect_b32 {sT}, 0, 1024\ns_add_u32 {sM1}, {sM}, {sT}')
    e(f's_cmp_lt_u32 {sPre}, 64\ns_cbranch_scc1 V_pre')
    e('s_barrier')
    for x in ldm + vdma + ldp: e(x)
    e('s_waitcnt vmcnt(19)\ns_branch V_mchk')
    e('V_pre:')
    cstk(e, cfg, 0, sPre, 40)
    trace(e, cfg, 0, sPre, CHK)
    e(f's_cmp_eq_u32 {S_LAY}, 0\ns_cbranch_scc1 V_nochk')
    e(f'v_add_u32 v{LANE}, {sXL}, v{L16}')
    check_tile(e, sX, sT, STG, LANE, 88, CHK)
    e('V_nochk:\ns_barrier')
    trace(e, cfg, 1, sPre, CHK)
    cstk(e, cfg, 1, sPre, 40)
    lq = LQ(e)
    def rd(hf, ks):
        n = hf * 14 + ks
        out = [(f'ds_read_b128 {vr(XF + 8 * (n & 1) + 4 * tau, 4)}, v{XA} offset:{ks * 2048 + tau * 256}', ('x', n)) for tau in range(2)]
        if hf: out.append((f'ds_read_b128 {vr(WT + 4 * (n & 1), 4)}, v{LWT} offset:{ks * 1024}', ('x', n)))
        return out
    def epi(hf):
        out = []
        for tl in range(4):
            t = 4 * hf + tl; hh, ct = t >> 1, t & 1
            f = (hh >> 1) * 4 + ct * 2 + (hh & 1)
            a = ACCS[hf] + 8 * tl
            out += [pk(a + i, a + i, a + 4 + i) for i in range(4)]
            out.append(f'buffer_store_dwordx4 {vr(a, 4)}, v{L16}, {WSR}, {sVX} offen offset:{(f % 4) * 1024} sc1')
        return out
    def emit(x):
        if isinstance(x, tuple): lq.issue(*x)
        else: e(x)
    for x in rd(0, 0): emit(x)
    e(f's_mul_i32 {sVX}, {sPre}, {VX_SEG}\ns_add_u32 {sVX}, {sVX}, {sVB}')
    e(f's_lshl_b32 {sT}, {S_ID}, 2\ns_add_u32 {sT}, {sT}, {S_W}')
    e(f's_lshl_b32 {sVF}, {S_LAY}, 6\ns_add_u32 {sVF}, {sVF}, {sPre}\ns_lshl_b32 {sVF}, {sVF}, 6\ns_add_u32 {sVF}, {sVF}, {sT}\ns_lshl_b32 {sVF}, {sVF}, 2\ns_add_u32 {sVF}, {sVF}, {WS_VF}')
    e(f's_add_u32 {sT2}, {sPre}, 3\ns_add_u32 {sXL}, {sXL}, {sXd}')
    xaddr(sT2)
    for hf in range(2):
        cst(e, cfg, hf)
        fill = epi(0) if hf else []
        lds_ = (ldp[:4] + ldm + ldp[4:]) if hf else list(vdma)
        last = epi(1) if hf else []
        for ks in range(14):
            n = hf * 14 + ks
            nxt = rd(hf, ks + 1) if ks < 13 else (rd(1, 0) if hf == 0 else [])
            lq.wait(('x', n))
            k = 0
            for tl in range(4):
                t = 4 * hf + tl
                for tau in range(2):
                    a = vr(ACCS[hf] + 8 * tl + 4 * tau, 4)
                    e(mm(a, vr(XF + 8 * (n & 1) + 4 * tau, 4), W(t, ks) if t < 7 else vr(WT + 4 * (n & 1), 4), a if ks else 0))
                    if k == 7: lq.wait(('x', n + 1))
                    if hf and ks == 13 and k == 0: e(f's_add_u32 {sVX}, {sVX}, 4096')
                    if nxt: emit(nxt.pop(0))
                    elif fill and k >= 3: emit(fill.pop(0))
                    elif lds_ and (k == 4 or (k == 6 and (ks >= 7 if hf else ks == 0))): emit(lds_.pop(0))
                    elif hf and ks == 13 and k >= 3:
                        emit(last.pop(0)); emit(last.pop(0))
                    k += 1
        assert not fill and not lds_
    cst(e, cfg, 2)
    for x in last: emit(x)
    cst(e, cfg, 3)
    trace(e, cfg, 2, sPre, CHK)
    cstk(e, cfg, 2, sPre, 40)
    e(f'v_add_u32 v{XA}, {sXd}, v{XA}\ns_sub_i32 {sXd}, 0, {sXd}')
    e(f's_cmp_lt_i32 {sPost}, 0\ns_cbranch_scc1 V_nopost')
    e('s_waitcnt vmcnt(11)')
    e('V_mchk:')
    for x in chk(range(MT, MT + 8), CHK, True): e(x)
    e(f'v_cmp_eq_u32 vcc, -1, v{CHK}\ns_cbranch_vccz V_mok')
    nap(e)
    for x in ldm: e(x)
    spin(e)
    e('s_waitcnt vmcnt(0)\ns_branch V_mchk')
    e('V_mok:')
    e(f's_lshl_b32 {sT}, {S_W}, 11\nv_add_u32 v{LANE}, {sT}, v{LMA}')
    e(f'ds_write_b128 v{LANE}, {vr(MT, 4)}\nds_write_b128 v{LANE}, {vr(MT + 4, 4)} offset:1024')
    e('s_waitcnt lgkmcnt(0)\ns_barrier')
    trace(e, cfg, 4, sPost, CHK)
    cstk(e, cfg, 3, sPre, 40)
    vm_compute(e, VB, 64, 92, 100, 104, VM, IDX0, LWT, LMA, dma_tile(sX, sT, STG, sXL))
    trace(e, cfg, 5, sPost, CHK)
    cstk(e, cfg, 4, sPre, 40)
    e('s_waitcnt vmcnt(7)')
    for f in range(8): e(f'ds_read_b128 {vr(VXR + 4 * f, 4)}, v{HW} offset:{f * 1024}')
    e(f's_cmp_ge_u32 {sPre}, 64\ns_cbranch_scc1 V_pchk\ns_cmp_eq_u32 {S_LAY}, 0\ns_cbranch_scc1 V_pchk')
    flag()
    cstk(e, cfg, 5, sPre, 40)
    e('V_pchk:')
    for x in chk(range(PX, PX + 44), CHK, True): e(x)
    e(f'v_cmp_eq_u32 vcc, -1, v{CHK}\ns_cbranch_vccz V_pok')
    nap(e)
    for x in ldp: e(x)
    spin(e)
    e('s_waitcnt vmcnt(0)\ns_branch V_pchk')
    e('V_pok:')
    cstk(e, cfg, 6, sPre, 40)
    trace(e, cfg, 6, sPost, CHK)
    e('s_waitcnt lgkmcnt(0)')
    for qt in range(2):
        for ct in range(2):
            a = vr(OA + 8 * qt + 4 * ct, 4)
            e(mm(a, vr(VM + 4 * ct, 4), vr(PM + 4 * qt, 4), 0))
            for hh in range(4):
                f = (hh >> 1) * 4 + ct * 2 + (hh & 1)
                e(mm(a, vr(VXR + 4 * f, 4), vr(PX + 8 * hh + 4 * qt, 4), a))
                if hh == 1 and (qt, ct) != (0, 0):
                    k = 2 * qt + ct - 1
                    e(f'ds_write_b128 v{HW}, {vr(OA + 4 * k, 4)} offset:{k * 1024}')
    U = PM
    for i in range(4): e(f'v_lshlrev_b32 v{U + i}, 16, v{RES + i}\nv_and_b32 v{U + 4 + i}, 0xffff0000, v{RES + i}')
    e(f'ds_write_b128 v{HW}, {vr(OA + 12, 4)} offset:3072')
    e(f's_cmp_eq_u32 {S_LAY}, 1\ns_cbranch_scc1 V_w1\ns_waitcnt vmcnt(0)')
    e('V_w1:\ns_waitcnt vmcnt(1) lgkmcnt(0)\ns_barrier')
    e(f's_cmp_ge_u32 {S_W}, 2\ns_cbranch_scc1 V_lf')
    R = PX
    for w in range(4):
        for ct in range(2): e(f'ds_read_b128 {vr(R + 8 * w + 4 * ct, 4)}, v{RD} offset:{w * 8192 + ct * 1024}')
    for w in range(4):
        e(f's_waitcnt lgkmcnt({6 - 2 * w})')
        for i in range(0, 8, 2): e(f'v_pk_add_f32 {vr(U + i, 2)}, {vr(U + i, 2)}, {vr(R + 8 * w + i, 2)}')
    for i in range(4): e(pk(U + i, U + i, U + 4 + i))
    for i in range(4): e(f'v_min_u32 v{U + i}, -2, v{U + i}')
    e(f'buffer_store_dwordx4 {vr(U, 4)}, v{TA}, {WSR}, {sO} offen sc1')
    trace(e, cfg, 7, sPost, CHK)
    e('V_lf:')
    e(f's_cmp_ge_u32 {sPre}, 64\ns_cbranch_scc1 V_next\ns_cmp_eq_u32 {S_LAY}, 0\ns_cbranch_scc0 V_next\ns_branch V_fl')
    e('V_nopost:')
    for x in dma_tile(sX, sT, STG, sXL): e(x)
    e('s_waitcnt vmcnt(7)')
    flag()
    e('s_waitcnt vmcnt(1)\ns_branch V_next')
    e('V_fl:')
    flag()
    e('V_next:')
    cstk(e, cfg, 7, sPre, 40)
    e(f's_add_u32 {sPre}, {sPre}, 3\ns_add_i32 {sPost}, {sPost}, 3\ns_cmp_lt_i32 {sPost}, 64\ns_cbranch_scc1 V_loop')
    e('s_branch DONE')

def role_q(e, cfg):
    VB = 120
    L16, XA, STG, KA0, KA1, KA2, MA0, MA1, MA2, EW, ER, CHK = range(1, 13)
    LANE = 0; L4 = 13; STL = 58
    XB2 = 45056; sXL, sXd, sXn = 's17', 's18', 's21'
    XF = 14; K1 = 30; MK = 44; ACC = 60
    EX = 28672
    sX, sM, sP, sP2, sS, sT, sT2 = 's12', 's13', 's14', 's15', 's16', 's19', 's20'
    tmp = list(range(60, 70))
    e(f'v_and_b32 v{LANE}, 63, v0\nv_lshlrev_b32 v{L16}, 4, v{LANE}')
    e(f's_lshl_b32 {sT}, {S_ID}, 2\ns_add_u32 {sT}, {sT}, {S_W}\ns_mul_i32 {sT}, {sT}, {98 * 1024}')
    if WS_WA: e(f's_add_u32 {sT}, {sT}, {WS_WA}')
    load_weights(e, 98, L16, sT, VB)
    def xaddr(d, seg):
        e(f's_min_u32 {sT}, {seg}, 63\ns_mul_i32 {sT}, {sT}, {TILE}\ns_mul_i32 {d}, {S_LAY}, {X_LAYER}\ns_add_u32 {d}, {d}, {sT}\ns_add_u32 {d}, {d}, {WS_XN0}')
    e(f's_mul_i32 {sXL}, {S_W}, 7168\nv_add_u32 v{STG}, {sXL}, v{L16}\nv_mov_b32 v{STL}, v{STG}\ns_mov_b32 {sXd}, {XB2}')
    xaddr(sXn, S_FIRST)
    for x in dma_tile(sXn, sT, STG, sXL): e(x)
    lanefn(e, XA, lambda l: g(l) * 512 + c(l) * 16, LANE, tmp)
    e(f's_mul_i32 {sT}, {S_W}, 7168')
    lanefn(e, KA0, lambda l: 2 * g(l) * 512 + c(l) * 16, LANE, tmp)
    lanefn(e, KA1, lambda l: (8 + g(l)) * 512 + c(l) * 16, LANE, tmp)
    lanefn(e, KA2, lambda l: (12 + (g(l) & 1)) * 512 + c(l) * 16 + 4 * (g(l) >> 1), LANE, tmp)
    for r in (KA0, KA1, KA2): e(f'v_add_u32 v{r}, {sT}, v{r}')
    mrow = lambda l: 2 * (c(l) >> 2) + (c(l) & 1)
    lanefn(e, MA0, lambda l: 2 * g(l) * 128 + mrow(l) * 16, LANE, tmp)
    lanefn(e, MA1, lambda l: (8 + g(l)) * 128 + mrow(l) * 16, LANE, tmp)
    lanefn(e, MA2, lambda l: (12 + (g(l) & 1)) * 128 + mrow(l) * 16 + 4 * (g(l) >> 1), LANE, tmp)
    e(f's_lshl_b32 {sT}, {S_W}, 12\ns_add_u32 {sT}, {sT}, {EX}\nv_add_u32 v{EW}, {sT}, v{L16}')
    e(f's_and_b32 {sT}, {S_W}, 1\ns_lshl_b32 {sT}, {sT}, 10\ns_add_u32 {sT}, {sT}, {EX}\nv_add_u32 v{ER}, {sT}, v{L16}')
    lanefn(e, L4, lambda l: c(l) * 16 + g(l) * 4, LANE, tmp)
    for i in range(4):
        m = sum(1 << l for l in range(64) if 4 * g(l) + i <= c(l))
        e(f's_mov_b32 s{56 + 2 * i}, 0x{m & 0xffffffff:x}\ns_mov_b32 s{57 + 2 * i}, 0x{m >> 32:x}')
    e(f's_bitcmp1_b32 {S_W}, 0')
    for i in range(4):
        e(f's_cselect_b64 s[{40 + 2 * i}:{41 + 2 * i}], -1, s[{56 + 2 * i}:{57 + 2 * i}]')
        e(f's_cselect_b64 s[{48 + 2 * i}:{49 + 2 * i}], s[{56 + 2 * i}:{57 + 2 * i}], 0')
    e(f's_mov_b32 {sS}, {S_FIRST}')
    W = lambda t, ks: wreg((t * 14 + ks) * 4, 4, VB)
    A = lambda tau, t: ACC + 28 * tau + 4 * t
    e('s_waitcnt vmcnt(0)')
    e('Q_loop:')
    cstk(e, cfg, 0, sS, 40)
    trace(e, cfg, 0, sS, CHK)
    e(f's_cmp_eq_u32 {S_LAY}, 0\ns_cbranch_scc1 Q_nochk')
    check_tile(e, sXn, sT, STG, STL, ACC, CHK)
    e('Q_nochk:\ns_barrier')
    trace(e, cfg, 1, sS, CHK)
    cstk(e, cfg, 1, sS, 40)
    n0 = len(e.L)
    e(f's_mul_i32 {sM}, {sS}, {MA_STEP}\ns_mul_i32 {sT}, {S_LAY}, {MA_LAYER}\ns_add_u32 {sM}, {sM}, {sT}\ns_mul_i32 {sT}, {S_W}, {14 * 128}\ns_add_u32 {sM}, {sM}, {sT}\ns_add_u32 {sM}, {sM}, {WS_MA + 21504}')
    e(f's_lshl_b32 {sT}, {S_LAY}, 6\ns_add_u32 {sT}, {sT}, {sS}\ns_mul_i32 {sP}, {sT}, {PG_SEG}\ns_add_u32 {sP}, {sP}, {WS_PG}')
    e(f's_lshl_b32 {sT}, {S_ID}, 1\ns_and_b32 {sT2}, {S_W}, 1\ns_add_u32 {sT}, {sT}, {sT2}\ns_lshl_b32 {sT2}, {sT}, 8\ns_add_u32 {sP2}, {sP}, {sT2}\ns_add_u32 {sP2}, {sP2}, 32768\ns_lshl_b32 {sT2}, {sT}, 10\ns_add_u32 {sP}, {sP}, {sT2}')
    lq = LQ(e)
    rd = lambda ks: [(f'ds_read_b128 {vr(XF + 8 * (ks & 1) + 4 * tau, 4)}, v{XA} offset:{ks * 2048 + tau * 256}', ks) for tau in range(2)]
    def keys(kt, R):
        return [(f'ds_read_b128 {vr(R, 4)}, v{KA0} offset:{kt * 256}', ('k', kt)),
                (f'ds_read_b128 {vr(R + 4, 4)}, v{KA0} offset:{kt * 256 + 512}', ('k', kt)),
                (f'ds_read_b128 {vr(R + 8, 4)}, v{KA1} offset:{kt * 256}', ('k', kt)),
                (f'ds_read2_b32 {vr(R + 12, 2)}, v{KA2} offset0:{kt * 64} offset1:{kt * 64 + 2}', ('k', kt))]
    def ldm():
        e(f'buffer_load_dwordx4 {vr(MK, 4)}, v{MA0}, {WSR}, {sM} offen sc1\nbuffer_load_dwordx4 {vr(MK + 4, 4)}, v{MA0}, {WSR}, {sM} offen offset:128 sc1')
        e(f'buffer_load_dwordx4 {vr(MK + 8, 4)}, v{MA1}, {WSR}, {sM} offen sc1')
        e(f'buffer_load_dword v{MK + 12}, v{MA2}, {WSR}, {sM} offen sc1\nbuffer_load_dword v{MK + 13}, v{MA2}, {WSR}, {sM} offen offset:8 sc1')
    def pack(tau):
        out = []
        for u in range(3):
            a, b = A(tau, 2 * u), A(tau, 2 * u + 1)
            out += [pk(a, a, a + 1), pk(a + 1, b, b + 1), pk(a + 2, a + 2, a + 3), pk(a + 3, b + 2, b + 3)]
        a = A(tau, 6)
        return out + [pk(a, a, a + 1), pk(a + 1, a + 2, a + 3)]
    e(f's_add_u32 {sT2}, {sS}, 2\ns_add_u32 {sXL}, {sXL}, {sXd}')
    xaddr(sXn, sT2)
    sal = e.L[n0:]; del e.L[n0:]
    ldm(); lm = e.L[n0:]; del e.L[n0:]
    dma = dma_tile(sXn, sT, STG, sXL)
    cst(e, cfg, 0)
    for x in rd(0): lq.issue(*x)
    for ks in range(14):
        nxt = rd(ks + 1) if ks < 13 else keys(1, K1)
        lq.wait(ks)
        fill = []
        for tau in (1, 0):
            if ks == 13 and tau == 0: fill = pack(1)
            for t in range(7):
                a = vr(A(tau, t), 4)
                e(mm(a, W(t, ks), vr(XF + 8 * (ks & 1) + 4 * tau, 4), a if ks else 0))
                if tau == 0 and t == 6 and ks < 13: lq.wait(ks + 1)
                if sal and t >= 2: e(sal.pop(0))
                if nxt: lq.issue(*nxt.pop(0))
                elif lm and ks >= 11 and t % 2 == 0: e(lm.pop(0))
                elif dma and ks >= cfg.get('qdma', 7) and t == 3: e(dma.pop(0))
                for _ in range(2):
                    if fill: e(fill.pop(0))
        if ks == 10: assert not dma and not sal
    cst(e, cfg, 1)
    for x in keys(0, XF): lq.issue(*x)
    cstk(e, cfg, 2, sS, 40)
    def scores(d, KR, tau):
        out = [mm(vr(d, 4), vr(KR + 4 * u, 4), vr(A(tau, 2 * u), 4), vr(d, 4) if u else 0) for u in range(3)]
        return out + [f'v_mfma_f32_16x16x16_bf16 {vr(d, 4)}, {vr(KR + 12, 2)}, {vr(A(tau, 6), 2)}, {vr(d, 4)}']
    S11, S01, S00, SM0, SM1 = A(1, 1), A(1, 3), A(1, 5), A(0, 1), A(0, 3)
    lq.wait(('k', 1))
    p0 = pack(0)
    a, b, d = scores(S11, K1, 1), scores(S01, XF, 1), scores(S00, XF, 0)
    interleave(e, a[:3], p0[:6])
    lq.wait(('k', 0))
    interleave(e, b[:3] + a[3:], p0[6:])
    for x in d[:3]: e(x)
    e(f'ds_write_b128 v{EW}, {vr(S11, 4)} offset:2048')
    e(b[3]); e(d[3])
    e(f'ds_write_b128 v{EW}, {vr(S01, 4)} offset:1024')
    e(f'ds_write_b128 v{EW}, {vr(S00, 4)}')
    e('s_waitcnt lgkmcnt(0)\ns_barrier')
    cst(e, cfg, 2)
    SC = XF; MX = XF + 10; T0 = XF + 11
    e(f's_cmp_ge_u32 {S_W}, 2\ns_cbranch_scc1 Q_m')
    R2 = [XF, XF + 8, K1, None]
    q4 = [SC, SC + 4, XF + 8, XF + 12, K1, K1 + 4, K1 + 8, S11]
    for w in range(4):
        for kt in range(2): e(f'ds_read_b128 {vr(q4[2 * w + kt], 4)}, v{ER} offset:{w * 4096 + kt * 1024}')
    for w in range(1, 4):
        e(f's_waitcnt lgkmcnt({6 - 2 * w})')
        for kt in range(2):
            for i in (0, 2): e(f'v_pk_add_f32 {vr(SC + 4 * kt + i, 2)}, {vr(SC + 4 * kt + i, 2)}, {vr(q4[2 * w + kt] + i, 2)}')
    e(f'v_mov_b32 v{T0}, 0xff800000')
    for kt in range(2):
        for i in range(4): e(f'v_cndmask_b32 v{SC + 4 * kt + i}, v{T0}, v{SC + 4 * kt + i}, s[{40 + 8 * kt + 2 * i}:{41 + 8 * kt + 2 * i}]')
    e(f'v_max3_f32 v{MX}, v{SC}, v{SC + 1}, v{SC + 2}\nv_max3_f32 v{MX}, v{MX}, v{SC + 3}, v{SC + 4}\nv_max3_f32 v{MX}, v{MX}, v{SC + 5}, v{SC + 6}\nv_max_f32 v{MX}, v{MX}, v{SC + 7}')
    cst(e, cfg, 3)
    trace(e, cfg, 2, sS, CHK)
    cstk(e, cfg, 3, sS, 40)
    e('Q_m:')
    e('s_waitcnt vmcnt(0)')
    for x in chk(range(MK, MK + 14), CHK, True): e(x)
    e(f'v_cmp_eq_u32 vcc, -1, v{CHK}\ns_cbranch_vccz Q_mok')
    nap(e)
    ldm(); spin(e)
    e('s_branch Q_m')
    e('Q_mok:')
    cstk(e, cfg, 4, sS, 40)
    cst(e, cfg, 4)
    trace(e, cfg, 3, sS, CHK)
    a, b = scores(SM0, MK, 0), scores(SM1, MK, 1)
    for x in a[:3] + b[:3] + a[3:] + b[3:]: e(x)
    e(f'ds_write_b64 v{EW}, {vr(SM0, 2)} offset:3072')
    e(f'ds_write_b64 v{EW}, {vr(SM1, 2)} offset:3080')
    e(f's_and_b32 {sT}, {S_W}, 1\ns_mul_i32 {sT}, {sT}, 1016\nv_subrev_u32 v{LANE}, {sT}, v{ER}')
    e('s_waitcnt lgkmcnt(0)\ns_barrier')
    e(f's_cmp_ge_u32 {S_W}, 2\ns_cbranch_scc1 Q_next')
    for w in range(4): e(f'ds_read_b64 {vr(K1 + 2 * w, 2)}, v{LANE} offset:{w * 4096 + 3072}')
    e('s_waitcnt lgkmcnt(0)')
    pa = lambda d, a, b: e(f'v_pk_add_f32 {vr(d, 2)}, {vr(a, 2)}, {vr(b, 2)}')
    pa(K1, K1, K1 + 2); pa(K1 + 4, K1 + 4, K1 + 6); pa(SC + 8, K1, K1 + 4)
    e(f'v_max3_f32 v{MX}, v{MX}, v{SC + 8}, v{SC + 9}')
    allreduce_g(e, MX, T0, 'v_max_f32')
    for i in range(0, 10, 2): e(f'v_pk_add_f32 {vr(SC + i, 2)}, {vr(SC + i, 2)}, {vr(MX, 2)} op_sel_hi:[1,0] neg_lo:[0,1] neg_hi:[0,1]')
    for i in range(10): e(f'v_exp_f32 v{SC + i}, v{SC + i}')
    pa(K1, SC, SC + 2); pa(K1 + 2, SC + 4, SC + 6); pa(K1, K1, K1 + 2); pa(K1, K1, SC + 8)
    e(f'v_add_f32 v{MX}, v{K1}, v{K1 + 1}')
    allreduce_g(e, MX, T0, 'v_add_f32')
    e(f'v_rcp_f32 v{MX}, v{MX}')
    for i in range(0, 10, 2): e(f'v_pk_mul_f32 {vr(SC + i, 2)}, {vr(SC + i, 2)}, {vr(MX, 2)} op_sel_hi:[1,0]')
    for i in range(4): e(f'v_cvt_pk_bf16_f32 v{K1 + i}, |v{SC + i}|, |v{SC + 4 + i}|')
    e(f'buffer_store_dwordx4 {vr(K1, 4)}, v{L16}, {WSR}, {sP} offen sc1')
    e(f'v_cvt_pk_bf16_f32 v{K1 + 4}, |v{SC + 8}|, |v{SC + 9}|')
    e(f'buffer_store_dword v{K1 + 4}, v{L4}, {WSR}, {sP2} offen sc1')
    cst(e, cfg, 5)
    trace(e, cfg, 4, sS, CHK)
    cstk(e, cfg, 5, sS, 40)
    e('Q_next:')
    for r in (XA, KA0, KA1, KA2, STL): e(f'v_add_u32 v{r}, {sXd}, v{r}')
    e(f's_sub_i32 {sXd}, 0, {sXd}')
    e(f's_add_u32 {sS}, {sS}, 2\ns_cmp_lt_u32 {sS}, 64\ns_cbranch_scc1 Q_loop')
    e('s_branch DONE')

def order(d0, d1):
    key = [(s, 0, s) for s in range(64)]
    for s in range(64):
        lag = d0 + (d1 - d0) * min(1.0, s / max(1, 63 - d1))
        key.append((s + lag - 0.5, 1, s))
    return [(l, s) for _, l, s in sorted(key)]

def set_order(e, od, r):
    m = sum(l << n for n, (l, s) in enumerate(od))
    for k in range(4): e(f's_mov_b32 s{r + k}, 0x{(m >> (32 * k)) & 0xffffffff:x}')

def decode(e, r, sN, sLay, sS, t):
    e(f's_cmp_ge_u32 {sN}, 64\ns_cselect_b64 s[{t}:{t + 1}], s[{r + 2}:{r + 3}], s[{r}:{r + 1}]\ns_cselect_b64 s[{t + 2}:{t + 3}], s[{r}:{r + 1}], 0')
    e(f's_bcnt1_i32_b64 {sS}, s[{t + 2}:{t + 3}]\ns_bfm_b64 s[{t + 2}:{t + 3}], {sN}, 0\ns_and_b64 s[{t + 2}:{t + 3}], s[{t + 2}:{t + 3}], s[{t}:{t + 1}]')
    e(f's_bcnt1_i32_b64 {sLay}, s[{t + 2}:{t + 3}]\ns_add_u32 {sS}, {sS}, {sLay}\ns_sub_u32 s{t + 2}, {sN}, {sS}')
    e(f's_bitcmp1_b64 s[{t}:{t + 1}], {sN}\ns_cselect_b32 {sS}, {sS}, s{t + 2}\ns_cselect_b32 {sLay}, 1, 0')

def role_mlp(e, cfg):
    VB = 92
    L16, XA, STG, HWA, PA, PB, CVA = range(1, 8)
    LANE = 0; CHK = 8; ONE = 9
    K1 = 10; K2 = 12; IR = 14; BA = 16; GT = 20; XF = 24; AC = 32; OA = 60
    XB = 29696
    B2A = 28672; ZA = B2A + 896
    HID = 2 * XB; STAT = HID + 14336; STAT2 = STAT + 2048; CV = STAT2 + 1024
    OUT_SRD = 's[28:31]'; WSD = 's[52:55]'
    sX, sPt, sPf, sN, sS, sIt, sXL, sT, sT2, sLay, sXd = 's12', 's13', 's14', 's15', 's16', 's17', 's18', 's19', 's20', 's21', 's22'
    sTb, sSh, sXo, sSn, sLn = 's24', 's25', 's27', 's44', 's45'
    tmp = list(range(30, 40))
    e(f'v_and_b32 v{LANE}, 63, v0\nv_lshlrev_b32 v{L16}, 4, v{LANE}')
    e(f's_lshr_b32 {sT}, {S_W}, 1\ns_mul_i32 {sT}, {sT}, 7\ns_add_u32 {sSh}, {sT}, 3\ns_and_b32 {sT2}, {S_W}, 1\ns_lshl_b32 {sT2}, {sT2}, 2\ns_add_u32 {sTb}, {sT}, {sT2}')
    W1 = lambda lt, ks, n=4, o=0: wreg((lt * 14 + ks) * 4 + o, n, VB)
    W2 = lambda t, p, n=4, o=0: wreg((56 + t * 7 + p) * 4 + o, n, VB)
    e('s_load_dwordx2 s[52:53], s[0:1], 64\ns_load_dwordx2 s[56:57], s[0:1], 80')
    e(f's_mov_b32 s54, {D * F * 2}\ns_mov_b32 s55, 0x20000')
    RS = 928
    DA, TR0, TR1, TR2, TR3 = 10, 11, 12, 13, 14
    e(f'v_cmp_le_u32 vcc, 28, v{LANE}\nv_mov_b32 v{DA}, {3584 - 448}\nv_cndmask_b32 v{DA}, 0, v{DA}, vcc\nv_add_u32 v{DA}, v{DA}, v{L16}')
    rr = lambda l: c(l) >> 2
    lanefn(e, TR0, lambda l: (4 * g(l) + (rr(l) >> 1)) * RS + (rr(l) & 1) * 448 + (l & 3) * 8, LANE, tmp)
    e(f's_lshl_b32 {sT}, {sSh}, 5\nv_add_u32 v{TR1}, {sT}, v{TR0}\ns_lshl_b32 {sT}, {sTb}, 5\nv_add_u32 v{TR0}, {sT}, v{TR0}')
    lanefn(e, TR2, lambda l: (4 * g(l) + rr(l)) * RS + (l & 3) * 16, LANE, tmp)
    lanefn(e, TR3, lambda l: (4 * g(l) + rr(l)) * RS + (l & 3) * 8 + 192, LANE, tmp)
    e(f's_mul_i32 {sT}, {S_W}, 224\nv_add_u32 v{TR2}, {sT}, v{TR2}\nv_add_u32 v{TR3}, {sT}, v{TR3}')
    e('s_waitcnt lgkmcnt(0)')
    def wstage(va, n, start, gstride):
        L = e.lab('wl')
        e(f's_mul_i32 m0, {S_W}, {RS}\ns_mov_b32 {sT2}, {n}\ns_mov_b32 exec_hi, 0xffffff')
        e(f'{L}:\nbuffer_load_dwordx4 v{va}, {WSD}, {start} offen lds')
        e(f's_add_u32 m0, m0, {4 * RS}\ns_add_u32 {start}, {start}, {4 * gstride}\ns_sub_u32 {sT2}, {sT2}, 1\ns_cmp_lg_u32 {sT2}, 0\ns_cbranch_scc1 {L}')
        e('s_mov_b32 exec_hi, -1\ns_waitcnt vmcnt(0)\ns_barrier')
    e(f's_mul_i32 s26, {S_W}, {2 * 3584}\ns_mul_i32 {sT}, {S_ID}, 448\ns_add_u32 s26, s26, {sT}')
    for st in range(2):
        wstage(DA, 28, 's26', 2 * 3584)
        e(f'v_mov_b32 v15, v{TR0}\nv_mov_b32 v16, v{TR1}')
        for kl in range(7):
            if kl == 4: e(f'v_add_u32 v15, {64 * RS}, v15\nv_add_u32 v16, {64 * RS}, v16')
            for lt in range(4):
                for hb in range(2):
                    e(f'ds_read_b64_tr_b16 {W1(lt, 7 * st + kl, 2, 2 * hb)}, v{15 if lt < 3 else 16} offset:{((kl & 3) * 16 + 2 * hb) * RS + (32 * lt if lt < 3 else 0)}')
        e('s_waitcnt lgkmcnt(0)\ns_barrier')
    e('s_mov_b32 s52, s56\ns_mov_b32 s53, s57')
    e(f's_mul_i32 s26, {S_ID}, 224\ns_add_u32 s26, s26, {S_W}\ns_mul_i32 s26, s26, 896')
    for st, (p0, np_) in enumerate(((0, 4), (4, 3))):
        wstage(L16, 8 * np_, 's26', 896)
        e(f'v_mov_b32 v15, v{TR2}\nv_mov_b32 v16, v{TR3}')
        for pl in range(np_):
            if pl == 2: e(f'v_add_u32 v15, {64 * RS}, v15\nv_add_u32 v16, {64 * RS}, v16')
            for t in range(7):
                for hb in range(2):
                    e(f'ds_read_b64_tr_b16 {W2(t, p0 + pl, 2, 2 * hb)}, v{15 if t < 6 else 16} offset:{((pl & 1) * 32 + 16 * hb) * RS + (64 * (t >> 1) + 8 * (t & 1) if t < 6 else 0)}')
        e('s_waitcnt lgkmcnt(0)\ns_barrier')
    set_order(e, order(cfg.get('mlp_d0', 16), cfg.get('mlp_d1', 24)), 48)
    e(f's_mul_i32 {sXL}, {S_W}, 7168\nv_add_u32 v{STG}, {sXL}, v{L16}\ns_mov_b32 {sXd}, {XB}\ns_mov_b32 {sXo}, 0')
    def nxt(n):
        e(f's_min_u32 {sT}, {n}, 127')
        decode(e, 48, sT, sLn, sSn, 56)
        e(f's_lshl_b32 {sT}, {sLn}, 6\ns_add_u32 {sT}, {sT}, {sSn}\ns_mul_i32 {sX}, {sT}, {TILE}\ns_add_u32 {sX}, {sX}, {WS_X1}')
    nxt(S_FIRST)
    e(f'v_and_b32 v{CHK}, 15, v{LANE}\nv_lshlrev_b32 v{CHK}, 1, v{CHK}')
    e(f's_mul_i32 {sT2}, {S_ID}, 14\ns_add_u32 {sT}, {sT2}, {sTb}\ns_lshl_b32 {sT}, {sT}, 5')
    for lt in range(3): e(f'buffer_load_ushort v{62 + lt}, v{CHK}, s[32:35], {sT} offen offset:{32 * lt}')
    e(f's_add_u32 {sT}, {sT2}, {sSh}\ns_lshl_b32 {sT}, {sT}, 5')
    e(f'buffer_load_ushort v65, v{CHK}, s[32:35], {sT} offen')
    e(f'buffer_load_dwordx4 {vr(72, 4)}, v{L16}, s[36:39], 0 offen')
    lanefn(e, XA, lambda l: g(l) * 512 + c(l) * 16, LANE, tmp)
    lanefn(e, PA, lambda l: (c(l) >> 2) * TILE + g(l) * 64 + (c(l) & 3) * 16, LANE, tmp)
    lanefn(e, PB, lambda l: (c(l) >> 2) * TILE + (g(l) >> 1) * 64 + (g(l) & 1) * 8 + (c(l) & 3) * 16, LANE, tmp)
    e(f'v_add_u32 v{HWA}, {HID}, v{L16}\nv_mov_b32 v{ONE}, 0x3f803f80')
    e(f's_mul_i32 {sT}, {S_W}, 6144\ns_add_u32 {sT}, {sT}, {CV}\nv_add_u32 v{CVA}, {sT}, v{L16}')
    Gm = (0, 2, 1, 3)
    bad = lambda l: g(l) == 3 and c(l) >= 8
    for hb in range(2):
        for q in range(4):
            lanefn(e, 40, lambda l: 0x3f80 if c(l) == 8 * hb + 2 * q else 0, LANE, tmp)
            lanefn(e, 41, lambda l: 0x3f800000 if c(l) == 8 * hb + 2 * q + 1 else 0, LANE, tmp)
            e(f'v_or_b32 v{44 + 4 * hb + q}, v40, v41')
    lanefn(e, 52, lambda l: g(l) * 3584 + c(l) * 16, LANE, tmp)
    lanefn(e, 53, lambda l: g(l) * 3584 + c(l) * 16 if c(l) < 8 else BIG, LANE, tmp)
    lanefn(e, 54, lambda l: BIG if bad(l) else (4 * Gm[g(l)] + (c(l) >> 2)) * 512 + (c(l) & 3) * 16, LANE, tmp)
    lanefn(e, 55, lambda l: BIG if bad(l) else (4 * Gm[g(l)] + (c(l) >> 2)) * 16 + (c(l) & 3) * 896, LANE, tmp)
    e(f's_mul_i32 {sT}, {S_W}, 7168\ns_lshl_b32 s26, {S_ID}, 6\ns_add_u32 {sT}, {sT}, s26\ns_mul_i32 s26, {S_W}, 224')
    lanefn(e, 40, lambda l: (c(l) >> 2) * 512 + (c(l) & 3) * 16, LANE, tmp)
    lanefn(e, 41, lambda l: B2A + (c(l) >> 2) * 16, LANE, tmp)
    e(f'v_add_u32 v40, {sT}, v40\nv_add_u32 v41, s26, v41')
    for G in range(4):
        e(f'v_mov_b32 v{56 + G}, {ZA}')
        for gg, r in ((0, 40), (1, 41)):
            m = sum(1 << l for l in range(64) if g(l) == gg and (G < 3 or c(l) < 8))
            e(f's_mov_b32 vcc_lo, 0x{m:x}\ns_mov_b32 vcc_hi, 0\nv_cndmask_b32 v{56 + G}, v{56 + G}, v{r}, vcc')
        e('v_add_u32 v40, 2048, v40\nv_add_u32 v41, 64, v41')
    for k in range(4): e(f'ds_write_b128 v{CVA}, {vr(44 + 4 * k, 4)} offset:{k * 1024}')
    for i in range(4): e(f'v_mov_b32 v{XF + i}, v{ONE}')
    for lt in range(4):
        a = vr(76 + 4 * lt, 4)
        for ks in range(14): e(mm(a, vr(XF, 4), W1(lt, ks), a if ks else 0))
    e('s_waitcnt vmcnt(0) lgkmcnt(0)')
    e(f'v_add_u32 v{CHK}, {B2A}, v{L16}\nds_write_b128 v{CHK}, {vr(72, 4)}\nds_write_b128 v{CHK}, {vr(72, 4)} offset:{XB}')
    e('s_mov_b32 s60, 0xffff\ns_mov_b32 s61, 0\ns_mov_b32 s62, 0xffff0000\ns_mov_b32 s63, 0')
    for lt in range(4):
        a = 76 + 4 * lt; o = 44 + 2 * lt
        e(f'v_and_b32 v{a + 1}, 0xffff0000, v{a}\nv_sub_f32 v{a + 2}, v{a}, v{a + 1}')
        e(pk(a + 1, a + 1, a + 1)); e(pk(a + 2, a + 2, a + 2))
        e(f'v_lshl_or_b32 v{a + 3}, v{62 + lt}, 16, v{62 + lt}')
        e(f'v_cndmask_b32 v{o}, 0, v{a + 3}, s[62:63]\nv_cndmask_b32 v{o}, v{o}, v{a + 1}, s[60:61]\nv_cndmask_b32 v{o + 1}, 0, v{a + 2}, s[60:61]')
    for k in range(2): e(f'ds_write_b128 v{CVA}, {vr(44 + 4 * k, 4)} offset:{4096 + k * 1024}')
    sH = ['s40', 's41', 's42', 's43']
    for lt in range(4):
        if lt < 3: e(f's_add_u32 {sT}, {sTb}, {lt}')
        else: e(f's_mov_b32 {sT}, {sSh}')
        e(f's_lshr_b32 {sH[lt]}, {sT}, 1\ns_lshl_b32 {sH[lt]}, {sH[lt]}, 10\ns_and_b32 {sT}, {sT}, 1\ns_lshl_b32 {sT}, {sT}, 3\ns_add_u32 {sH[lt]}, {sH[lt]}, {sT}')
    c1 = -2 * math.sqrt(2 / math.pi) * math.log2(math.e)
    e(f's_mov_b32 {sN}, {S_FIRST}\ns_mov_b32 {sIt}, 1')
    e(f's_lshl_b32 {sPf}, {S_FIRST}, 2\ns_add_u32 {sPf}, {sPf}, {S_W}\ns_lshl_b32 {sPf}, {sPf}, 8\ns_add_u32 {sPf}, {sPf}, {WS_PF}')
    e('s_waitcnt lgkmcnt(0)')
    SMq = GT; SA = 36; sBad = 's46'
    pa = lambda d, a, b: e(f'v_pk_add_f32 {vr(d, 2)}, {vr(a, 2)}, {vr(b, 2)}')
    def pre(): e(z2(SMq))
    def extra(i):
        for k in range(4):
            r = OA + 4 * i + k
            e(f'v_dot2c_f32_bf16 v{SMq}, v{r}, v{ONE}\nv_dot2c_f32_bf16 v{SMq + 1}, v{r}, v{r}')
    def stat_write(area, t):
        e(f'v_bfe_u32 v{t}, v{L16}, 2, 7\ns_lshl_b32 {sT}, {S_W}, 8\ns_add_u32 {sT}, {sT}, {area}\nv_add_u32 v{t}, {sT}, v{t}')
        e(f'v_mov_b64 {vr(SMq + 2, 2)}, {vr(SMq, 2)}')
        e(f'v_permlane32_swap_b32 v{SMq + 2}, v{SMq}\nv_permlane32_swap_b32 v{SMq + 3}, v{SMq + 1}')
        pa(SMq, SMq, SMq + 2)
        e(f'ds_write2_b32 v{t}, v{SMq}, v{SMq + 1} offset0:0 offset1:32')
    def stat_read(area):
        e(f'v_bfe_u32 v{LANE}, v{L16}, 2, 6\nv_add_u32 v{LANE}, {area}, v{LANE}')
        for k in range(2):
            for w in range(4): e(f'ds_read2_b32 {vr(SA + 8 * k + 2 * w, 2)}, v{LANE} offset0:{64 * w + 32 * k} offset1:{64 * w + 32 * k + 16}')
    def stat_calc(younger):
        m, q, r = SA, SA + 8, SA + 4
        e(f's_waitcnt lgkmcnt({4 + younger})')
        pa(m, m, m + 2); pa(m + 4, m + 4, m + 6); pa(m, m, m + 4)
        e(f's_waitcnt lgkmcnt({younger})')
        pa(q, q, q + 2); pa(q + 4, q + 4, q + 6); pa(q, q, q + 4)
        for k in range(2): e(f'v_mul_f32 v{m + k}, {fhex(-1 / D)}, v{m + k}\nv_mul_f32 v{q + k}, {fhex(1 / D)}, v{q + k}')
        e(f'v_cmp_u_f32 vcc, v{q}, v{q + 1}')
        e(f'v_pk_fma_f32 {vr(q, 2)}, {vr(m, 2)}, {vr(m, 2)}, {vr(q, 2)} neg_lo:[1,0,0] neg_hi:[1,0,0]')
        for k in range(2): e(f'v_max_f32 v{q + k}, 0, v{q + k}')
        for k in range(2): e(f'v_mul_f32 v{q + k}, {fhex(1 + 1e-5)}, v{q + k}')
        for k in range(2): e(f'v_add_f32 v{q + k}, {fhex(1e-10)}, v{q + k}')
        for k in range(2): e(f'v_rsq_f32 v{r + k}, v{q + k}')
        e(f'v_pk_mul_f32 {vr(IR, 2)}, {vr(q, 2)}, {vr(r, 2)}')
        for k in range(2): e(f'v_mul_f32 v{K1 + k}, {fhex(c1)}, v{r + k}')
        for k in range(2): e(f'v_cndmask_b32 v{m + k}, v{IR + k}, v{m + k}, s[60:61]')
        e(f'v_pk_mul_f32 {vr(r, 2)}, {vr(r, 2)}, {vr(r, 2)}')
        for k in range(2): e(f'v_and_b32 v{q + k}, 0xffff0000, v{m + k}')
        e(f'v_pk_mul_f32 {vr(r, 2)}, {vr(r, 2)}, {vr(K1, 2)}')
        e(f'v_pk_add_f32 {vr(m, 2)}, {vr(m, 2)}, {vr(q, 2)} neg_lo:[0,1] neg_hi:[0,1]')
        for k in range(2): e(f'v_mul_f32 v{K2 + k}, {fhex(0.044715)}, v{r + k}')
        for k in range(4): e(pk(BA + k, q + (k >> 1), m + (k >> 1)))
    def first_reads():
        for k in range(2): e(f'ds_read_b128 {vr(XF + 4 * k, 4)}, v{CVA} offset:{4096 + k * 1024}')
        for n in range(5): e(f'ds_read_b128 {vr(OA + 4 * n, 4)}, v{XA} offset:{n * 2048}')
    e('P_slow:')
    trace(e, cfg, 0, sN, CHK)
    e(f'v_add_u32 v{LANE}, {sXL}, v{L16}\ns_waitcnt lgkmcnt(0)')
    stage_tile(e, sX, sT, STG, LANE, OA, CHK, extra, pre)
    trace(e, cfg, 1, sN, CHK)
    stat_write(STAT + 1024, CHK)
    e('s_waitcnt lgkmcnt(0)\ns_barrier')
    stat_read(STAT + 1024)
    first_reads()
    stat_calc(7)
    e('P_body:')
    cstk(e, cfg, 0, sN, cfg.get('kk', 70))
    trace(e, cfg, 2, sN, CHK)
    e(f's_mov_b32 {sLay}, {sLn}\ns_mov_b32 {sS}, {sSn}')
    e(f's_bitcmp1_b32 {S_W}, 0\ns_waitcnt lgkmcnt(0)\ns_cbranch_scc1 P_odd')
    def body(par):
        lq = LQ(e)
        def emit(x):
            if isinstance(x, tuple):
                if x[0] == 'wait': lq.wait(x[1])
                else: lq.issue(*x)
            else: e(x)
        units = [[(0, 0), (1, 0)], [(2, 0), (3, par)], [(0, 1), (1, 1), (2, 1)]]
        areg = {}
        for u in units:
            for x in u: areg[x] = AC + 4 * len(areg)
        reads = []; ms = []
        for u in units:
            lst = []
            for ks in range(14):
                got = {}
                for lt, tau in u:
                    if tau not in got:
                        got[tau] = len(reads)
                        reads.append((f'ds_read_b128 {vr(OA + 4 * (len(reads) % 7), 4)}, v{XA} offset:{ks * 2048 + tau * 256}', ('x', len(reads))))
                    a = vr(areg[lt, tau], 4)
                    lst.append((mm(a, W1(lt, ks), vr(OA + 4 * (got[tau] % 7), 4), a), ('x', got[tau]), got[tau]))
            ms.append(lst)
        LA = 5
        aug = [(f'v_mfma_f32_16x16x16_bf16 {vr(areg[x], 4)}, {vr(XF + 2 * x[0], 2)}, {vr(BA + 2 * x[1], 2)}, 0', None, None) for u in units for x in u]
        def gelu(u):
            out = []
            for lt, tau in u:
                a = areg[lt, tau]
                R4 = range(4)
                out += [f'v_mul_f32 v{GT + i}, v{a + i}, v{a + i}' for i in R4]
                out += [f'v_fma_f32 v{GT + i}, v{GT + i}, v{K2 + tau}, v{K1 + tau}' for i in R4]
                out += [f'v_mul_f32 v{GT + i}, v{GT + i}, v{a + i}' for i in R4]
                out += [f'v_exp_f32 v{GT + i}, v{GT + i}' for i in R4]
                out += [f'v_fma_f32 v{GT + i}, v{GT + i}, v{IR + tau}, v{IR + tau}' for i in R4]
                out += [f'v_rcp_f32 v{GT + i}, v{GT + i}' for i in R4]
                out.append(f'v_add_u32 v{LANE}, {sH[lt]}, v{HWA}')
                out += [f'v_mul_f32 v{a + i}, v{a + i}, v{GT + i}' for i in R4]
                out += [pk(a, a, a + 1), pk(a + 1, a + 2, a + 3)]
                out.append((f'ds_write_b64 v{LANE}, {vr(a, 2)} offset:{tau * 7168}', 'w'))
            return out
        hreg = lambda p: (88, XF + 4, XF)[p % 3]
        hrd = lambda tau: [(f'ds_read_b128 {vr(hreg(p), 4)}, v{HWA} offset:{tau * 7168 + p * 1024}', ('h', tau, p)) for p in range(7)]
        def s2(tau, O):
            od = [(p, t) for p in range(7) for t in range(7)]
            if tau: od = od[:35] + [(p, t) for t in range(7) for p in (5, 6)]
            return [(mm(vr(O + 4 * t, 4), W2(t, p), vr(hreg(p), 4), vr(O + 4 * t, 4) if p else 0), ('h', tau, p), p) for p, t in od]
        def epi(O, so):
            out = []
            for pr in range(3):
                a = O + 8 * pr
                out += [pk(a, a, a + 1), pk(a + 1, a + 2, a + 3), pk(a + 2, a + 4, a + 5), pk(a + 3, a + 6, a + 7)]
                out.append(f'buffer_store_dwordx4 {vr(a, 4)}, v{PA}, {WSR}, {so} offen offset:{pr * 256}')
            a = O + 24
            out += [pk(a, a, a + 1), pk(a + 1, a + 2, a + 3), f'buffer_store_dwordx2 {vr(a, 2)}, v{PB}, {WSR}, {so} offen offset:768']
            return out
        cst(e, cfg, 0)
        st = {'n': 5}
        n0 = len(e.L)
        e(f's_and_b32 {sT}, {sIt}, 1\ns_lshl_b32 {sT2}, {S_FIRST}, 1\ns_add_u32 {sT}, {sT}, {sT2}\ns_mul_i32 {sPt}, {sT}, {PART_SLOT}\ns_mul_i32 {sT}, {S_W}, 896\ns_add_u32 {sPt}, {sPt}, {sT}\ns_add_u32 {sPt}, {sPt}, {WS_PART}')
        e(f's_add_u32 {sT2}, {sN}, 5\ns_add_u32 {sXL}, {sXL}, {sXd}')
        nxt(sT2)
        e(f's_mul_i32 s26, {S_ID}, 3584\ns_add_u32 s26, s26, {sPt}\ns_add_u32 {sT2}, s26, {4 * TILE}')
        sal = [x + '\n;\n;' for x in e.L[n0:]]; del e.L[n0:]
        dma = dma_tile(sX, sT, STG, sXL); dpos = cfg.get('pdma', 1)
        sched(e, lq, aug + ms[0], reads, LA, st, sal, 0, ms[1][0][1])
        cst(e, cfg, 1)
        nb = cfg.get('pbar', 38)
        g0 = gelu(units[0]); ns = cfg.get('psplit', 48)
        sched(e, lq, ms[1], reads, LA, st, g0[:ns], 0, ms[2][0][1])
        cst(e, cfg, 2)
        sched(e, lq, ms[2][:nb], reads, LA, st, g0[ns:] + gelu(units[1]), 0)
        lq.wait('w'); e('s_barrier')
        h0 = hrd(0)
        lq.issue(*h0[0])
        sched(e, lq, ms[2][nb:], reads, LA, st, dma[:4] if dpos == 1 else [], 0, ('h', 0, 0))
        cst(e, cfg, 3)
        g2 = gelu(units[2])
        for k, x in enumerate(dma[4:] if dpos == 1 else dma): g2.insert(9 * k + (0 if dpos == 1 else 30), x)
        sched(e, lq, s2(0, OA), h0, 2, {'n': 1}, g2)
        cst(e, cfg, 4)
        lq.drain(); e('s_barrier')
        h1 = hrd(1)
        lq.issue(*h1[0]); lq.issue(*h1[1])
        cst(e, cfg, 5)
        z = s2(1, AC); st = {'n': 2}; ep = epi(AC, sT2)
        sched(e, lq, z[:40], h1, 2, st, epi(OA, 's26'))
        sched(e, lq, z[40:44], h1, 2, st, ep[:5])
        sched(e, lq, z[44:48], h1, 2, st, ep[5:10])
        sched(e, lq, z[48:], h1, 2, st, [])
        cst(e, cfg, 6)
        for x in ep[10:]: e(x)
        cst(e, cfg, 7)
    body(0)
    e('s_branch P_red')
    e('P_odd:')
    body(1)
    e('P_red:')
    cstk(e, cfg, 1, sN, cfg.get('kk', 70))
    trace(e, cfg, 3, sN, CHK)
    SEL = XF; AD = 88; AR = 48; RSD = 32; DD = 52
    PR = [60, 64, 68, 72, 76, 80, 84, 32]
    e(f'v_add_u32 v{LANE}, {sXL}, v{L16}\ns_waitcnt vmcnt(8)')
    for i in range(7): e(f'ds_read_b128 {vr(OA + 4 * i, 4)}, v{LANE} offset:{i * 1024}')
    for k, r in enumerate((SEL, SEL + 4, AD, AR)): e(f'ds_read_b128 {vr(r, 4)}, v{CVA} offset:{k * 1024}')
    pre()
    e(f'v_add_u32 v{XA}, {sXd}, v{XA}\nv_mov_b32 v{CHK}, {sIt}\ns_lshl_b32 {sT}, {S_ID}, 2\ns_add_u32 {sT}, {sT}, {sPf}')
    nd = cfg.get('pnd', 3)
    for i in range(nd):
        e(f's_waitcnt lgkmcnt({10 - i})'); extra(i)
    e('s_waitcnt lgkmcnt(0)')
    for G in range(4): e(f'v_add_u32 v{AR + G}, {sXo}, v{AR + G}')
    for G in range(4): e(f'ds_read_b128 {vr(RSD + 4 * G, 4)}, v{AR + G}')
    e(f's_add_u32 {sXo}, {sXo}, {sXd}\ns_sub_i32 {sXd}, 0, {sXd}')
    e(f'v_bfe_u32 v{LANE}, v{L16}, 2, 5')
    cstk(e, cfg, 2, sN, cfg.get('kk', 70))
    e('s_waitcnt vmcnt(0)')
    cstk(e, cfg, 3, sN, cfg.get('kk', 70))
    e(f's_mov_b64 exec, 1\nbuffer_store_dword v{CHK}, off, {WSR}, {sT}\ns_mov_b64 exec, -1')
    for i in range(nd, 7): extra(i)
    e(f'buffer_load_dword v{CHK}, v{LANE}, {WSR}, {sPf} offen sc1')
    stat_write(STAT, AR)
    e('s_waitcnt lgkmcnt(1)')
    for G in range(4):
        d = vr(DD + 4 * (G >> 1), 4); e(mm(d, vr(SEL + 4 * (G & 1), 4), vr(RSD + 4 * G, 4), d if G & 1 else 0))
    e(f's_mul_i32 {sT}, {S_ID}, {TILE}\ns_add_u32 {sT}, {sT}, {sPt}\ns_add_u32 {sT2}, {sT}, {4 * 3584}')
    e('P_fl:')
    e(f's_waitcnt vmcnt(0)\nv_cmp_gt_u32 vcc, {sIt}, v{CHK}\ns_cbranch_vccz P_fo')
    e(f'buffer_load_dword v{CHK}, v{LANE}, {WSR}, {sPf} offen sc1')
    spin(e)
    e('s_branch P_fl')
    e('P_fo:')
    cstk(e, cfg, 4, sN, cfg.get('kk', 70))
    trace(e, cfg, 4, sN, CHK)
    for G in range(4):
        for sq in range(2): e(f'buffer_load_dwordx4 {vr(PR[2 * G + sq], 4)}, v{AD + (G == 3)}, {WSR}, {(sT, sT2)[sq]} offen offset:{G * 256} sc1')
    e('s_waitcnt lgkmcnt(0)\ns_barrier')
    stat_read(STAT)
    stat_calc(0)
    e(f's_or_b32 {sBad}, vcc_lo, vcc_hi')
    cstk(e, cfg, 5, sN, cfg.get('kk', 70))
    for G in range(4):
        for sq in range(2):
            d = vr(DD + 4 * (G >> 1), 4)
            e(f's_waitcnt vmcnt({7 - 2 * G - sq})'); e(mm(d, vr(SEL + 4 * (G & 1), 4), vr(PR[2 * G + sq], 4), d))
    cstk(e, cfg, 6, sN, cfg.get('kk', 70))
    first_reads()
    Y = 32
    for k in range(4): e(pk(Y + k, DD + 2 * k, DD + 2 * k + 1))
    e(f'v_permlane16_swap_b32 v{Y}, v{Y + 2}\nv_permlane16_swap_b32 v{Y + 1}, v{Y + 3}')
    e(f's_cmp_eq_u32 {sLay}, 0\ns_cbranch_scc1 P_l0')
    e(f's_lshl_b32 {sT}, {sS}, 3\ns_add_u32 {sT}, {sT}, {S_ID}\ns_mul_i32 {sT}, {sT}, 3584\ns_mul_i32 {sT2}, {S_W}, 224\ns_add_u32 {sT}, {sT}, {sT2}')
    e(f'buffer_store_dwordx4 {vr(Y, 4)}, v{AD + 3}, {OUT_SRD}, {sT} offen')
    e('s_branch P_next')
    e('P_l0:')
    SQ = Y + 4
    e(z2(SQ))
    for k in range(4): e(f'v_min_u32 v{Y + k}, -2, v{Y + k}')
    for k in range(4): e(f'v_dot2c_f32_bf16 v{SQ}, v{Y + k}, v{ONE}\nv_dot2c_f32_bf16 v{SQ + 1}, v{Y + k}, v{Y + k}')
    e(f'v_bfe_u32 v{LANE}, v{L16}, 1, 5\ns_lshl_b32 s26, {S_W}, 5\ns_add_u32 s26, s26, {STAT2}\nv_add_u32 v{CHK}, s26, v{LANE}\nv_add_u32 v{LANE}, {STAT2}, v{LANE}')
    for n in (4, 8):
        for k in range(2): e(f'v_add_f32_dpp v{SQ + k}, v{SQ + k}, v{SQ + k} row_ror:{n} {DPPM}')
    for n in (16, 32):
        e(f'v_mov_b64 {vr(SQ + 2, 2)}, {vr(SQ, 2)}')
        e(f'v_permlane{n}_swap_b32 v{SQ + 2}, v{SQ}\nv_permlane{n}_swap_b32 v{SQ + 3}, v{SQ + 1}')
        pa(SQ, SQ, SQ + 2)
    e(f'ds_write_b64 v{CHK}, {vr(SQ, 2)}')
    e(f's_mul_i32 {sT}, {sS}, {TILE}\ns_mul_i32 {sT2}, {S_W}, 7168\ns_add_u32 {sT}, {sT}, {sT2}\ns_lshl_b32 {sT2}, {S_ID}, 6\ns_add_u32 {sT}, {sT}, {sT2}\ns_add_u32 {sT2}, {sT}, {WS_XR1}\ns_add_u32 {sT}, {sT}, {WS_XN1}')
    e('s_waitcnt lgkmcnt(0)\ns_barrier')
    for w in range(2): e(f'ds_read2_b64 {vr(SQ + 4 * w, 4)}, v{LANE} offset0:{w * 8} offset1:{w * 8 + 4}')
    U = Y + 16
    for k in range(4): e(f'v_lshlrev_b32 v{U + 2 * k}, 16, v{Y + k}\nv_and_b32 v{U + 2 * k + 1}, 0xffff0000, v{Y + k}')
    e('s_waitcnt lgkmcnt(0)')
    pa(SQ, SQ, SQ + 2); pa(SQ + 4, SQ + 4, SQ + 6); pa(SQ, SQ, SQ + 4)
    e(f'v_mul_f32 v{SQ}, {fhex(-1 / D)}, v{SQ}\nv_mul_f32 v{SQ + 1}, {fhex(1 / D)}, v{SQ + 1}')
    e(f'v_fma_f32 v{SQ + 1}, -v{SQ}, v{SQ}, v{SQ + 1}\nv_max_f32 v{SQ + 1}, 0, v{SQ + 1}\nv_add_f32 v{SQ + 1}, {fhex(1e-5)}, v{SQ + 1}\nv_rsq_f32 v{SQ + 2}, v{SQ + 1}')
    e(f'v_mul_f32 v{SQ}, v{SQ}, v{SQ + 2}')
    for k in range(0, 8, 2): e(f'v_pk_fma_f32 {vr(U + k, 2)}, {vr(U + k, 2)}, {vr(SQ + 2, 2)}, {vr(SQ, 2)} op_sel_hi:[1,0,0]')
    for k in range(4): e(pk(U + 8 + k, U + 2 * k, U + 2 * k + 1))
    for k in range(4): e(f'v_min_u32 v{U + 8 + k}, -2, v{U + 8 + k}')
    e(f'buffer_store_dwordx4 {vr(U + 8, 4)}, v{AD + 2}, {WSR}, {sT} offen sc1')
    e(f'buffer_store_dwordx4 {vr(Y, 4)}, v{AD + 2}, {WSR}, {sT2} offen sc1')
    e('P_next:')
    cstk(e, cfg, 7, sN, cfg.get('kk', 70))
    trace(e, cfg, 5, sN, CHK)
    e(f's_add_u32 {sN}, {sN}, 5\ns_add_u32 {sIt}, {sIt}, 1\ns_cmp_ge_u32 {sN}, 128\ns_cbranch_scc1 DONE')
    e(f's_cmp_eq_u32 {sBad}, 0\ns_cbranch_scc1 P_body\ns_branch P_slow')
```

```python
from asmlib import *
from layout import *

WSR = 's[4:7]'
S_W = 's8'
S_ID = 's10'
S_LAY = 's11'
BIG = 0x7ff00000
DPPM = 'row_mask:0xf bank_mask:0xf'
NR = 8

def trace(e, cfg, ev, sitem, vt, wave=0):
    if not cfg.get('trace') or (cfg['trace'] == 'rec' and wave == 0 and vt != 20): return
    if cfg['trace'] == 'lite' and wave == 0 and vt != 20 and (sitem, ev) not in (('s21', 3), ('s22', 7), ('s16', 4), ('s15', 5), ('s15', 2)): return
    l = e.lab('tr')
    e(f's_cmp_lg_u32 {S_W}, {wave}\ns_cbranch_scc1 {l}')
    e(f's_memrealtime s[86:87]\ns_lshl_b32 s85, {sitem}, 5\ns_add_u32 s85, s85, s84\ns_waitcnt lgkmcnt(0)')
    e(f'v_mov_b32 v{vt}, s86\ns_mov_b64 exec, 1\nbuffer_store_dword v{vt}, off, {WSR}, s85 offset:{4 * ev}\ns_mov_b64 exec, -1')
    e(f'{l}:')

def cst(e, cfg, i):
    if cfg.get('cst') is True: e(f's_memtime s[{64 + 2 * i}:{65 + 2 * i}]')

def cstk(e, cfg, i, sreg, lo):
    if cfg.get('cst') != 'k': return
    l = e.lab('ck')
    e(f's_cmp_lt_i32 {sreg}, {lo}\ns_cbranch_scc0 {l}\ns_memtime s[{64 + 2 * i}:{65 + 2 * i}]\n{l}:')

def load_weights(e, nfrag, vl16, sbase, vbase, first=0):
    for i in range(nfrag):
        if i % 4 == 0 and i: e(f's_add_u32 {sbase}, {sbase}, 4096')
        e(f'buffer_load_dwordx4 {wreg((first + i) * 4, 4, vbase)}, v{vl16}, {WSR}, {sbase} offen offset:{(i % 4) * 1024}')

def sig_poll(e, vaddr, soff, stag, regs, mask, fail, cnt='s99', gap=7):
    n = len(regs)
    L = e.lab('sp'); Dn = e.lab('spd')
    if mask: e(f's_mov_b64 exec, {mask}')
    ld = lambda r: e(f'buffer_load_dword v{r}, v{vaddr}, {WSR}, {soff} offen sc1')
    for r in regs[:-1]:
        ld(r); e(f's_nop {gap}')
    e(f'{L}:')
    for i in range(n):
        ld(regs[(i + n - 1) % n])
        e(f's_waitcnt vmcnt({n - 1})')
        e(f'v_cmp_gt_u32 vcc, {stag}, v{regs[i]}')
        e(f's_cbranch_vccz {Dn}')
    e(f's_sub_u32 {cnt}, {cnt}, 1\ns_cbranch_scc1 {fail}\ns_branch {L}')
    e(f'{Dn}:')
    if mask: e('s_mov_b64 exec, -1')

def chk(regs, acc, first):
    out = []; r = list(regs)
    if first:
        out.append(f'v_max3_u32 v{acc}, v{r[0]}, v{r[1]}, v{r[2]}'); r = r[3:]
    while len(r) >= 2:
        out.append(f'v_max3_u32 v{acc}, v{acc}, v{r[0]}, v{r[1]}'); r = r[2:]
    if r: out.append(f'v_max_u32 v{acc}, v{acc}, v{r[0]}')
    return out

def interleave(e, main, fill, per=2):
    fill = list(fill)
    for m in main:
        e(m)
        for _ in range(per):
            if fill: e(fill.pop(0))
    for f in fill: e(f)

def rec_a(e, cfg):
    stamp = lambda e, i: cst(e, cfg, i)
    nsteps = cfg.get('nsteps', 63)
    VB = 120
    (L16, MKA, MKB, X0, X1, X2, IDX0, IDX1, LW, RD, PX, PM, SGP, SGS, CHK, LANE) = range(1, 17)
    SEL = 18
    PL = [0, 17, 22, 23]
    MF = 24; ACC = 52; XK = 80; MK = 112
    tmp = list(range(52, 62))
    sX, sMS, sMN, sP, sTag, sSigP, sSigS, sT, sT2 = 's12', 's13', 's14', 's15', 's16', 's17', 's18', 's19', 's20'
    e(f'v_and_b32 v{LANE}, 63, v0\nv_lshlrev_b32 v{L16}, 4, v{LANE}')
    e(f's_lshl_b32 {sT}, {S_ID}, 2\ns_add_u32 {sT}, {sT}, {S_W}\ns_mul_i32 {sT}, {sT}, {98 * 1024}')
    if WS_WA: e(f's_add_u32 {sT}, {sT}, {WS_WA}')
    sK = ['s%d' % (40 + i) for i in range(7)]
    e(f's_lshl_b32 {sT2}, {S_ID}, 2\ns_add_u32 {sT2}, {sT2}, {S_W}\ns_mul_i32 {sT2}, {sT2}, {cfg.get("rot", 1)}\ns_mul_i32 s47, {sT2}, 9363\ns_lshr_b32 s47, s47, 16\ns_mul_i32 s47, s47, 7\ns_sub_u32 {sT2}, {sT2}, s47')
    for i in range(7):
        e(f's_lshl_b32 {sK[i]}, {sT2}, 11\ns_add_u32 {sK[i]}, {sK[i]}, {sT}')
        e(f's_add_u32 {sT2}, {sT2}, 1\ns_cmp_eq_u32 {sT2}, 7\ns_cselect_b32 {sT2}, 0, {sT2}')
    e(f'v_mov_b32 v{MKA}, v{L16}')
    for t in range(7):
        for i in range(7):
            for hf in range(2):
                e(f'buffer_load_dwordx4 {wreg((t * 14 + 2 * i + hf) * 4, 4, VB)}, v{MKA}, {WSR}, {sK[i]} offen offset:{hf * 1024}')
        if t < 6: e(f'v_add_u32 v{MKA}, {14 * 1024}, v{MKA}')
    e(f's_mul_i32 {sT2}, {S_LAY}, {MA_LAYER}\ns_add_u32 {sT2}, {sT2}, {WS_MA}')
    for i in range(7): e(f's_sub_u32 {sK[i]}, {sK[i]}, {sT}\ns_lshr_b32 {sK[i]}, {sK[i]}, 1\ns_add_u32 {sK[i]}, {sK[i]}, {sT2}')
    g = lambda l: l >> 4
    c = lambda l: l & 15
    def g1(l, half): return 8 + ((2 * half + (g(l) >> 1)) if g(l) % 2 == 0 else 4 + (g(l) >> 1))
    lanefn(e, MKA, lambda l: (c(l) & 7) * 16 + 128 * (g(l) if c(l) < 8 else g1(l, 0)), LANE, tmp)
    lanefn(e, MKB, lambda l: (c(l) & 7) * 16 + 128 * (4 + g(l) if c(l) < 8 else g1(l, 1)), LANE, tmp)
    lanefn(e, X0, lambda l: c(l) * 16 + 512 * g(l), LANE, tmp)
    lanefn(e, X1, lambda l: c(l) * 16 + 512 * g1(l, 0), LANE, tmp)
    lanefn(e, X2, lambda l: c(l) * 16 + 512 * g1(l, 1), LANE, tmp)
    e(f's_mul_i32 {sT}, {S_W}, {14 * 128}')
    for r in (MKA, MKB): e(f'v_add_u32 v{r}, {sT}, v{r}')
    e(f's_mul_i32 {sT}, {S_W}, {14 * 512}')
    for r in (X0, X1, X2): e(f'v_add_u32 v{r}, {sT}, v{r}')
    lanefn(e, IDX0, lambda l: 0xeeeeeeee if l & 1 else 0x44444444, LANE, tmp)
    lanefn(e, IDX1, lambda l: (0xeeeeeeee if l & 1 else (0xee44ee44 if g(l) >= 2 else 0x44444444)), LANE, tmp)
    for rho in range(4):
        lanefn(e, SEL + rho, lambda l: 0x3f803f80 if ((l & 1) == rho >> 1 and (c(l) >> 1) == 2 * g(l) + (rho & 1)) else 0, LANE, tmp)
    e(f'v_lshlrev_b32 v{RD}, 2, v{LANE}\ns_mul_i32 {sT}, {S_W}, 768\nv_add_u32 v{LW}, {sT}, v{RD}')
    dl = lambda l: 8 * (c(l) >> 3) + 2 * (c(l) & 3) + ((c(l) >> 2) & 1)
    lanefn(e, RD, lambda l: (g(l) & 1) * 3072 + ((g(l) >> 1) * 16 + dl(l)) * 4, LANE, tmp)
    e(f's_and_b32 {sT}, {S_W}, 1\ns_lshl_b32 {sT2}, {sT}, 7\nv_add_u32 v{RD}, {sT2}, v{RD}')
    lanefn(e, PM, lambda l: g(l) * 16 + c(l) * 4 if c(l) < 4 else BIG, LANE, tmp)
    lanefn(e, PX, lambda l: (c(l) >> 3) * 256 + g(l) * 32 + (c(l) & 7) * 4, LANE, tmp)
    e(f's_lshl_b32 {sT2}, {sT}, 7\nv_add_u32 v{PX}, {sT2}, v{PX}\ns_lshl_b32 {sT2}, {sT}, 6\nv_add_u32 v{PM}, {sT2}, v{PM}')
    e(f's_and_b32 s21, {S_ID}, 3\ns_lshr_b32 {sT}, {S_ID}, 2\ns_mul_i32 {sT}, {sT}, 2560\ns_lshl_b32 {sT2}, s21, 9\ns_add_u32 {sT2}, {sT2}, {sT}\nv_add_u32 v{PX}, {sT2}, v{PX}')
    e(f's_lshl_b32 {sT2}, s21, 7\ns_add_u32 {sT2}, {sT2}, {sT}\ns_add_u32 {sT2}, {sT2}, 2048\nv_add_u32 v{PM}, {sT2}, v{PM}')
    e(f'v_min_u32 v{SGP}, 55, v{LANE}\nv_lshlrev_b32 v{SGP}, 2, v{SGP}\ns_and_b32 {sT}, {S_ID}, {NR - 1}\ns_lshl_b32 {sT}, {sT}, 8\nv_add_u32 v{SGP}, {sT}, v{SGP}')
    lanefn(e, SGS, lambda l: l * 256 if l < NR else BIG, LANE, tmp)
    e(f's_lshl_b32 {sT}, {S_ID}, 1\ns_and_b32 {sT2}, {S_W}, 1\ns_add_u32 {sT}, {sT}, {sT2}\ns_lshl_b32 {sT}, {sT}, 2\nv_add_u32 v{SGS}, {sT}, v{SGS}')
    e(f's_mul_i32 {sT}, {S_LAY}, {MA_LAYER}\ns_add_u32 {sMS}, {sT}, {WS_MA}\ns_add_u32 {sMN}, {sMS}, 7168')
    e(f's_mul_i32 {sT}, {S_LAY}, {64 * PR_STEP}\ns_add_u32 {sP}, {sT}, {WS_PR}')
    e(f's_lshl_b32 {sT}, {S_LAY}, 13\ns_add_u32 {sSigP}, {sT}, {WS_SIG}\ns_add_u32 {sSigS}, {sSigP}, 4096')
    e(f's_mul_i32 {sX}, {S_LAY}, {X_LAYER}\ns_add_u32 {sX}, {sX}, {WS_XN0}')
    e(f's_mov_b32 {sTag}, 1')
    sV = 's21'; TCH = 0; sVer = 's22'
    e(f's_mov_b32 {sVer}, 0')
    PL = [17, 22, 23, LANE]
    def xload(f0=0):
        for kt in range(2):
            for grp in range(2):
                for half in range(2):
                    f = kt * 4 + grp * 2 + half
                    va = X0 if grp == 0 else (X1, X2)[half]
                    off = kt * 256 + (2048 if (grp == 0 and half == 1) else 0)
                    if f >= f0: e(f'buffer_load_dwordx4 {vr(XK + 4 * f, 4)}, v{va}, {WSR}, {sX} offen offset:{off} sc1')
    xload()
    XS = 17; sM0 = 's21'; sXn = 's24'
    PL = [22, 23, LANE, CHK]
    e(f's_lshl_b32 {sM0}, {S_W}, 13\ns_add_u32 {sM0}, {sM0}, 8192\nv_add_u32 v{XS}, {sM0}, v{L16}')
    xdma = []
    for kt in range(2):
        for grp in range(2):
            for half in range(2):
                f = kt * 4 + grp * 2 + half
                va = X0 if grp == 0 else (X1, X2)[half]
                off = kt * 256 + (2048 if (grp == 0 and half == 1) else 0)
                xdma.append((f's_add_i32 m0, {sM0}, {f * 1024 - off}', f'buffer_load_dwordx4 v{va}, {WSR}, {sX} offen offset:{off} sc1 lds'))
    TAG = 0
    def poison():
        e(f'v_mov_b32 v{CHK}, -1')
        for k in range(6): e(f'ds_write2st64_b32 v{RD}, v{CHK}, v{CHK} offset0:{2 * k} offset1:{2 * k + 1}')
        e('s_waitcnt lgkmcnt(0)')
    poison()
    W = lambda t, kb: wreg((t * 7 + kb) * 8, 8, VB)
    S = lambda t, kb: f'v_smfmac_f32_16x16x64_bf16 {vr(ACC + 4 * t, 4)}, {vr(MF + 4 * kb, 4)}, {W(t, kb)}, v{IDX0}'
    pk = lambda d, a: f'v_cvt_pk_bf16_f32 v{d}, v{a}, v{a + 1}'
    e('A_loop:')
    for i in range(0, 28, 2): e(f'v_mov_b64 {vr(ACC + i, 2)}, 0')
    e('A_xchk:')
    ck = chk(range(XK, XK + 32), CHK, True)
    e('s_waitcnt vmcnt(0) lgkmcnt(0)')
    for x in ck: e(x)
    e(f'v_cmp_eq_u32 vcc, -1, v{CHK}\ns_cbranch_vccnz A_xbad')
    e(f's_add_u32 {sX}, {sX}, 28672')
    stamp(e, 0)
    if cfg.get('cst'): e(f's_cmp_lg_u32 {sTag}, 9\ns_cbranch_scc1 A_c9\ns_memtime s[78:79]\nA_c9:')
    e(f'v_mov_b32 v{TAG}, {sTag}\ns_add_u32 {sT}, {sMS}, 4096')
    e(f's_cmp_lg_u32 {S_W}, 3\ns_cbranch_scc1 A_go')
    sig_poll(e, SGP, sSigP, sTag, PL[:cfg.get('pd', 4)], 0, 'FAIL')
    if cfg.get('dA'): e(f's_nop {cfg["dA"] - 1}')
    e('A_go:\ns_barrier')
    e('A_retry:')
    stamp(e, 1)
    ldm = lambda kb: f'buffer_load_dwordx4 {vr(MF + 4 * kb, 4)}, v{L16}, {WSR}, {sK[kb]} offen sc1'
    gap = cfg.get('gap', 2)
    for kb in range(4):
        e(ldm(kb))
        if kb < 3 and gap: e(f's_nop {gap}')
    later = [ldm(4), ldm(5), ldm(6),
             f'buffer_load_dwordx4 {vr(MK, 4)}, v{MKA}, {WSR}, {sMN} offen sc1',
             f'buffer_load_dwordx4 {vr(MK + 4, 4)}, v{MKB}, {WSR}, {sMN} offen sc1']
    z2 = lambda r: f'v_mov_b64 {vr(r, 2)}, 0'
    e('s_waitcnt vmcnt(3)')
    stamp(e, 2)
    for t in range(7):
        e(S(t, 0))
        if t in (0, 2, 4): e(later.pop(0))
    e('s_waitcnt vmcnt(5)')
    for t in range(7):
        e(S(t, 1))
        if t in (0, 3): e(later.pop(0))
    e('s_waitcnt vmcnt(6)')
    interleave(e, [S(t, 2) for t in range(7)], [z2(MF + i) for i in (0, 2, 4, 6)], 1)
    e('s_waitcnt vmcnt(5)')
    interleave(e, [S(t, 3) for t in range(7)], [z2(MF + i) for i in (8, 10)], 1)
    e('s_waitcnt vmcnt(2)')
    stamp(e, 3)
    T = lambda d, a: f'v_mfma_f32_16x16x32_bf16 {vr(d, 4)}, {vr(a, 4)}, {vr(SEL, 4)}, 0'
    C = lambda d, a, b, idx: f'v_smfmac_f32_16x16x64_bf16 {vr(d, 4)}, {vr(a, 4)}, {vr(b, 8)}, v{idx}'
    S0, S1, S2A, S2B = MF, MF + 4, MF + 8, MF + 12
    E0, E1 = ACC, ACC + 4
    A = ACC
    add = lambda d, a: f'v_add_f32 v{d}, v{a}, v{a + 1}'
    seq = [
        (S(6, 4), z2(MF + 12)), (S(6, 5), z2(MF + 14)), (S(6, 6), ''),
        (S(4, 4), ''), (S(4, 5), pk(A + 24, A + 24)), (S(4, 6), pk(A + 25, A + 26)),
        (S(5, 4), ''),
        (f'v_mfma_f32_16x16x16_bf16 {vr(A + 24, 4)}, {vr(A + 24, 2)}, {vr(SEL, 2)}, 0', pk(A + 16, A + 16) + '\n' + pk(A + 17, A + 18)),
        (S(5, 5), ''), (S(5, 6), ''),
        (S(0, 4), ''), (S(0, 5), pk(A + 18, A + 20)), (S(0, 6), pk(A + 19, A + 22)),
        (S(1, 4), ''),
        (T(A + 20, A + 16), pk(A + 18, A + 24) + '\n' + pk(A + 19, A + 26)),
        (S(1, 5), pk(A + 0, A + 0)), (S(1, 6), pk(A + 16, A + 20)),
        (S(2, 4), pk(A + 17, A + 22)), (S(2, 5), pk(A + 1, A + 2)), (S(2, 6), pk(A + 2, A + 4)),
        (S(3, 4), pk(A + 3, A + 6)), (S(3, 5), pk(A + 8, A + 8)), (S(3, 6), pk(A + 9, A + 10)),
        (T(A + 4, A + 0), 's_waitcnt vmcnt(NDMA)'),
        (C(S2B, A + 16, MK, IDX1), pk(A + 10, A + 12) + '\n' + pk(A + 11, A + 14)),
        (C(S0, A + 16, XK + 8, IDX1), pk(A + 0, A + 4)),
        (T(A + 12, A + 8), pk(A + 1, A + 6) + '\n' + add(S2B, S2B)),
        (C(S1, A + 16, XK + 24, IDX1), add(S2B + 2, S2B + 2)),
    ]
    xd = list(xdma)
    xpos = cfg.get('xpos', (2, 6, 10, 13))
    nd = 0
    for k, (m, f) in enumerate(seq):
        if k in xpos: e(xd[0][0])
        e(m)
        if k in xpos: e(xd.pop(0)[1]); nd += 1
        e(f.replace('NDMA', str(nd)))
    nlate = len(xd)
    e(f's_mov_b32 vcc_lo, 0xff00ff00\ns_mov_b32 vcc_hi, 0xff00ff00')
    e(pk(A + 2, A + 12)); e(pk(A + 3, A + 14))
    e(C(S2A, A, MK, IDX0))
    e(C(S0, A, XK, IDX0))
    e(C(S1, A, XK + 16, IDX0))
    wr = lambda kt, a, b: e(f'ds_write2st64_b32 v{LW}, v{a}, v{b} offset0:{kt} offset1:{12 + kt}')
    e(add(S2A, S2A)); e(add(S2A + 2, S2A + 2))
    e(f'v_cndmask_b32 v{S2A}, v{S2A}, v{S2B}, vcc\nv_cndmask_b32 v{S2A + 2}, v{S2A + 2}, v{S2B + 2}, vcc')
    e(add(S0, S0)); wr(2, S2A, S2A + 2); e(add(S0 + 2, S0 + 2))
    e(f'v_cmp_u_f32 vcc, v{S2A}, v{S2A + 2}')
    e(add(S1, S1)); wr(0, S0, S0 + 2); e(add(S1 + 2, S1 + 2))
    wr(1, S1, S1 + 2)
    e('s_cbranch_vccnz A_bad')
    e('A_ok:')
    stamp(e, 4)
    if cfg.get('ldsw'): e('s_waitcnt lgkmcnt(0)')
    e(f's_cmp_ge_u32 {S_W}, 2\ns_barrier\ns_cbranch_scc1 A_other')
    R = ACC; MX = R + 4
    sp = cfg.get('sigA', 1)
    pa = lambda d, a, b: e(f'v_pk_add_f32 {vr(d, 2)}, {vr(a, 2)}, {vr(b, 2)}')
    def softmax(fast):
        def sg(k):
            if fast and k == sp: e(f'buffer_store_dword v{TAG}, v{SGS}, {WSR}, {sSigS} offen')
        e(f'ds_read2st64_b32 {vr(R + 2, 2)}, v{RD} offset0:2 offset1:5\nds_read2st64_b32 {vr(R + 6, 2)}, v{RD} offset0:8 offset1:11')
        for w in range(4): e(f'ds_read2st64_b32 {vr(R + 8 + 2 * w, 2)}, v{RD} offset0:{3 * w} offset1:{3 * w + 1}')
        sg(0)
        e('s_waitcnt lgkmcnt(4)')
        pa(R + 2, R + 2, R + 6)
        e('s_waitcnt lgkmcnt(2)')
        e(f'v_add_f32 v{R + 2}, v{R + 2}, v{R + 3}')
        pa(R + 8, R + 8, R + 10)
        e('s_waitcnt lgkmcnt(0)')
        if fast: stamp(e, 5)
        pa(R + 12, R + 12, R + 14)
        e(f'v_add_f32_dpp v{R + 2}, v{R + 2}, v{R + 2} row_ror:8 {DPPM}')
        pa(R, R + 8, R + 12)
        e(f'v_max3_f32 v{MX}, v{R}, v{R + 1}, v{R + 2}')
        for k, n in enumerate((1, 2, 4, 8)):
            sg(1 + k); e(f'v_max_f32_dpp v{MX}, v{MX}, v{MX} row_ror:{n} {DPPM}')
        e(f'v_sub_f32 v{R + 2}, v{R + 2}, v{MX}')
        e(f'v_pk_add_f32 {vr(R, 2)}, {vr(R, 2)}, {vr(MX, 2)} op_sel_hi:[1,0] neg_lo:[0,1] neg_hi:[0,1]')
        for k in (2, 0, 1): e(f'v_exp_f32 v{R + k}, v{R + k}')
        e(f'v_fma_f32 v{MX}, v{R + 2}, 0.5, v{R}\nv_add_f32 v{MX}, v{MX}, v{R + 1}')
        e(f'v_mov_b32_dpp v{R + 3}, v{R + 2} row_ror:12 {DPPM}')
        for k, n in enumerate((1, 2, 4, 8)):
            sg(5 + k); e(f'v_add_f32_dpp v{MX}, v{MX}, v{MX} row_ror:{n} {DPPM}')
        e(f'v_rcp_f32 v{MX + 2}, v{MX}')
        if fast: e(f'v_cmpx_o_f32 vcc, v{MX}, v{MX}')
        e(f'v_pk_mul_f32 {vr(R, 2)}, {vr(R, 2)}, {vr(MX + 2, 2)} op_sel_hi:[1,0]')
        e(f'v_cvt_pk_bf16_f32 v{R}, |v{R}|, |v{R + 1}|')
        e(f'v_pk_mul_f32 {vr(R + 2, 2)}, {vr(R + 2, 2)}, {vr(MX + 2, 2)} op_sel_hi:[1,0]')
        e(f'buffer_store_dword v{R}, v{PX}, {WSR}, {sP} offen')
        e(f'v_cvt_pk_bf16_f32 v{R + 2}, |v{R + 2}|, |v{R + 3}|')
        e(f'buffer_store_dword v{R + 2}, v{PM}, {WSR}, {sP} offen')
    softmax(True)
    stamp(e, 6)
    e('s_cmp_lg_u64 exec, -1\ns_mov_b64 exec, -1\ns_barrier\ns_cbranch_scc1 A_sbad')
    e('A_sok:')
    poison()
    e('s_branch A_next')
    e('A_sbad:')
    e('s_add_u32 s98, s98, 0x10000\ns_nop 4')
    softmax(False)
    e('s_branch A_sok')
    e('A_other:')
    e('s_waitcnt lgkmcnt(0)\ns_barrier')
    e('A_next:')
    xload(8 - nlate)
    e(f's_waitcnt vmcnt({nlate})')
    for f in range(8 - nlate): e(f'ds_read_b128 {vr(XK + 4 * f, 4)}, v{XS} offset:{f * 1024}')
    trace(e, cfg, 0, sTag, CHK, 2)
    for i in range(7): e(f's_add_u32 {sK[i]}, {sK[i]}, {MA_STEP}')
    e(f's_add_u32 {sMN}, {sMN}, {MA_STEP}\ns_add_u32 {sP}, {sP}, {PR_STEP}\ns_add_u32 {sTag}, {sTag}, 1')
    e(f's_cmp_le_u32 {sTag}, {nsteps}\ns_cbranch_scc1 A_loop')
    e('s_branch DONE')
    e('A_xbad:')
    xload()
    e('s_sub_u32 s99, s99, 1\ns_cbranch_scc1 FAIL\ns_branch A_xchk')
    e('A_bad:')
    e(f's_cmp_eq_u32 {sVer}, {sTag}\ns_cbranch_scc1 A_ok')
    e('s_add_u32 s98, s98, 1')
    e('A_bad1:')
    for kb in range(7): e(ldm(kb))
    e(f'buffer_load_dwordx4 {vr(MK, 4)}, v{MKA}, {WSR}, {sMN} offen sc1')
    e(f'buffer_load_dwordx4 {vr(MK + 4, 4)}, v{MKB}, {WSR}, {sMN} offen sc1')
    e('s_sub_u32 s99, s99, 1\ns_cbranch_scc1 FAIL')
    e('s_waitcnt vmcnt(0)')
    for x in chk(list(range(MF, MF + 28)) + list(range(MK, MK + 8)), CHK, True): e(x)
    e(f'v_cmp_eq_u32 vcc, -1, v{CHK}\ns_cbranch_vccnz A_bad1')
    e(f's_mov_b32 {sVer}, {sTag}')
    for i in range(0, 28, 2): e(z2(ACC + i))
    e('s_branch A_retry')

def rec_b(e, cfg):
    stamp = lambda e, i: cst(e, cfg, i)
    nsteps = cfg.get('nsteps', 63)
    VB = 120
    (L16, L8, IDX0, LW, RD, OS, ON, SGP, SGS, CHK, LANE, LWT) = range(1, 13)
    PL = [13, 14, 15, 0]
    MF = 16; VX = 44; ACC = 76; VM = 84; WT = 92
    PP = MF
    tmp = list(range(44, 54))
    sV, sMS, sMN, sP, sTag, sSigP, sSigS, sT, sT2 = 's12', 's13', 's14', 's15', 's16', 's17', 's18', 's19', 's20'
    LM = 57344; LX = 65536
    g = lambda l: l >> 4
    c = lambda l: l & 15
    e(f'v_and_b32 v{LANE}, 63, v0\nv_lshlrev_b32 v{L16}, 4, v{LANE}')
    e(f's_lshl_b32 {sT}, {S_ID}, 2\ns_add_u32 {sT}, {sT}, {S_W}\ns_mul_i32 {sT}, {sT}, {112 * 1024}\ns_add_u32 {sT}, {sT}, {WS_WB}')
    load_weights(e, 98, L16, sT, VB)
    e(f's_add_u32 {sT}, {sT}, 2048\ns_mul_i32 {sT2}, {S_W}, 14336')
    for i in range(14):
        e(f's_add_u32 m0, {sT2}, {i * 1024}\nbuffer_load_dwordx4 v{L16}, {WSR}, {sT} offen lds\ns_add_u32 {sT}, {sT}, 1024')
    e(f'v_add_u32 v{LWT}, {sT2}, v{L16}')
    lanefn(e, IDX0, lambda l: 0xeeeeeeee if l & 1 else 0x44444444, LANE, tmp)
    e(f'v_lshlrev_b32 v{RD}, 2, v{LANE}\ns_lshl_b32 {sT}, {S_W}, 9\ns_add_u32 {sT}, {sT}, {LX}\nv_add_u32 v{LW}, {sT}, v{RD}')
    lm = lambda l: l >> 3
    lp = lambda l: (l >> 2) & 1
    lq_ = lambda l: l & 3
    lanefn(e, RD, lambda l: LX + (lm(l) & 1) * 2048 + ((lm(l) >> 1) * 16 + 2 * lq_(l) + lp(l)) * 4, LANE, tmp)
    e(f's_and_b32 {sT}, {S_W}, 1\ns_lshl_b32 {sT2}, {sT}, 5\nv_add_u32 v{RD}, {sT2}, v{RD}')
    lanefn(e, ON, lambda l: (lq_(l) >> 1) * 128 + lm(l) * 16 + (2 * (lq_(l) & 1) + lp(l)) * 4, LANE, tmp)
    e(f's_lshl_b32 {sT2}, {S_ID}, 1\ns_add_u32 {sT2}, {sT2}, {sT}\ns_lshl_b32 {sT2}, {sT2}, 8\nv_add_u32 v{ON}, {sT2}, v{ON}\nv_lshl_add_u32 v{OS}, v{LANE}, 2, {sT2}')
    e(f'v_lshlrev_b32 v{L8}, 3, v{LANE}')
    SGM = 109; TAG = 108
    e(f's_and_b32 {sT}, {S_ID}, {NR - 1}\ns_lshl_b32 {sT}, {sT}, 8')
    e(f'v_min_u32 v{SGP}, 31, v{LANE}\nv_lshl_add_u32 v{SGP}, v{SGP}, 2, {sT}')
    e(f'v_min_u32 v{SGM}, 56, v{LANE}\nv_lshl_add_u32 v{SGM}, v{SGM}, 2, {sT}')
    lanefn(e, SGS, lambda l: l * 256 if l < NR else BIG, LANE, tmp)
    e(f's_lshl_b32 {sT}, {S_ID}, 2\ns_add_u32 {sT}, {sT}, {S_W}\ns_lshl_b32 {sT}, {sT}, 2\nv_add_u32 v{SGS}, {sT}, v{SGS}')
    e(f's_mul_i32 {sT}, {S_LAY}, {MA_LAYER}\ns_add_u32 {sMS}, {sT}, {WS_MA}\ns_add_u32 {sMN}, {sMS}, 7168')
    e(f's_mul_i32 {sT}, {S_LAY}, {64 * PR_STEP}\ns_add_u32 {sP}, {sT}, {WS_PR}')
    e(f's_mul_i32 {sT}, {S_W}, 2560\ns_add_u32 {sP}, {sP}, {sT}')
    e(f's_lshl_b32 {sT}, {S_LAY}, 13\ns_add_u32 {sSigS}, {sT}, {WS_SIG}\ns_add_u32 {sSigP}, {sSigS}, 4096')
    e(f's_mul_i32 {sV}, {S_LAY}, {VX_LAYER}\ns_add_u32 {sV}, {sV}, {WS_VX}')
    e(f's_lshl_b32 {sT}, {S_ID}, 2\ns_add_u32 {sT}, {sT}, {S_W}\ns_lshl_b32 {sT}, {sT}, 13\ns_add_u32 {sV}, {sV}, {sT}')
    e(f's_mov_b32 {sTag}, 1')
    e('s_waitcnt vmcnt(0)')
    def poison():
        e(f'v_mov_b32 v{CHK}, -1')
        for k in range(4): e(f'ds_write2st64_b32 v{RD}, v{CHK}, v{CHK} offset0:{2 * k} offset1:{2 * k + 1}')
        e('s_waitcnt lgkmcnt(0)')
    poison()
    AC7 = 110
    z2 = lambda r: f'v_mov_b64 {vr(r, 2)}, 0'
    e('B_loop:')
    stamp(e, 0)
    e(f's_add_u32 {sT2}, {sV}, 4096\ns_add_u32 {sT}, {sMS}, 4096')
    vl = [f'buffer_load_dwordx4 {vr(VX + 4 * f, 4)}, v{L16}, {WSR}, {sV if f < 4 else sT2} offen offset:{(f % 4) * 1024} sc1' for f in range(8)]
    ldm = lambda kb: f'buffer_load_dwordx4 {vr(MF + 4 * kb, 4)}, v{L16}, {WSR}, {sMS if kb < 4 else sT} offen offset:{(kb % 4) * 1024} sc1'
    e(f's_cmp_lg_u32 {S_W}, 3\ns_cbranch_scc1 B_w012')
    e(f's_mov_b32 m0, {LM}')
    sig_poll(e, SGM, sSigS, sTag, PL[:cfg.get('pdm', 3)], 0, 'FAIL')
    if cfg.get('dBM', 2): e(f's_nop {cfg.get("dBM", 2) - 1}')
    for kb in range(7):
        if kb == 4: e(f's_mov_b32 m0, {LM + 4096}')
        e(f'buffer_load_dwordx4 v{L16}, {WSR}, {sMS if kb < 4 else sT} offen offset:{(kb % 4) * 1024} sc1 lds')
    e('B_w012:')
    e('s_barrier')
    acc = lambda t: AC7 if t == 7 else ACC + 4 * (t & 1)
    W = lambda t, kb: wreg((t * 7 + kb) * 8, 8, VB) if t < 7 else vr(WT + 8 * (kb & 1), 8)
    S = lambda t, kb: f'v_smfmac_f32_16x16x64_bf16 {vr(acc(t), 4)}, {vr(MF + 4 * kb, 4)}, {W(t, kb)}, v{IDX0}'
    wrd = lambda kb: [f'ds_read_b128 {vr(WT + 8 * (kb & 1) + 4 * i, 4)}, v{LWT} offset:{(2 * kb + i) * 1024}' for i in range(2)]
    nv0 = cfg.get('nv0', 8)
    for x in vl[:nv0]: e(x)
    def vinit():
        for x in wrd(0) + wrd(1): e(x)
        for r in (ACC, ACC + 2, ACC + 4, ACC + 6, AC7, AC7 + 2): e(z2(r))
    vinit()
    e(f's_waitcnt vmcnt({nv0})\ns_barrier')
    stamp(e, 1)
    for kb in range(7): e(f'ds_read_b128 {vr(MF + 4 * kb, 4)}, v{L16} offset:{LM + kb * 1024}')
    e('B_m1:')
    def post(t):
        a = acc(t); hh, ct = t >> 1, t & 1
        return [f'v_add_f32 v{a}, v{a}, v{a + 1}', f'v_add_f32 v{a + 2}, v{a + 2}, v{a + 3}' + (f'\nv_cmp_u_f32 vcc, v{a}, v{a + 2}' if t == 0 else ''),
                f'v_cvt_pk_bf16_f32 v{VM + 4 * ct + (0, 2, 1, 3)[hh]}, v{a}, v{a + 2}'] + ([z2(a), z2(a + 2)] if t < 7 else [])
    e('s_waitcnt lgkmcnt(6)')
    e(S(7, 0))
    for t in range(7):
        fill = (post(t - 1) if t else (vl[nv0:] + [''] * 5)[:5]) + (wrd(t + 2) if t < 5 else [])
        for kb in range(7):
            if t == 0 and kb: e(f's_waitcnt lgkmcnt({6 - kb if kb < 6 else 1})')
            e(S(t, kb))
            if fill: e(fill.pop(0))
        if t < 6:
            e(f's_waitcnt lgkmcnt({2 if t < 5 else 0})')
            e(S(7, t + 1))
        if t == 1: e('s_cbranch_vccnz B_mbad\nB_mok:')
    e(f's_add_u32 {sMS}, {sMS}, {MA_STEP}\ns_add_u32 {sMN}, {sMN}, {MA_STEP}')
    stamp(e, 2)
    e(f's_cmp_lg_u32 {S_W}, 3\ns_cbranch_scc1 B_go')
    sig_poll(e, SGP, sSigP, sTag, PL[:cfg.get('pd', 4)], 0, 'FAIL')
    if cfg.get('dB'): e(f's_nop {cfg["dB"] - 1}')
    e('B_go:\ns_barrier')
    sp = cfg.get('sigB', 2)
    def sg(k):
        if k == sp: e(f'buffer_store_dword v{TAG}, v{SGS}, {WSR}, {sSigS} offen')
    stamp(e, 4)
    gp = cfg.get('gapB', 2)
    def ldp():
        e(f'buffer_load_dwordx4 {vr(PP, 4)}, v{L16}, {WSR}, {sP} offen sc1\ns_nop {gp}')
        e(f'buffer_load_dwordx4 {vr(PP + 4, 4)}, v{L16}, {WSR}, {sP} offen offset:1024 sc1\ns_nop {gp}')
        e(f'buffer_load_dwordx2 {vr(PP + 8, 2)}, v{L8}, {WSR}, {sP} offen offset:2048 sc1')
    ldp()
    for x in post(6) + post(7): e(x)
    e(f's_add_u32 {sT}, {sTag}, 1\nv_mov_b32 v{TAG}, {sT}')
    for n, prs in ((32, ((0, 1), (2, 3))), (16, ((0, 2), (1, 3)))):
        for ct in range(2):
            for a, b in prs: e(f'v_permlane{n}_swap_b32 v{VM + 4 * ct + a}, v{VM + 4 * ct + b}')
    e('B_retry:')
    O = lambda pp, ct: f'v_smfmac_f32_16x16x64_bf16 {vr(ACC + 4 * ct, 4)}, {vr(PP + 4 * pp, 4)}, {vr(VX + 16 * pp + 8 * ct, 8)}, v{IDX0}'
    e('s_waitcnt vmcnt(2)')
    e(O(0, 0)); e(O(0, 1))
    e('s_waitcnt vmcnt(1)')
    e(O(1, 0)); e(O(1, 1))
    e('s_waitcnt vmcnt(0)')
    stamp(e, 5)
    e(f'v_smfmac_f32_16x16x32_bf16 {vr(ACC, 4)}, {vr(PP + 8, 2)}, {vr(VM, 4)}, v{IDX0}')
    sg(0)
    e(f'v_smfmac_f32_16x16x32_bf16 {vr(ACC + 4, 4)}, {vr(PP + 8, 2)}, {vr(VM + 4, 4)}, v{IDX0}')
    sg(1)
    E = WT + 4
    e(f'v_add_f32 v{E}, v{ACC}, v{ACC + 1}\nv_add_f32 v{E + 2}, v{ACC + 2}, v{ACC + 3}')
    e(f'ds_write2st64_b32 v{LW}, v{E}, v{E + 2} offset0:0 offset1:8')
    e(f'v_cmp_u_f32 vcc, v{E}, v{E + 2}')
    e(f'v_add_f32 v{E + 1}, v{ACC + 4}, v{ACC + 5}\nv_add_f32 v{E + 3}, v{ACC + 6}, v{ACC + 7}')
    e(f'ds_write2st64_b32 v{LW}, v{E + 1}, v{E + 3} offset0:1 offset1:9')
    e('s_cbranch_vccnz B_bad')
    e('B_ok:')
    sg(2)
    if cfg.get('ldsw'): e('s_waitcnt lgkmcnt(0)')
    e(f's_cmp_ge_u32 {S_W}, 2\ns_barrier\ns_cbranch_scc1 B_oth')
    pa = lambda d, a, b: e(f'v_pk_add_f32 {vr(d, 2)}, {vr(a, 2)}, {vr(b, 2)}')
    def final(fast):
        for w in range(4): e(f'ds_read2st64_b32 {vr(ACC + 2 * w, 2)}, v{RD} offset0:{2 * w} offset1:{2 * w + 1}')
        if fast: sg(3)
        e('s_waitcnt lgkmcnt(2)')
        pa(ACC, ACC, ACC + 2)
        e('s_waitcnt lgkmcnt(0)')
        pa(ACC + 4, ACC + 4, ACC + 6); pa(ACC, ACC, ACC + 4)
        e(f'v_cvt_pk_bf16_f32 v{E}, v{ACC}, v{ACC + 1}')
        e(f'v_cmpx_o_f32 vcc, v{ACC}, v{ACC + 1}' if fast else f'v_min_u32 v{E}, -2, v{E}')
        e(f'buffer_store_dword v{E}, v{OS}, {WSR}, {sMS} offen')
        e(f'buffer_store_dword v{E}, v{ON}, {WSR}, {sMN} offen')
    final(True)
    stamp(e, 6)
    e('s_cmp_lg_u64 exec, -1\ns_mov_b64 exec, -1\ns_barrier\ns_cbranch_scc0 B_fok')
    e('s_add_u32 s98, s98, 0x1000000')
    final(False)
    e('B_fok:')
    poison()
    e('s_branch B_next')
    e('B_oth:')
    sg(3)
    e('s_waitcnt lgkmcnt(0)\ns_barrier')
    e('B_next:')
    trace(e, cfg, 0, sTag, 115, 2)
    e(f's_add_u32 {sP}, {sP}, {PR_STEP}\ns_add_u32 {sV}, {sV}, {VX_SEG}\ns_add_u32 {sTag}, {sTag}, 1')
    e(f's_cmp_le_u32 {sTag}, {nsteps}\ns_cbranch_scc1 B_loop')
    e('s_branch DONE')
    e('B_bad:')
    for x in chk(range(PP, PP + 10), CHK, True): e(x)
    e(f'v_cmp_eq_u32 vcc, -1, v{CHK}\ns_cbranch_vccz B_ok')
    e('s_add_u32 s98, s98, 1')
    ldp()
    for i in range(0, 8, 2): e(z2(ACC + i))
    e('s_sub_u32 s99, s99, 1\ns_cbranch_scc1 FAIL\ns_branch B_retry')
    e('B_mbad:')
    for x in chk(range(MF, MF + 28), CHK, True): e(x)
    e(f'v_cmp_eq_u32 vcc, -1, v{CHK}\ns_cbranch_vccz B_mok')
    e('s_add_u32 s98, s98, 0x10000')
    for kb in range(7): e(ldm(kb))
    e('s_waitcnt lgkmcnt(0)')
    vinit()
    e('s_sub_u32 s99, s99, 1\ns_cbranch_scc1 FAIL\ns_waitcnt vmcnt(0) lgkmcnt(0)\ns_branch B_m1')

def rec_h(e, cfg):
    nsteps = cfg.get('nsteps', 63)
    LANE, L128, L4, L16, SGS = 1, 2, 3, 4, 5
    sF, sSig, sX, sTag, sT, sD, sDs = 's12', 's13', 's14', 's16', 's19', 's21', 's22'
    e(f'v_and_b32 v{LANE}, 63, v0')
    e(f's_lshl_b32 {sSig}, {S_LAY}, 13\ns_add_u32 {sSig}, {sSig}, {WS_SIG}')
    e(f's_cmp_eq_u32 {S_ID}, 1\ns_cbranch_scc1 H_fwd')
    e(f'v_lshlrev_b32 v{L128}, 7, v{LANE}')
    e(f'v_min_u32 v{L4}, 55, v{LANE}\nv_lshlrev_b32 v{L4}, 2, v{L4}')
    e(f'v_lshlrev_b32 v{SGS}, 8, v{LANE}')
    e(f's_lshl_b32 {sF}, {S_LAY}, 14\ns_add_u32 {sF}, {sF}, {WS_VF}')
    e(f's_mov_b32 {sTag}, 1')
    e(f's_lshl_b32 {sT}, {S_W}, 13\ns_mul_i32 {sX}, {S_LAY}, {X_LAYER}\ns_add_u32 {sX}, {sX}, {WS_XN0 + TILE}\ns_add_u32 {sX}, {sX}, {sT}')
    e(f's_mul_i32 {sD}, {S_LAY}, {64 * PR_STEP}\ns_add_u32 {sD}, {sD}, {WS_PR}\ns_add_u32 {sD}, {sD}, {sT}\ns_mov_b32 {sDs}, {PR_STEP}')
    e(f's_cmp_lt_u32 {S_W}, 2\ns_cbranch_scc1 H_loop')
    e(f's_mul_i32 {sD}, {S_LAY}, {MA_LAYER}\ns_add_u32 {sD}, {sD}, {WS_MA + MA_STEP}\ns_sub_u32 {sT}, {S_W}, 2\ns_mul_i32 {sT}, {sT}, 6144\ns_add_u32 {sD}, {sD}, {sT}\ns_mov_b32 {sDs}, {MA_STEP}')
    e('H_loop:')
    e(f'buffer_load_dword v11, v{L4}, {WSR}, {sF} offen sc1')
    e('s_sub_u32 s99, s99, 1\ns_cbranch_scc1 FAIL')
    e('s_waitcnt vmcnt(0)')
    e('v_cmp_eq_u32 vcc, 0, v11\ns_cbranch_vccnz H_loop')
    e(f's_cmp_lg_u32 {S_W}, 0\ns_cbranch_scc1 H_ns')
    e(f'v_mov_b32 v12, {sTag}\ns_mov_b64 exec, {(1 << NR) - 1}\nbuffer_store_dword v12, v{SGS}, {WSR}, {sSig} offen offset:224\ns_mov_b64 exec, -1')
    e('H_ns:')
    trace(e, cfg, 0, sTag, 20)
    e(f'buffer_load_dword v10, v{L128}, {WSR}, {sD} offen sc1')
    e(f'buffer_load_dword v10, v{L128}, {WSR}, {sX} offen sc1')
    e(f's_add_u32 {sF}, {sF}, 256\ns_add_u32 {sD}, {sD}, {sDs}\ns_add_u32 {sX}, {sX}, {TILE}\ns_add_u32 {sTag}, {sTag}, 1')
    e(f's_cmp_le_u32 {sTag}, {nsteps}\ns_cbranch_scc1 H_loop')
    e('s_branch DONE')
    e('H_fwd:')
    e(f'v_min_u32 v{L4}, 55, v{LANE}\nv_lshlrev_b32 v{L4}, 2, v{L4}\nv_add_u32 v{L4}, {(NR - 1) * 256}, v{L4}')
    e(f's_mul_i32 {sT}, {S_W}, 3584\nv_lshlrev_b32 v{L16}, 4, v{LANE}\nv_add_u32 v{L16}, {sT}, v{L16}')
    e(f's_mul_i32 {sD}, {S_LAY}, {MA_LAYER}\ns_add_u32 {sD}, {sD}, {WS_MA + MA_STEP}\ns_mov_b32 {sTag}, 2')
    offs = (0, 1024, 2048, 2560)
    e('H_f0:')
    sig_poll(e, L4, sSig, sTag, [6, 7], 0, 'FAIL')
    e('s_nop 7')
    e('H_f1:')
    for i, o in enumerate(offs): e(f'buffer_load_dwordx4 {vr(12 + 4 * i, 4)}, v{L16}, {WSR}, {sD} offen offset:{o} sc1')
    e(f's_add_u32 {sT}, {sD}, 14336\ns_sub_u32 s99, s99, 1\ns_cbranch_scc1 FAIL')
    e('s_waitcnt vmcnt(0)')
    for x in chk(range(12, 28), 9, True): e(x)
    e('v_cmp_eq_u32 vcc, -1, v9\ns_cbranch_vccnz H_f1')
    for i, o in enumerate(offs[:3]): e(f'buffer_store_dwordx4 {vr(12 + 4 * i, 4)}, v{L16}, {WSR}, {sT} offen offset:{o} sc1')
    e(f's_mov_b32 exec_lo, 0\nbuffer_store_dwordx4 {vr(24, 4)}, v{L16}, {WSR}, {sT} offen offset:2560 sc1\ns_mov_b32 exec_lo, -1')
    trace(e, cfg, 1, sTag, 9)
    e(f's_add_u32 {sD}, {sD}, {MA_STEP}\ns_add_u32 {sTag}, {sTag}, 1')
    e(f's_cmp_le_u32 {sTag}, {nsteps + 1}\ns_cbranch_scc1 H_f0')
    e('s_branch DONE')
```

```python
import math
from asmlib import *
from layout import *
from rec import WSR, S_W, S_ID, S_LAY, BIG, DPPM, load_weights, chk, interleave, trace, cst, cstk, wait_a, wait_b, wait_init
from k0 import fhex, allreduce_g, srd, pst, fill as sfill, lead

S_FIRST = 's23'
g = lambda l: l >> 4
c = lambda l: l & 15
z2 = lambda r: f'v_mov_b64 {vr(r, 2)}, 0'
pk = lambda d, a, b: f'v_cvt_pk_bf16_f32 v{d}, v{a}, v{b}'
def mm(d, a, b, cc): return f'v_mfma_f32_16x16x32_bf16 {d}, {a}, {b}, {cc}'

class LQ:
    def __init__(self, e): self.e = e; self.q = []
    def issue(self, text, tag=None):
        self.e(text); self.q.append(tag)
    def wait(self, tag):
        if tag not in self.q: return
        i = len(self.q) - 1 - self.q[::-1].index(tag)
        n = len(self.q) - 1 - i
        assert n <= 15
        self.e(f's_waitcnt lgkmcnt({n})'); self.q = self.q[i + 1:]
    def drain(self):
        self.e('s_waitcnt lgkmcnt(0)'); self.q = []

SLEEP = [0]
def spin(e): e('s_sub_u32 s99, s99, 1\ns_cbranch_scc1 FAIL')
def nap(e):
    if SLEEP[0]: e(f's_sleep {SLEEP[0]}')

def stage_tile(e, sbase, sT, STG, STL, R, CHK, extra=None, pre=None):
    L = e.lab('stg')
    e(f's_add_u32 {sT}, {sbase}, 4096')
    e(f'{L}:')
    nap(e)
    for i in range(7):
        e(f'buffer_load_dwordx4 {vr(R + 4 * i, 4)}, v{STG}, {WSR}, {sbase if i < 4 else sT} offen offset:{(i % 4) * 1024} sc1')
    spin(e)
    if pre: pre()
    ck = chk(range(R, R + 28), CHK, True)
    for i in range(7):
        e(f's_waitcnt vmcnt({6 - i})')
        e(f'ds_write_b128 v{STL}, {vr(R + 4 * i, 4)} offset:{i * 1024}')
        if i: e(ck.pop(0))
        e(ck.pop(0))
        if extra: extra(i)
    for x in ck: e(x)
    e(f'v_cmp_eq_u32 vcc, -1, v{CHK}\ns_waitcnt lgkmcnt(0)\ns_cbranch_vccnz {L}')

def vm_compute(e, VB, MF, ACC, AC7, WT, VM, IDX0, LWT, LMA, extra=()):
    acc = lambda t: AC7 if t == 7 else ACC + 4 * (t & 1)
    W = lambda t, kb: wreg((t * 7 + kb) * 8, 8, VB) if t < 7 else vr(WT + 8 * (kb & 1), 8)
    S = lambda t, kb: f'v_smfmac_f32_16x16x64_bf16 {vr(acc(t), 4)}, {vr(MF + 4 * kb, 4)}, {W(t, kb)}, v{IDX0}'
    wrd = lambda kb: [f'ds_read_b128 {vr(WT + 8 * (kb & 1) + 4 * i, 4)}, v{LWT} offset:{(2 * kb + i) * 1024}' for i in range(2)]
    for x in wrd(0) + wrd(1): e(x)
    for kb in range(7): e(f'ds_read_b128 {vr(MF + 4 * kb, 4)}, v{LMA} offset:{kb * 1024}')
    for r in (ACC, ACC + 2, ACC + 4, ACC + 6, AC7, AC7 + 2): e(z2(r))
    def post(t):
        a = acc(t); hh, ct = t >> 1, t & 1
        return [f'v_add_f32 v{a}, v{a}, v{a + 1}', f'v_add_f32 v{a + 2}, v{a + 2}, v{a + 3}',
                pk(VM + 4 * ct + hh, a, a + 2)] + ([z2(a), z2(a + 2)] if t < 5 else [])
    sw = lambda ct: [f'v_permlane{n}_swap_b32 v{VM + 4 * ct + a}, v{VM + 4 * ct + b}' for n, prs in ((32, ((0, 2), (1, 3))), (16, ((0, 1), (2, 3)))) for a, b in prs]
    e('s_waitcnt lgkmcnt(6)')
    e(S(7, 0))
    for t in range(7):
        fill = (post(t - 1) if t else [extra[0], '', extra[1], '', extra[2]]) + (wrd(t + 2) if t < 5 else []) + (post(7) if t == 6 else [])
        for kb in range(7):
            if t == 0 and kb: e(f's_waitcnt lgkmcnt({6 - kb if kb < 6 else 1})')
            e(S(t, kb))
            if fill: e(fill.pop(0))
        if t < 6:
            e(f's_waitcnt lgkmcnt({2 if t < 5 else 0})')
            e(S(7, t + 1))
            if t < 4: e(extra[3 + t])
    for x in sw(1) + post(6) + sw(0): e(x)

def load_wb(e, L16, LWT, sT, sT2, VB):
    e(f's_lshl_b32 {sT}, {S_ID}, 2\ns_add_u32 {sT}, {sT}, {S_W}\ns_mul_i32 {sT}, {sT}, {112 * 1024}\ns_add_u32 {sT}, {sT}, {WS_WB}')
    load_weights(e, 98, L16, sT, VB)
    e(f's_add_u32 {sT}, {sT}, 2048\ns_mul_i32 {sT2}, {S_W}, 14336')
    for i in range(14):
        e(f's_add_u32 m0, {sT2}, {i * 1024}\nbuffer_load_dwordx4 v{L16}, {WSR}, {sT} offen lds\ns_add_u32 {sT}, {sT}, 1024')
    e(f'v_add_u32 v{LWT}, {sT2}, v{L16}')

def cost(x):
    if isinstance(x, tuple): return 0 if x[0] == 'wait' else 1
    return sum(2 if l.startswith(TRANS) else (0.34 if l.startswith(('s_', ';')) else 1) for l in x.split('\n') if l)

def sched(e, lq, ms, reads, la, st, fill, skip=0, nxt=None):
    fill = list(fill)
    ismem = lambda x: (isinstance(x, tuple) and x[0] != 'wait') or (isinstance(x, str) and 'buffer_' in x)
    def emit(x):
        if isinstance(x, tuple):
            if x[0] == 'wait': lq.wait(x[1])
            else: lq.issue(*x)
        else: e(x)
    if ms: lq.wait(ms[0][1])
    carry = 0.0
    for k, (m, tag, ri) in enumerate(ms):
        e(m)
        follow = ms[k + 1][1] if k + 1 < len(ms) else nxt
        if follow is not None: lq.wait(follow)
        used = 0
        if ri is not None and st['n'] < len(reads) and st['n'] <= ri + la:
            lq.issue(*reads[st['n']]); st['n'] += 1; used += 1
        if k < skip: continue
        if fill and ismem(fill[0]): emit(fill.pop(0)); used += 1
        left = len(ms) - k
        nrd = sum(1 for a, b in zip(ms[k + 1:], ms[k:]) if a[2] is not None and a[2] != b[2])
        over = max(0.0, sum(cost(x) for x in fill) + nrd + used - 2 * left) / left
        quota = 2 - used + over + carry
        while fill and not ismem(fill[0]) and cost(fill[0]) <= quota + 0.01:
            quota -= cost(fill[0]); emit(fill.pop(0))
        carry = min(quota, 1.0) if over > 0 else 0.0
    for x in fill: emit(x)

def dma_tile(sbase, sT, STG, sLds):
    out = []
    for i in range(7):
        pre = ''
        if i == 0: pre = f's_mov_b32 m0, {sLds}\n'
        if i == 4: pre = f's_add_u32 m0, {sLds}, 4096\ns_add_u32 {sT}, {sbase}, 4096\n'
        out.append(pre + f'buffer_load_dwordx4 v{STG}, {WSR}, {sbase if i < 4 else sT} offen offset:{(i % 4) * 1024} sc1 lds')
    return out

def check_tile(e, sbase, sT, STG, STL, R, CHK, extra=None, pre=None):
    ok = e.lab('tok')
    for i in range(7): e(f'ds_read_b128 {vr(R + 4 * i, 4)}, v{STL} offset:{i * 1024}')
    if pre: pre()
    ck = chk(range(R, R + 28), CHK, True)
    for i in range(7):
        e(f's_waitcnt lgkmcnt({6 - i})')
        if i: e(ck.pop(0))
        e(ck.pop(0))
        if extra: extra(i)
    for x in ck: e(x)
    e(f'v_cmp_eq_u32 vcc, -1, v{CHK}\ns_cbranch_vccz {ok}')
    stage_tile(e, sbase, sT, STG, STL, R, CHK, extra, pre)
    e(f'{ok}:')

def role_v(e, cfg):
    VB = 120
    L16, IDX0, XA, LWT, HW, STG, L4, TA, RD, CHK, LMA = range(1, 12)
    LANE = 0
    PX = 12; PM = 44; RES = 52
    XF = 56; WT = 72; MT = 80; ACCS = (12, 88)
    VM = 56; VXR = 64; OA = 96
    XBUF = 57344; MBUF = 114688; HOLD = 122880
    sX, sVX, sVF, sM, sP, sR, sO, sT, sT2, sPre, sPost = 's12', 's13', 's14', 's15', 's16', 's17', 's18', 's19', 's20', 's21', 's22'
    sXd, sP1, sP2, sM1, sXL, sHL, sVP, sVB = 's24', 's25', 's26', 's27', 's40', 's41', 's42', 's43'
    tmp = list(range(60, 70))
    e(f'v_and_b32 v{LANE}, 63, v0\nv_lshlrev_b32 v{L16}, 4, v{LANE}')
    e(f's_mul_i32 {sT}, {S_W}, 7168\nv_add_u32 v{STG}, {sT}, v{L16}\ns_add_u32 {sXL}, {sT}, {XBUF}')
    def xaddr(seg):
        e(f's_min_u32 {sT}, {seg}, 63\ns_mul_i32 {sT}, {sT}, {TILE}\ns_mul_i32 {sX}, {S_LAY}, {X_LAYER}\ns_add_u32 {sX}, {sX}, {sT}\ns_add_u32 {sX}, {sX}, {WS_XN0}')
    wait_b(e, 60)
    if cfg.get('lead', 1): lead(e, WS_WB, 112 * 1024, 3, 60)
    pst(e, cfg, 4)
    load_wb(e, L16, LWT, sT, sT2, VB)
    lanefn(e, IDX0, lambda l: 0xeeeeeeee if l & 1 else 0x44444444, LANE, tmp)
    lanefn(e, XA, lambda l: g(l) * 512 + c(l) * 16, LANE, tmp)
    e(f's_and_b32 {sT}, {S_W}, 1\ns_lshl_b32 {sT2}, {sT}, 8\nv_add_u32 v{TA}, {sT2}, v{XA}\ns_lshl_b32 {sT2}, {S_ID}, 11\nv_add_u32 v{TA}, {sT2}, v{TA}')
    e(f'v_mov_b32 v{L4}, v{XA}\nv_add_u32 v{XA}, {XBUF}, v{XA}')
    e(f's_lshl_b32 {sT2}, {sT}, 11\ns_add_u32 {sT2}, {sT2}, {HOLD}\nv_add_u32 v{RD}, {sT2}, v{L16}')
    e(f's_lshl_b32 {sT}, {S_W}, 13\ns_add_u32 {sHL}, {sT}, {HOLD}\nv_add_u32 v{HW}, {sHL}, v{L16}')
    e(f'v_add_u32 v{LMA}, {MBUF}, v{L16}')
    e(f's_cmp_eq_u32 {S_LAY}, 0\ns_cselect_b32 {sT}, {cfg.get("vl0", 6)}, {cfg.get("vl1", 6)}\ns_mov_b32 {sPre}, {S_FIRST}\ns_sub_i32 {sPost}, {S_FIRST}, {sT}')
    e(f's_mov_b32 {sXd}, {TILE}')
    e(f's_lshl_b32 {sT}, {S_ID}, 2\ns_add_u32 {sT}, {sT}, {S_W}\ns_lshl_b32 {sT}, {sT}, 13\ns_mul_i32 {sVB}, {S_LAY}, {VX_LAYER}\ns_add_u32 {sVB}, {sVB}, {sT}\ns_add_u32 {sVB}, {sVB}, {WS_VX}')
    e(f's_mul_i32 {sVF}, {S_LAY}, 3\ns_add_u32 {sVF}, {sVF}, {S_FIRST}\ns_lshl_b32 {sVF}, {sVF}, 13\ns_lshr_b32 {sT}, {sT}, 6\ns_add_u32 {sVF}, {sVF}, {sT}\ns_add_u32 {sVF}, {sVF}, {WS_VF}')
    W = lambda t, ks: wreg((t * 14 + ks) * 4, 4, VB)
    ldm = [f'buffer_load_dwordx4 {vr(MT, 4)}, v{L16}, {WSR}, {sM} offen sc1', f'buffer_load_dwordx4 {vr(MT + 4, 4)}, v{L16}, {WSR}, {sM1} offen sc1']
    ldp = [f'buffer_load_dwordx4 {vr(PX + 4 * f, 4)}, v{L16}, {WSR}, {sP if f < 4 else sP1} offen offset:{(f % 4) * 1024} sc1' for f in range(8)]
    ldp += [f'buffer_load_dwordx4 {vr(PM + 4 * qt, 4)}, v{L4}, {WSR}, {sP2} offen offset:{qt * 256} sc1' for qt in range(2)]
    ldp += [f'buffer_load_dwordx4 {vr(RES, 4)}, v{TA}, {WSR}, {sR} offen sc1']
    vdma = []
    for f in range(8):
        pre = f's_mov_b32 m0, {sHL}\n' if f == 0 else (f's_add_u32 m0, {sHL}, 4096\ns_add_u32 {sVP}, {sVP}, 4096\n' if f == 4 else '')
        vdma.append(pre + f'buffer_load_dwordx4 v{L16}, {WSR}, {sVP} offen offset:{(f % 4) * 1024} sc1 lds')
    def flag():
        e(f's_add_u32 s100, {sPre}, 1\nv_mov_b32 v{CHK}, s100\ns_mov_b64 exec, 1\nbuffer_store_dword v{CHK}, off, {WSR}, {sVF} sc1\ns_mov_b64 exec, -1')
        trace(e, cfg, 3, sPre, CHK)
    sfill(e, cfg, 1, L16, 60)
    wait_init(e, 60)
    xaddr(S_FIRST)
    for x in dma_tile(sX, sT, STG, sXL): e(x)
    e('s_waitcnt vmcnt(0)')
    pst(e, cfg, 5)
    e('V_loop:')
    e(f's_max_i32 {sT2}, {sPost}, 0')
    e(f's_mul_i32 {sVP}, {sT2}, {VX_SEG}\ns_add_u32 {sVP}, {sVP}, {sVB}')
    e(f's_mul_i32 {sM}, {sT2}, {MA_STEP}\ns_mul_i32 {sT}, {S_LAY}, {MA_LAYER}\ns_add_u32 {sM}, {sM}, {sT}\ns_lshl_b32 {sT}, {S_W}, 11\ns_add_u32 {sM}, {sM}, {sT}\ns_add_u32 {sM}, {sM}, {WS_MA + 14336}')
    e(f's_mul_i32 {sR}, {sT2}, {TILE}\ns_mul_i32 {sT}, {S_LAY}, {X_LAYER}\ns_add_u32 {sR}, {sR}, {sT}\ns_add_u32 {sR}, {sR}, {WS_XR0}')
    e(f's_lshl_b32 {sT}, {S_LAY}, 6\ns_add_u32 {sT2}, {sT2}, {sT}\ns_mul_i32 {sO}, {sT2}, {TILE}\ns_add_u32 {sO}, {sO}, {WS_X1}')
    e(f's_mul_i32 {sP}, {sT2}, {PG_SEG}\ns_add_u32 {sP}, {sP}, {WS_PG}')
    e(f's_lshl_b32 {sT}, {S_W}, 11\ns_add_u32 {sP2}, {sP}, {sT}\ns_add_u32 {sP2}, {sP2}, 32768')
    e(f's_lshl_b32 {sT}, {S_W}, 13\ns_add_u32 {sP}, {sP}, {sT}\ns_add_u32 {sP1}, {sP}, 4096')
    e(f's_cmp_eq_u32 {S_W}, 3\ns_cselect_b32 {sT}, 0, 1024\ns_add_u32 {sM1}, {sM}, {sT}')
    e(f's_cmp_lt_u32 {sPre}, 64\ns_cbranch_scc1 V_pre')
    e('s_barrier')
    for x in ldm + vdma + ldp: e(x)
    e('s_waitcnt vmcnt(19)\ns_branch V_mchk')
    e('V_pre:')
    cstk(e, cfg, 0, sPre, 40)
    trace(e, cfg, 0, sPre, CHK)
    e(f's_cmp_eq_u32 {S_LAY}, 0\ns_cbranch_scc1 V_nochk')
    e(f'v_add_u32 v{LANE}, {sXL}, v{L16}')
    check_tile(e, sX, sT, STG, LANE, 88, CHK)
    e('V_nochk:\ns_barrier')
    trace(e, cfg, 1, sPre, CHK)
    cstk(e, cfg, 1, sPre, 40)
    lq = LQ(e)
    def rd(hf, ks):
        n = hf * 14 + ks
        out = [(f'ds_read_b128 {vr(XF + 8 * (n & 1) + 4 * tau, 4)}, v{XA} offset:{ks * 2048 + tau * 256}', ('x', n)) for tau in range(2)]
        if hf: out.append((f'ds_read_b128 {vr(WT + 4 * (n & 1), 4)}, v{LWT} offset:{ks * 1024}', ('x', n)))
        return out
    def epi(hf):
        out = []
        for tl in range(4):
            t = 4 * hf + tl; hh, ct = t >> 1, t & 1
            f = (hh >> 1) * 4 + ct * 2 + (hh & 1)
            a = ACCS[hf] + 8 * tl
            out += [pk(a + i, a + i, a + 4 + i) for i in range(4)]
            out.append(f'buffer_store_dwordx4 {vr(a, 4)}, v{L16}, {WSR}, {sVX} offen offset:{(f % 4) * 1024} sc1')
        return out
    def emit(x):
        if isinstance(x, tuple): lq.issue(*x)
        else: e(x)
    for x in rd(0, 0): emit(x)
    e(f's_mul_i32 {sVX}, {sPre}, {VX_SEG}\ns_add_u32 {sVX}, {sVX}, {sVB}')
    e(f's_add_u32 {sT2}, {sPre}, 3\ns_add_u32 {sXL}, {sXL}, {sXd}')
    xaddr(sT2)
    for hf in range(2):
        cst(e, cfg, hf)
        fill = epi(0) if hf else []
        lds_ = (ldp[:4] + ldm + ldp[4:]) if hf else list(vdma)
        last = epi(1) if hf else []
        for ks in range(14):
            n = hf * 14 + ks
            nxt = rd(hf, ks + 1) if ks < 13 else (rd(1, 0) if hf == 0 else [])
            lq.wait(('x', n))
            k = 0
            for tl in range(4):
                t = 4 * hf + tl
                for tau in range(2):
                    a = vr(ACCS[hf] + 8 * tl + 4 * tau, 4)
                    e(mm(a, vr(XF + 8 * (n & 1) + 4 * tau, 4), W(t, ks) if t < 7 else vr(WT + 4 * (n & 1), 4), a if ks else 0))
                    if k == 7: lq.wait(('x', n + 1))
                    if hf and ks == 13 and k == 0: e(f's_add_u32 {sVX}, {sVX}, 4096')
                    if nxt: emit(nxt.pop(0))
                    elif fill and k >= 3: emit(fill.pop(0))
                    elif lds_ and (k == 4 or (k == 6 and (ks >= 7 if hf else ks == 0))): emit(lds_.pop(0))
                    elif hf and ks == 13 and k >= 3:
                        emit(last.pop(0)); emit(last.pop(0))
                    k += 1
        assert not fill and not lds_
    cst(e, cfg, 2)
    for x in last: emit(x)
    cst(e, cfg, 3)
    trace(e, cfg, 2, sPre, CHK)
    cstk(e, cfg, 2, sPre, 40)
    e(f'v_add_u32 v{XA}, {sXd}, v{XA}\ns_sub_i32 {sXd}, 0, {sXd}')
    e(f's_cmp_lt_i32 {sPost}, 0\ns_cbranch_scc1 V_nopost')
    e('s_waitcnt vmcnt(11)')
    e('V_mchk:')
    for x in chk(range(MT, MT + 8), CHK, True): e(x)
    e(f'v_cmp_eq_u32 vcc, -1, v{CHK}\ns_cbranch_vccz V_mok')
    nap(e)
    for x in ldm: e(x)
    spin(e)
    e('s_waitcnt vmcnt(0)\ns_branch V_mchk')
    e('V_mok:')
    e(f's_lshl_b32 {sT}, {S_W}, 11\nv_add_u32 v{LANE}, {sT}, v{LMA}')
    e(f'ds_write_b128 v{LANE}, {vr(MT, 4)}\nds_write_b128 v{LANE}, {vr(MT + 4, 4)} offset:1024')
    e('s_waitcnt lgkmcnt(0)\ns_barrier')
    trace(e, cfg, 4, sPost, CHK)
    cstk(e, cfg, 3, sPre, 40)
    vm_compute(e, VB, 64, 92, 100, 104, VM, IDX0, LWT, LMA, dma_tile(sX, sT, STG, sXL))
    trace(e, cfg, 5, sPost, CHK)
    cstk(e, cfg, 4, sPre, 40)
    e('s_waitcnt vmcnt(7)')
    for f in range(8): e(f'ds_read_b128 {vr(VXR + 4 * f, 4)}, v{HW} offset:{f * 1024}')
    e(f's_cmp_ge_u32 {sPre}, 64\ns_cbranch_scc1 V_pchk\ns_cmp_eq_u32 {S_LAY}, 0\ns_cbranch_scc1 V_pchk')
    flag()
    cstk(e, cfg, 5, sPre, 40)
    e('V_pchk:')
    for x in chk(range(PX, PX + 44), CHK, True): e(x)
    e(f'v_cmp_eq_u32 vcc, -1, v{CHK}\ns_cbranch_vccz V_pok')
    nap(e)
    for x in ldp: e(x)
    spin(e)
    e('s_waitcnt vmcnt(0)\ns_branch V_pchk')
    e('V_pok:')
    cstk(e, cfg, 6, sPre, 40)
    trace(e, cfg, 6, sPost, CHK)
    e('s_waitcnt lgkmcnt(0)')
    for qt in range(2):
        for ct in range(2):
            a = vr(OA + 8 * qt + 4 * ct, 4)
            e(mm(a, vr(VM + 4 * ct, 4), vr(PM + 4 * qt, 4), 0))
            for hh in range(4):
                f = (hh >> 1) * 4 + ct * 2 + (hh & 1)
                e(mm(a, vr(VXR + 4 * f, 4), vr(PX + 8 * hh + 4 * qt, 4), a))
                if hh == 1 and (qt, ct) != (0, 0):
                    k = 2 * qt + ct - 1
                    e(f'ds_write_b128 v{HW}, {vr(OA + 4 * k, 4)} offset:{k * 1024}')
    U = PM
    for i in range(4): e(f'v_lshlrev_b32 v{U + 2 * i}, 16, v{RES + i}\nv_and_b32 v{U + 2 * i + 1}, 0xffff0000, v{RES + i}')
    e(f'ds_write_b128 v{HW}, {vr(OA + 12, 4)} offset:3072')
    e(f's_cmp_eq_u32 {S_LAY}, 1\ns_cbranch_scc1 V_w1\ns_waitcnt vmcnt(0)')
    e('V_w1:\ns_waitcnt vmcnt(1) lgkmcnt(0)\ns_barrier')
    e(f's_cmp_ge_u32 {S_W}, 2\ns_cbranch_scc1 V_lf')
    R = PX
    for w in range(4):
        for ct in range(2): e(f'ds_read_b128 {vr(R + 8 * w + 4 * ct, 4)}, v{RD} offset:{w * 8192 + ct * 1024}')
    for w in range(4):
        e(f's_waitcnt lgkmcnt({6 - 2 * w})')
        for i in range(0, 8, 2): e(f'v_pk_add_f32 {vr(U + i, 2)}, {vr(U + i, 2)}, {vr(R + 8 * w + i, 2)}')
    for i in range(4): e(pk(U + i, U + 2 * i, U + 2 * i + 1))
    for i in range(4): e(f'v_min_u32 v{U + i}, -2, v{U + i}')
    e(f'buffer_store_dwordx4 {vr(U, 4)}, v{TA}, {WSR}, {sO} offen sc1')
    trace(e, cfg, 7, sPost, CHK)
    e('V_lf:')
    e(f's_cmp_ge_u32 {sPre}, 64\ns_cbranch_scc1 V_next\ns_cmp_eq_u32 {S_LAY}, 0\ns_cbranch_scc0 V_next\ns_branch V_fl')
    e('V_nopost:')
    for x in dma_tile(sX, sT, STG, sXL): e(x)
    e('s_waitcnt vmcnt(7)')
    flag()
    e('s_waitcnt vmcnt(1)\ns_branch V_next')
    e('V_fl:')
    flag()
    e('V_next:')
    cstk(e, cfg, 7, sPre, 40)
    e(f's_add_u32 {sPre}, {sPre}, 3\ns_add_i32 {sPost}, {sPost}, 3\ns_cmp_lt_i32 {sPost}, 64\ns_cbranch_scc1 V_loop')
    e('s_branch DONE')

def role_q(e, cfg):
    VB = 120
    L16, XA, STG, KA0, KA1, KA2, MA0, MA1, MA2, EW, ER, CHK = range(1, 13)
    LANE = 0; L4 = 13; STL = 58
    XB2 = 45056; sXL, sXd, sXn = 's17', 's18', 's21'
    XF = 14; K1 = 30; MK = 44; ACC = 60
    EX = 28672
    sX, sM, sP, sP2, sS, sT, sT2 = 's12', 's13', 's14', 's15', 's16', 's19', 's20'
    tmp = list(range(60, 70))
    e(f'v_and_b32 v{LANE}, 63, v0\nv_lshlrev_b32 v{L16}, 4, v{LANE}')
    wait_a(e, 60)
    if cfg.get('lead', 1): lead(e, WS_WA, 98 * 1024, 2, 60)
    pst(e, cfg, 4)
    e(f's_lshl_b32 {sT}, {S_ID}, 2\ns_add_u32 {sT}, {sT}, {S_W}\ns_mul_i32 {sT}, {sT}, {98 * 1024}')
    if WS_WA: e(f's_add_u32 {sT}, {sT}, {WS_WA}')
    load_weights(e, 98, L16, sT, VB)
    def xaddr(d, seg):
        e(f's_min_u32 {sT}, {seg}, 63\ns_mul_i32 {sT}, {sT}, {TILE}\ns_mul_i32 {d}, {S_LAY}, {X_LAYER}\ns_add_u32 {d}, {d}, {sT}\ns_add_u32 {d}, {d}, {WS_XN0}')
    e(f's_mul_i32 {sXL}, {S_W}, 7168\nv_add_u32 v{STG}, {sXL}, v{L16}\nv_mov_b32 v{STL}, v{STG}\ns_mov_b32 {sXd}, {XB2}')
    lanefn(e, XA, lambda l: g(l) * 512 + c(l) * 16, LANE, tmp)
    e(f's_mul_i32 {sT}, {S_W}, 7168')
    lanefn(e, KA0, lambda l: 2 * g(l) * 512 + c(l) * 16, LANE, tmp)
    lanefn(e, KA1, lambda l: (8 + g(l)) * 512 + c(l) * 16, LANE, tmp)
    lanefn(e, KA2, lambda l: (12 + (g(l) & 1)) * 512 + c(l) * 16 + 4 * (g(l) >> 1), LANE, tmp)
    for r in (KA0, KA1, KA2): e(f'v_add_u32 v{r}, {sT}, v{r}')
    mrow = lambda l: 2 * (c(l) >> 2) + (c(l) & 1)
    lanefn(e, MA0, lambda l: 2 * g(l) * 128 + mrow(l) * 16, LANE, tmp)
    lanefn(e, MA1, lambda l: (8 + g(l)) * 128 + mrow(l) * 16, LANE, tmp)
    lanefn(e, MA2, lambda l: (12 + (g(l) & 1)) * 128 + mrow(l) * 16 + 4 * (g(l) >> 1), LANE, tmp)
    e(f's_lshl_b32 {sT}, {S_W}, 12\ns_add_u32 {sT}, {sT}, {EX}\nv_add_u32 v{EW}, {sT}, v{L16}')
    e(f's_and_b32 {sT}, {S_W}, 1\ns_lshl_b32 {sT}, {sT}, 10\ns_add_u32 {sT}, {sT}, {EX}\nv_add_u32 v{ER}, {sT}, v{L16}')
    lanefn(e, L4, lambda l: c(l) * 16 + g(l) * 4, LANE, tmp)
    for i in range(4):
        m = sum(1 << l for l in range(64) if 4 * g(l) + i <= c(l))
        e(f's_mov_b32 s{56 + 2 * i}, 0x{m & 0xffffffff:x}\ns_mov_b32 s{57 + 2 * i}, 0x{m >> 32:x}')
    e(f's_bitcmp1_b32 {S_W}, 0')
    for i in range(4):
        e(f's_cselect_b64 s[{40 + 2 * i}:{41 + 2 * i}], -1, s[{56 + 2 * i}:{57 + 2 * i}]')
        e(f's_cselect_b64 s[{48 + 2 * i}:{49 + 2 * i}], s[{56 + 2 * i}:{57 + 2 * i}], 0')
    e(f's_mov_b32 {sS}, {S_FIRST}')
    W = lambda t, ks: wreg((t * 14 + ks) * 4, 4, VB)
    A = lambda tau, t: ACC + 28 * tau + 4 * t
    sfill(e, cfg, 1, L16, 60)
    wait_init(e, 60)
    xaddr(sXn, S_FIRST)
    for x in dma_tile(sXn, sT, STG, sXL): e(x)
    e('s_waitcnt vmcnt(0)')
    pst(e, cfg, 5)
    e('Q_loop:')
    cstk(e, cfg, 0, sS, 40)
    trace(e, cfg, 0, sS, CHK)
    e(f's_cmp_eq_u32 {S_LAY}, 0\ns_cbranch_scc1 Q_nochk')
    check_tile(e, sXn, sT, STG, STL, ACC, CHK)
    e('Q_nochk:\ns_barrier')
    trace(e, cfg, 1, sS, CHK)
    cstk(e, cfg, 1, sS, 40)
    n0 = len(e.L)
    e(f's_mul_i32 {sM}, {sS}, {MA_STEP}\ns_mul_i32 {sT}, {S_LAY}, {MA_LAYER}\ns_add_u32 {sM}, {sM}, {sT}\ns_mul_i32 {sT}, {S_W}, {14 * 128}\ns_add_u32 {sM}, {sM}, {sT}\ns_add_u32 {sM}, {sM}, {WS_MA + 21504}')
    e(f's_lshl_b32 {sT}, {S_LAY}, 6\ns_add_u32 {sT}, {sT}, {sS}\ns_mul_i32 {sP}, {sT}, {PG_SEG}\ns_add_u32 {sP}, {sP}, {WS_PG}')
    e(f's_lshl_b32 {sT}, {S_ID}, 1\ns_and_b32 {sT2}, {S_W}, 1\ns_add_u32 {sT}, {sT}, {sT2}\ns_lshl_b32 {sT2}, {sT}, 8\ns_add_u32 {sP2}, {sP}, {sT2}\ns_add_u32 {sP2}, {sP2}, 32768\ns_lshl_b32 {sT2}, {sT}, 10\ns_add_u32 {sP}, {sP}, {sT2}')
    lq = LQ(e)
    rd = lambda ks: [(f'ds_read_b128 {vr(XF + 8 * (ks & 1) + 4 * tau, 4)}, v{XA} offset:{ks * 2048 + tau * 256}', ks) for tau in range(2)]
    def keys(kt, R):
        return [(f'ds_read_b128 {vr(R, 4)}, v{KA0} offset:{kt * 256}', ('k', kt)),
                (f'ds_read_b128 {vr(R + 4, 4)}, v{KA0} offset:{kt * 256 + 512}', ('k', kt)),
                (f'ds_read_b128 {vr(R + 8, 4)}, v{KA1} offset:{kt * 256}', ('k', kt)),
                (f'ds_read2_b32 {vr(R + 12, 2)}, v{KA2} offset0:{kt * 64} offset1:{kt * 64 + 2}', ('k', kt))]
    def ldm():
        e(f'buffer_load_dwordx4 {vr(MK, 4)}, v{MA0}, {WSR}, {sM} offen sc1\nbuffer_load_dwordx4 {vr(MK + 4, 4)}, v{MA0}, {WSR}, {sM} offen offset:128 sc1')
        e(f'buffer_load_dwordx4 {vr(MK + 8, 4)}, v{MA1}, {WSR}, {sM} offen sc1')
        e(f'buffer_load_dword v{MK + 12}, v{MA2}, {WSR}, {sM} offen sc1\nbuffer_load_dword v{MK + 13}, v{MA2}, {WSR}, {sM} offen offset:8 sc1')
    def pack(tau):
        out = []
        for u in range(3):
            a, b = A(tau, 2 * u), A(tau, 2 * u + 1)
            out += [pk(a, a, a + 1), pk(a + 1, b, b + 1), pk(a + 2, a + 2, a + 3), pk(a + 3, b + 2, b + 3)]
        a = A(tau, 6)
        return out + [pk(a, a, a + 1), pk(a + 1, a + 2, a + 3)]
    e(f's_add_u32 {sT2}, {sS}, 2\ns_add_u32 {sXL}, {sXL}, {sXd}')
    xaddr(sXn, sT2)
    sal = e.L[n0:]; del e.L[n0:]
    ldm(); lm = e.L[n0:]; del e.L[n0:]
    dma = dma_tile(sXn, sT, STG, sXL)
    cst(e, cfg, 0)
    for x in rd(0): lq.issue(*x)
    for ks in range(14):
        nxt = rd(ks + 1) if ks < 13 else keys(1, K1)
        lq.wait(ks)
        fill = []
        for tau in (1, 0):
            if ks == 13 and tau == 0: fill = pack(1)
            for t in range(7):
                a = vr(A(tau, t), 4)
                e(mm(a, W(t, ks), vr(XF + 8 * (ks & 1) + 4 * tau, 4), a if ks else 0))
                if tau == 0 and t == 6 and ks < 13: lq.wait(ks + 1)
                if sal and t >= 2: e(sal.pop(0))
                if nxt: lq.issue(*nxt.pop(0))
                elif lm and ks >= 11 and t % 2 == 0: e(lm.pop(0))
                elif dma and ks >= cfg.get('qdma', 7) and t == 3: e(dma.pop(0))
                for _ in range(2):
                    if fill: e(fill.pop(0))
        if ks == 10: assert not dma and not sal
    cst(e, cfg, 1)
    for x in keys(0, XF): lq.issue(*x)
    cstk(e, cfg, 2, sS, 40)
    def scores(d, KR, tau):
        out = [mm(vr(d, 4), vr(KR + 4 * u, 4), vr(A(tau, 2 * u), 4), vr(d, 4) if u else 0) for u in range(3)]
        return out + [f'v_mfma_f32_16x16x16_bf16 {vr(d, 4)}, {vr(KR + 12, 2)}, {vr(A(tau, 6), 2)}, {vr(d, 4)}']
    S11, S01, S00, SM0, SM1 = A(1, 1), A(1, 3), A(1, 5), A(0, 1), A(0, 3)
    lq.wait(('k', 1))
    p0 = pack(0)
    a, b, d = scores(S11, K1, 1), scores(S01, XF, 1), scores(S00, XF, 0)
    interleave(e, a[:3], p0[:6])
    lq.wait(('k', 0))
    interleave(e, b[:3] + a[3:], p0[6:])
    for x in d[:3]: e(x)
    e(f'ds_write_b128 v{EW}, {vr(S11, 4)} offset:2048')
    e(b[3]); e(d[3])
    e(f'ds_write_b128 v{EW}, {vr(S01, 4)} offset:1024')
    e(f'ds_write_b128 v{EW}, {vr(S00, 4)}')
    e('s_waitcnt lgkmcnt(0)\ns_barrier')
    cst(e, cfg, 2)
    SC = XF; MX = XF + 10; T0 = XF + 11
    e(f's_cmp_ge_u32 {S_W}, 2\ns_cbranch_scc1 Q_m')
    R2 = [XF, XF + 8, K1, None]
    q4 = [SC, SC + 4, XF + 8, XF + 12, K1, K1 + 4, K1 + 8, S11]
    for w in range(4):
        for kt in range(2): e(f'ds_read_b128 {vr(q4[2 * w + kt], 4)}, v{ER} offset:{w * 4096 + kt * 1024}')
    for w in range(1, 4):
        e(f's_waitcnt lgkmcnt({6 - 2 * w})')
        for kt in range(2):
            for i in (0, 2): e(f'v_pk_add_f32 {vr(SC + 4 * kt + i, 2)}, {vr(SC + 4 * kt + i, 2)}, {vr(q4[2 * w + kt] + i, 2)}')
    e(f'v_mov_b32 v{T0}, 0xff800000')
    for kt in range(2):
        for i in range(4): e(f'v_cndmask_b32 v{SC + 4 * kt + i}, v{T0}, v{SC + 4 * kt + i}, s[{40 + 8 * kt + 2 * i}:{41 + 8 * kt + 2 * i}]')
    e(f'v_max3_f32 v{MX}, v{SC}, v{SC + 1}, v{SC + 2}\nv_max3_f32 v{MX}, v{MX}, v{SC + 3}, v{SC + 4}\nv_max3_f32 v{MX}, v{MX}, v{SC + 5}, v{SC + 6}\nv_max_f32 v{MX}, v{MX}, v{SC + 7}')
    cst(e, cfg, 3)
    trace(e, cfg, 2, sS, CHK)
    cstk(e, cfg, 3, sS, 40)
    e('Q_m:')
    e('s_waitcnt vmcnt(0)')
    for x in chk(range(MK, MK + 14), CHK, True): e(x)
    e(f'v_cmp_eq_u32 vcc, -1, v{CHK}\ns_cbranch_vccz Q_mok')
    nap(e)
    ldm(); spin(e)
    e('s_branch Q_m')
    e('Q_mok:')
    cstk(e, cfg, 4, sS, 40)
    cst(e, cfg, 4)
    trace(e, cfg, 3, sS, CHK)
    a, b = scores(SM0, MK, 0), scores(SM1, MK, 1)
    for x in a[:3] + b[:3] + a[3:] + b[3:]: e(x)
    e(f'ds_write_b64 v{EW}, {vr(SM0, 2)} offset:3072')
    e(f'ds_write_b64 v{EW}, {vr(SM1, 2)} offset:3080')
    e(f's_and_b32 {sT}, {S_W}, 1\ns_mul_i32 {sT}, {sT}, 1016\nv_subrev_u32 v{LANE}, {sT}, v{ER}')
    e('s_waitcnt lgkmcnt(0)\ns_barrier')
    e(f's_cmp_ge_u32 {S_W}, 2\ns_cbranch_scc1 Q_next')
    for w in range(4): e(f'ds_read_b64 {vr(K1 + 2 * w, 2)}, v{LANE} offset:{w * 4096 + 3072}')
    e('s_waitcnt lgkmcnt(0)')
    pa = lambda d, a, b: e(f'v_pk_add_f32 {vr(d, 2)}, {vr(a, 2)}, {vr(b, 2)}')
    pa(K1, K1, K1 + 2); pa(K1 + 4, K1 + 4, K1 + 6); pa(SC + 8, K1, K1 + 4)
    e(f'v_max3_f32 v{MX}, v{MX}, v{SC + 8}, v{SC + 9}')
    allreduce_g(e, MX, T0, 'v_max_f32')
    for i in range(0, 10, 2): e(f'v_pk_add_f32 {vr(SC + i, 2)}, {vr(SC + i, 2)}, {vr(MX, 2)} op_sel_hi:[1,0] neg_lo:[0,1] neg_hi:[0,1]')
    for i in range(10): e(f'v_exp_f32 v{SC + i}, v{SC + i}')
    pa(K1, SC, SC + 2); pa(K1 + 2, SC + 4, SC + 6); pa(K1, K1, K1 + 2); pa(K1, K1, SC + 8)
    e(f'v_add_f32 v{MX}, v{K1}, v{K1 + 1}')
    allreduce_g(e, MX, T0, 'v_add_f32')
    e(f'v_rcp_f32 v{MX}, v{MX}')
    for i in range(0, 10, 2): e(f'v_pk_mul_f32 {vr(SC + i, 2)}, {vr(SC + i, 2)}, {vr(MX, 2)} op_sel_hi:[1,0]')
    for i in range(4): e(f'v_cvt_pk_bf16_f32 v{K1 + i}, |v{SC + i}|, |v{SC + 4 + i}|')
    e(f'buffer_store_dwordx4 {vr(K1, 4)}, v{L16}, {WSR}, {sP} offen sc1')
    e(f'v_cvt_pk_bf16_f32 v{K1 + 4}, |v{SC + 8}|, |v{SC + 9}|')
    e(f'buffer_store_dword v{K1 + 4}, v{L4}, {WSR}, {sP2} offen sc1')
    cst(e, cfg, 5)
    trace(e, cfg, 4, sS, CHK)
    cstk(e, cfg, 5, sS, 40)
    e('Q_next:')
    for r in (XA, KA0, KA1, KA2, STL): e(f'v_add_u32 v{r}, {sXd}, v{r}')
    e(f's_sub_i32 {sXd}, 0, {sXd}')
    e(f's_add_u32 {sS}, {sS}, 2\ns_cmp_lt_u32 {sS}, 64\ns_cbranch_scc1 Q_loop')
    e('s_branch DONE')

def order(d0, d1):
    key = [(s, 0, s) for s in range(64)]
    for s in range(64):
        lag = d0 + (d1 - d0) * min(1.0, s / max(1, 63 - d1))
        key.append((s + lag - 0.5, 1, s))
    return [(l, s) for _, l, s in sorted(key)]

def set_order(e, od, r):
    for k in range(5):
        seen = False
        for l, s in od[k::5]:
            assert s < FILL_S or seen
            seen = seen or s >= FILL_S - 7
    m = sum(l << n for n, (l, s) in enumerate(od))
    for k in range(4): e(f's_mov_b32 s{r + k}, 0x{(m >> (32 * k)) & 0xffffffff:x}')

def decode(e, r, sN, sLay, sS, t):
    e(f's_cmp_ge_u32 {sN}, 64\ns_cselect_b64 s[{t}:{t + 1}], s[{r + 2}:{r + 3}], s[{r}:{r + 1}]\ns_cselect_b64 s[{t + 2}:{t + 3}], s[{r}:{r + 1}], 0')
    e(f's_bcnt1_i32_b64 {sS}, s[{t + 2}:{t + 3}]\ns_bfm_b64 s[{t + 2}:{t + 3}], {sN}, 0\ns_and_b64 s[{t + 2}:{t + 3}], s[{t + 2}:{t + 3}], s[{t}:{t + 1}]')
    e(f's_bcnt1_i32_b64 {sLay}, s[{t + 2}:{t + 3}]\ns_add_u32 {sS}, {sS}, {sLay}\ns_sub_u32 s{t + 2}, {sN}, {sS}')
    e(f's_bitcmp1_b64 s[{t}:{t + 1}], {sN}\ns_cselect_b32 {sS}, {sS}, s{t + 2}\ns_cselect_b32 {sLay}, 1, 0')

def role_mlp(e, cfg):
    VB = 92
    L16, XA, STG, HWA, PA, PB, CVA = range(1, 8)
    LANE = 0; CHK = 8; ONE = 9
    K1 = 10; K2 = 12; IR = 14; BA = 16; GT = 20; XF = 24; AC = 32; OA = 60
    XB = 29696
    B2A = 28672; ZA = B2A + 896
    HID = 2 * XB; STAT = HID + 14336; STAT2 = STAT + 2048; CV = STAT2 + 1024
    OUT_SRD = 's[28:31]'; WSD = 's[52:55]'
    sX, sPt, sPf, sN, sS, sIt, sXL, sT, sT2, sLay, sXd = 's12', 's13', 's14', 's15', 's16', 's17', 's18', 's19', 's20', 's21', 's22'
    sTb, sSh, sXo, sSn, sLn = 's24', 's25', 's27', 's44', 's45'
    tmp = list(range(30, 40))
    e(f'v_and_b32 v{LANE}, 63, v0\nv_lshlrev_b32 v{L16}, 4, v{LANE}')
    e(f's_lshr_b32 {sT}, {S_W}, 1\ns_mul_i32 {sT}, {sT}, 7\ns_add_u32 {sSh}, {sT}, 3\ns_and_b32 {sT2}, {S_W}, 1\ns_lshl_b32 {sT2}, {sT2}, 2\ns_add_u32 {sTb}, {sT}, {sT2}')
    W1 = lambda lt, ks, n=4, o=0: wreg((lt * 14 + ks) * 4 + o, n, VB)
    W2 = lambda t, p, n=4, o=0: wreg((56 + t * 7 + p) * 4 + o, n, VB)
    e('s_load_dwordx2 s[52:53], s[0:1], 64\ns_load_dwordx2 s[56:57], s[0:1], 80')
    e('s_load_dwordx2 s[32:33], s[0:1], 72\ns_load_dwordx2 s[36:37], s[0:1], 88\ns_load_dwordx2 s[28:29], s[0:1], 96')
    e(f's_mov_b32 s30, {S * D * 2}\ns_mov_b32 s31, 0x20000\ns_mov_b32 s34, {F * 2}\ns_mov_b32 s35, 0x20000\ns_mov_b32 s38, {D * 2}\ns_mov_b32 s39, 0x20000')
    e(f's_mov_b32 s54, {D * F * 2}\ns_mov_b32 s55, 0x20000')
    RS = 928
    DA, TR0, TR1, TR2, TR3 = 10, 11, 12, 13, 14
    e(f'v_cmp_le_u32 vcc, 28, v{LANE}\nv_mov_b32 v{DA}, {3584 - 448}\nv_cndmask_b32 v{DA}, 0, v{DA}, vcc\nv_add_u32 v{DA}, v{DA}, v{L16}')
    rr = lambda l: c(l) >> 2
    lanefn(e, TR0, lambda l: (4 * g(l) + (rr(l) >> 1)) * RS + (rr(l) & 1) * 448 + (l & 3) * 8, LANE, tmp)
    e(f's_lshl_b32 {sT}, {sSh}, 5\nv_add_u32 v{TR1}, {sT}, v{TR0}\ns_lshl_b32 {sT}, {sTb}, 5\nv_add_u32 v{TR0}, {sT}, v{TR0}')
    lanefn(e, TR2, lambda l: (4 * g(l) + rr(l)) * RS + (l & 3) * 16, LANE, tmp)
    lanefn(e, TR3, lambda l: (4 * g(l) + rr(l)) * RS + (l & 3) * 8 + 192, LANE, tmp)
    e(f's_mul_i32 {sT}, {S_W}, 224\nv_add_u32 v{TR2}, {sT}, v{TR2}\nv_add_u32 v{TR3}, {sT}, v{TR3}')
    e('s_waitcnt lgkmcnt(0)')
    def wstage(va, n, start, gstride):
        L = e.lab('wl')
        e(f's_mul_i32 m0, {S_W}, {RS}\ns_mov_b32 {sT2}, {n}\ns_mov_b32 exec_hi, 0xffffff')
        e(f'{L}:\nbuffer_load_dwordx4 v{va}, {WSD}, {start} offen lds')
        e(f's_add_u32 m0, m0, {4 * RS}\ns_add_u32 {start}, {start}, {4 * gstride}\ns_sub_u32 {sT2}, {sT2}, 1\ns_cmp_lg_u32 {sT2}, 0\ns_cbranch_scc1 {L}')
        e('s_mov_b32 exec_hi, -1\ns_waitcnt vmcnt(0)\ns_barrier')
    e(f's_mul_i32 s26, {S_W}, {2 * 3584}\ns_mul_i32 {sT}, {S_ID}, 448\ns_add_u32 s26, s26, {sT}')
    for st in range(2):
        wstage(DA, 28, 's26', 2 * 3584)
        e(f'v_mov_b32 v15, v{TR0}\nv_mov_b32 v16, v{TR1}')
        for kl in range(7):
            if kl == 4: e(f'v_add_u32 v15, {64 * RS}, v15\nv_add_u32 v16, {64 * RS}, v16')
            for lt in range(4):
                for hb in range(2):
                    e(f'ds_read_b64_tr_b16 {W1(lt, 7 * st + kl, 2, 2 * hb)}, v{15 if lt < 3 else 16} offset:{((kl & 3) * 16 + 2 * hb) * RS + (32 * lt if lt < 3 else 0)}')
        e('s_waitcnt lgkmcnt(0)\ns_barrier')
    e('s_mov_b32 s52, s56\ns_mov_b32 s53, s57')
    e(f's_mul_i32 s26, {S_ID}, 224\ns_add_u32 s26, s26, {S_W}\ns_mul_i32 s26, s26, 896')
    for st, (p0, np_) in enumerate(((0, 4), (4, 3))):
        wstage(L16, 8 * np_, 's26', 896)
        e(f'v_mov_b32 v15, v{TR2}\nv_mov_b32 v16, v{TR3}')
        for pl in range(np_):
            if pl == 2: e(f'v_add_u32 v15, {64 * RS}, v15\nv_add_u32 v16, {64 * RS}, v16')
            for t in range(7):
                for hb in range(2):
                    e(f'ds_read_b64_tr_b16 {W2(t, p0 + pl, 2, 2 * hb)}, v{15 if t < 6 else 16} offset:{((pl & 1) * 32 + 16 * hb) * RS + (64 * (t >> 1) + 8 * (t & 1) if t < 6 else 0)}')
        e('s_waitcnt lgkmcnt(0)\ns_barrier')
    set_order(e, order(cfg.get('mlp_d0', 16), cfg.get('mlp_d1', 24)), 48)
    e(f's_mul_i32 {sXL}, {S_W}, 7168\nv_add_u32 v{STG}, {sXL}, v{L16}\ns_mov_b32 {sXd}, {XB}\ns_mov_b32 {sXo}, 0')
    def nxt(n):
        e(f's_min_u32 {sT}, {n}, 127')
        decode(e, 48, sT, sLn, sSn, 56)
        e(f's_lshl_b32 {sT}, {sLn}, 6\ns_add_u32 {sT}, {sT}, {sSn}\ns_mul_i32 {sX}, {sT}, {TILE}\ns_add_u32 {sX}, {sX}, {WS_X1}')
    nxt(S_FIRST)
    e(f'v_and_b32 v{CHK}, 15, v{LANE}\nv_lshlrev_b32 v{CHK}, 1, v{CHK}')
    e(f's_mul_i32 {sT2}, {S_ID}, 14\ns_add_u32 {sT}, {sT2}, {sTb}\ns_lshl_b32 {sT}, {sT}, 5')
    for lt in range(3): e(f'buffer_load_ushort v{62 + lt}, v{CHK}, s[32:35], {sT} offen offset:{32 * lt}')
    e(f's_add_u32 {sT}, {sT2}, {sSh}\ns_lshl_b32 {sT}, {sT}, 5')
    e(f'buffer_load_ushort v65, v{CHK}, s[32:35], {sT} offen')
    e(f'buffer_load_dwordx4 {vr(72, 4)}, v{L16}, s[36:39], 0 offen')
    lanefn(e, XA, lambda l: g(l) * 512 + c(l) * 16, LANE, tmp)
    lanefn(e, PA, lambda l: (c(l) >> 2) * TILE + g(l) * 64 + (c(l) & 3) * 16, LANE, tmp)
    lanefn(e, PB, lambda l: (c(l) >> 2) * TILE + (g(l) >> 1) * 64 + (g(l) & 1) * 8 + (c(l) & 3) * 16, LANE, tmp)
    e(f'v_add_u32 v{HWA}, {HID}, v{L16}\nv_mov_b32 v{ONE}, 0x3f803f80')
    e(f's_mul_i32 {sT}, {S_W}, 6144\ns_add_u32 {sT}, {sT}, {CV}\nv_add_u32 v{CVA}, {sT}, v{L16}')
    Gm = (0, 2, 1, 3)
    bad = lambda l: g(l) == 3 and c(l) >= 8
    for hb in range(2):
        for q in range(4):
            lanefn(e, 40, lambda l: 0x3f80 if c(l) == 8 * hb + 2 * q else 0, LANE, tmp)
            lanefn(e, 41, lambda l: 0x3f800000 if c(l) == 8 * hb + 2 * q + 1 else 0, LANE, tmp)
            e(f'v_or_b32 v{44 + 4 * hb + q}, v40, v41')
    lanefn(e, 52, lambda l: g(l) * 3584 + c(l) * 16, LANE, tmp)
    lanefn(e, 53, lambda l: g(l) * 3584 + c(l) * 16 if c(l) < 8 else BIG, LANE, tmp)
    lanefn(e, 54, lambda l: BIG if bad(l) else (4 * Gm[g(l)] + (c(l) >> 2)) * 512 + (c(l) & 3) * 16, LANE, tmp)
    lanefn(e, 55, lambda l: BIG if bad(l) else (4 * Gm[g(l)] + (c(l) >> 2)) * 16 + (c(l) & 3) * 896, LANE, tmp)
    e(f's_mul_i32 {sT}, {S_W}, 7168\ns_lshl_b32 s26, {S_ID}, 6\ns_add_u32 {sT}, {sT}, s26\ns_mul_i32 s26, {S_W}, 224')
    lanefn(e, 40, lambda l: (c(l) >> 2) * 512 + (c(l) & 3) * 16, LANE, tmp)
    lanefn(e, 41, lambda l: B2A + (c(l) >> 2) * 16, LANE, tmp)
    e(f'v_add_u32 v40, {sT}, v40\nv_add_u32 v41, s26, v41')
    for G in range(4):
        e(f'v_mov_b32 v{56 + G}, {ZA}')
        for gg, r in ((0, 40), (1, 41)):
            m = sum(1 << l for l in range(64) if g(l) == gg and (G < 3 or c(l) < 8))
            e(f's_mov_b32 vcc_lo, 0x{m:x}\ns_mov_b32 vcc_hi, 0\nv_cndmask_b32 v{56 + G}, v{56 + G}, v{r}, vcc')
        e('v_add_u32 v40, 2048, v40\nv_add_u32 v41, 64, v41')
    for k in range(4): e(f'ds_write_b128 v{CVA}, {vr(44 + 4 * k, 4)} offset:{k * 1024}')
    for i in range(4): e(f'v_mov_b32 v{XF + i}, v{ONE}')
    for lt in range(4):
        a = vr(76 + 4 * lt, 4)
        for ks in range(14): e(mm(a, vr(XF, 4), W1(lt, ks), a if ks else 0))
    e('s_waitcnt vmcnt(0) lgkmcnt(0)')
    e(f'v_add_u32 v{CHK}, {B2A}, v{L16}\nds_write_b128 v{CHK}, {vr(72, 4)}\nds_write_b128 v{CHK}, {vr(72, 4)} offset:{XB}')
    e('s_mov_b32 s60, 0xffff\ns_mov_b32 s61, 0\ns_mov_b32 s62, 0xffff0000\ns_mov_b32 s63, 0')
    for lt in range(4):
        a = 76 + 4 * lt; o = 44 + 2 * lt
        e(f'v_and_b32 v{a + 1}, 0xffff0000, v{a}\nv_sub_f32 v{a + 2}, v{a}, v{a + 1}')
        e(pk(a + 1, a + 1, a + 1)); e(pk(a + 2, a + 2, a + 2))
        e(f'v_lshl_or_b32 v{a + 3}, v{62 + lt}, 16, v{62 + lt}')
        e(f'v_cndmask_b32 v{o}, 0, v{a + 3}, s[62:63]\nv_cndmask_b32 v{o}, v{o}, v{a + 1}, s[60:61]\nv_cndmask_b32 v{o + 1}, 0, v{a + 2}, s[60:61]')
    for k in range(2): e(f'ds_write_b128 v{CVA}, {vr(44 + 4 * k, 4)} offset:{4096 + k * 1024}')
    sH = ['s40', 's41', 's42', 's43']
    for lt in range(4):
        if lt < 3: e(f's_add_u32 {sT}, {sTb}, {lt}')
        else: e(f's_mov_b32 {sT}, {sSh}')
        e(f's_lshr_b32 {sH[lt]}, {sT}, 1\ns_lshl_b32 {sH[lt]}, {sH[lt]}, 10\ns_and_b32 {sT}, {sT}, 1\ns_lshl_b32 {sT}, {sT}, 3\ns_add_u32 {sH[lt]}, {sH[lt]}, {sT}')
    c1 = -2 * math.sqrt(2 / math.pi) * math.log2(math.e)
    e(f's_mov_b32 {sN}, {S_FIRST}\ns_mov_b32 {sIt}, 1')
    e(f's_lshl_b32 {sPf}, {S_FIRST}, 2\ns_add_u32 {sPf}, {sPf}, {S_W}\ns_lshl_b32 {sPf}, {sPf}, 8\ns_add_u32 {sPf}, {sPf}, {WS_PF}')
    e('s_waitcnt lgkmcnt(0)')
    SMq = GT; SA = 36; sBad = 's46'
    pa = lambda d, a, b: e(f'v_pk_add_f32 {vr(d, 2)}, {vr(a, 2)}, {vr(b, 2)}')
    def pre(): e(z2(SMq))
    def extra(i):
        for k in range(4):
            r = OA + 4 * i + k
            e(f'v_dot2c_f32_bf16 v{SMq}, v{r}, v{ONE}\nv_dot2c_f32_bf16 v{SMq + 1}, v{r}, v{r}')
    def stat_write(area, t):
        e(f'v_bfe_u32 v{t}, v{L16}, 2, 7\ns_lshl_b32 {sT}, {S_W}, 8\ns_add_u32 {sT}, {sT}, {area}\nv_add_u32 v{t}, {sT}, v{t}')
        e(f'v_mov_b64 {vr(SMq + 2, 2)}, {vr(SMq, 2)}')
        e(f'v_permlane32_swap_b32 v{SMq + 2}, v{SMq}\nv_permlane32_swap_b32 v{SMq + 3}, v{SMq + 1}')
        pa(SMq, SMq, SMq + 2)
        e(f'ds_write2_b32 v{t}, v{SMq}, v{SMq + 1} offset0:0 offset1:32')
    def stat_read(area):
        e(f'v_bfe_u32 v{LANE}, v{L16}, 2, 6\nv_add_u32 v{LANE}, {area}, v{LANE}')
        for k in range(2):
            for w in range(4): e(f'ds_read2_b32 {vr(SA + 8 * k + 2 * w, 2)}, v{LANE} offset0:{64 * w + 32 * k} offset1:{64 * w + 32 * k + 16}')
    def stat_calc(younger):
        m, q, r = SA, SA + 8, SA + 4
        e(f's_waitcnt lgkmcnt({4 + younger})')
        pa(m, m, m + 2); pa(m + 4, m + 4, m + 6); pa(m, m, m + 4)
        e(f's_waitcnt lgkmcnt({younger})')
        pa(q, q, q + 2); pa(q + 4, q + 4, q + 6); pa(q, q, q + 4)
        for k in range(2): e(f'v_mul_f32 v{m + k}, {fhex(-1 / D)}, v{m + k}\nv_mul_f32 v{q + k}, {fhex(1 / D)}, v{q + k}')
        e(f'v_cmp_u_f32 vcc, v{q}, v{q + 1}')
        e(f'v_pk_fma_f32 {vr(q, 2)}, {vr(m, 2)}, {vr(m, 2)}, {vr(q, 2)} neg_lo:[1,0,0] neg_hi:[1,0,0]')
        for k in range(2): e(f'v_max_f32 v{q + k}, 0, v{q + k}')
        for k in range(2): e(f'v_mul_f32 v{q + k}, {fhex(1 + 1e-5)}, v{q + k}')
        for k in range(2): e(f'v_add_f32 v{q + k}, {fhex(1e-10)}, v{q + k}')
        for k in range(2): e(f'v_rsq_f32 v{r + k}, v{q + k}')
        e(f'v_pk_mul_f32 {vr(IR, 2)}, {vr(q, 2)}, {vr(r, 2)}')
        for k in range(2): e(f'v_mul_f32 v{K1 + k}, {fhex(c1)}, v{r + k}')
        for k in range(2): e(f'v_cndmask_b32 v{m + k}, v{IR + k}, v{m + k}, s[60:61]')
        e(f'v_pk_mul_f32 {vr(r, 2)}, {vr(r, 2)}, {vr(r, 2)}')
        for k in range(2): e(f'v_and_b32 v{q + k}, 0xffff0000, v{m + k}')
        e(f'v_pk_mul_f32 {vr(r, 2)}, {vr(r, 2)}, {vr(K1, 2)}')
        e(f'v_pk_add_f32 {vr(m, 2)}, {vr(m, 2)}, {vr(q, 2)} neg_lo:[0,1] neg_hi:[0,1]')
        for k in range(2): e(f'v_mul_f32 v{K2 + k}, {fhex(0.044715)}, v{r + k}')
        for k in range(4): e(pk(BA + k, q + (k >> 1), m + (k >> 1)))
    def first_reads():
        for k in range(2): e(f'ds_read_b128 {vr(XF + 4 * k, 4)}, v{CVA} offset:{4096 + k * 1024}')
        for n in range(5): e(f'ds_read_b128 {vr(OA + 4 * n, 4)}, v{XA} offset:{n * 2048}')
    wait_init(e, 30)
    pst(e, cfg, 5)
    e('P_slow:')
    trace(e, cfg, 0, sN, CHK)
    e(f'v_add_u32 v{LANE}, {sXL}, v{L16}\ns_waitcnt lgkmcnt(0)')
    stage_tile(e, sX, sT, STG, LANE, OA, CHK, extra, pre)
    trace(e, cfg, 1, sN, CHK)
    stat_write(STAT + 1024, CHK)
    e('s_waitcnt lgkmcnt(0)\ns_barrier')
    stat_read(STAT + 1024)
    first_reads()
    stat_calc(7)
    e('P_body:')
    cstk(e, cfg, 0, sN, cfg.get('kk', 70))
    trace(e, cfg, 2, sN, CHK)
    e(f's_mov_b32 {sLay}, {sLn}\ns_mov_b32 {sS}, {sSn}')
    e(f's_bitcmp1_b32 {S_W}, 0\ns_waitcnt lgkmcnt(0)\ns_cbranch_scc1 P_odd')
    def body(par):
        lq = LQ(e)
        def emit(x):
            if isinstance(x, tuple):
                if x[0] == 'wait': lq.wait(x[1])
                else: lq.issue(*x)
            else: e(x)
        units = [[(0, 0), (1, 0)], [(2, 0), (3, par)], [(0, 1), (1, 1), (2, 1)]]
        areg = {}
        for u in units:
            for x in u: areg[x] = AC + 4 * len(areg)
        reads = []; ms = []
        for u in units:
            lst = []
            for ks in range(14):
                got = {}
                for lt, tau in u:
                    if tau not in got:
                        got[tau] = len(reads)
                        reads.append((f'ds_read_b128 {vr(OA + 4 * (len(reads) % 7), 4)}, v{XA} offset:{ks * 2048 + tau * 256}', ('x', len(reads))))
                    a = vr(areg[lt, tau], 4)
                    lst.append((mm(a, W1(lt, ks), vr(OA + 4 * (got[tau] % 7), 4), a), ('x', got[tau]), got[tau]))
            ms.append(lst)
        LA = 5
        aug = [(f'v_mfma_f32_16x16x16_bf16 {vr(areg[x], 4)}, {vr(XF + 2 * x[0], 2)}, {vr(BA + 2 * x[1], 2)}, 0', None, None) for u in units for x in u]
        def gelu(u):
            out = []
            for lt, tau in u:
                a = areg[lt, tau]
                R4 = range(4)
                out += [f'v_mul_f32 v{GT + i}, v{a + i}, v{a + i}' for i in R4]
                out += [f'v_fma_f32 v{GT + i}, v{GT + i}, v{K2 + tau}, v{K1 + tau}' for i in R4]
                out += [f'v_mul_f32 v{GT + i}, v{GT + i}, v{a + i}' for i in R4]
                out += [f'v_exp_f32 v{GT + i}, v{GT + i}' for i in R4]
                out += [f'v_fma_f32 v{GT + i}, v{GT + i}, v{IR + tau}, v{IR + tau}' for i in R4]
                out += [f'v_rcp_f32 v{GT + i}, v{GT + i}' for i in R4]
                out.append(f'v_add_u32 v{LANE}, {sH[lt]}, v{HWA}')
                out += [f'v_mul_f32 v{a + i}, v{a + i}, v{GT + i}' for i in R4]
                out += [pk(a, a, a + 1), pk(a + 1, a + 2, a + 3)]
                out.append((f'ds_write_b64 v{LANE}, {vr(a, 2)} offset:{tau * 7168}', 'w'))
            return out
        hreg = lambda p: (88, XF + 4, XF)[p % 3]
        hrd = lambda tau: [(f'ds_read_b128 {vr(hreg(p), 4)}, v{HWA} offset:{tau * 7168 + p * 1024}', ('h', tau, p)) for p in range(7)]
        def s2(tau, O):
            od = [(p, t) for p in range(7) for t in range(7)]
            if tau: od = od[:35] + [(p, t) for t in range(7) for p in (5, 6)]
            return [(mm(vr(O + 4 * t, 4), W2(t, p), vr(hreg(p), 4), vr(O + 4 * t, 4) if p else 0), ('h', tau, p), p) for p, t in od]
        def epi(O, so):
            out = []
            for pr in range(3):
                a = O + 8 * pr
                out += [pk(a, a, a + 1), pk(a + 1, a + 2, a + 3), pk(a + 2, a + 4, a + 5), pk(a + 3, a + 6, a + 7)]
                out.append(f'buffer_store_dwordx4 {vr(a, 4)}, v{PA}, {WSR}, {so} offen offset:{pr * 256}')
            a = O + 24
            out += [pk(a, a, a + 1), pk(a + 1, a + 2, a + 3), f'buffer_store_dwordx2 {vr(a, 2)}, v{PB}, {WSR}, {so} offen offset:768']
            return out
        cst(e, cfg, 0)
        st = {'n': 5}
        n0 = len(e.L)
        e(f's_and_b32 {sT}, {sIt}, 1\ns_lshl_b32 {sT2}, {S_FIRST}, 1\ns_add_u32 {sT}, {sT}, {sT2}\ns_mul_i32 {sPt}, {sT}, {PART_SLOT}\ns_mul_i32 {sT}, {S_W}, 896\ns_add_u32 {sPt}, {sPt}, {sT}\ns_add_u32 {sPt}, {sPt}, {WS_PART}')
        e(f's_add_u32 {sT2}, {sN}, 5\ns_add_u32 {sXL}, {sXL}, {sXd}')
        nxt(sT2)
        e(f's_mul_i32 s26, {S_ID}, 3584\ns_add_u32 s26, s26, {sPt}\ns_add_u32 {sT2}, s26, {4 * TILE}')
        sal = [x + '\n;\n;' for x in e.L[n0:]]; del e.L[n0:]
        dma = dma_tile(sX, sT, STG, sXL); dpos = cfg.get('pdma', 1)
        sched(e, lq, aug + ms[0], reads, LA, st, sal, 0, ms[1][0][1])
        cst(e, cfg, 1)
        nb = cfg.get('pbar', 38)
        g0 = gelu(units[0]); ns = cfg.get('psplit', 48)
        sched(e, lq, ms[1], reads, LA, st, g0[:ns], 0, ms[2][0][1])
        cst(e, cfg, 2)
        sched(e, lq, ms[2][:nb], reads, LA, st, g0[ns:] + gelu(units[1]), 0)
        lq.wait('w'); e('s_barrier')
        h0 = hrd(0)
        lq.issue(*h0[0])
        sched(e, lq, ms[2][nb:], reads, LA, st, dma[:4] if dpos == 1 else [], 0, ('h', 0, 0))
        cst(e, cfg, 3)
        g2 = gelu(units[2])
        for k, x in enumerate(dma[4:] if dpos == 1 else dma): g2.insert(9 * k + (0 if dpos == 1 else 30), x)
        sched(e, lq, s2(0, OA), h0, 2, {'n': 1}, g2)
        cst(e, cfg, 4)
        lq.drain(); e('s_barrier')
        h1 = hrd(1)
        lq.issue(*h1[0]); lq.issue(*h1[1])
        cst(e, cfg, 5)
        z = s2(1, AC); st = {'n': 2}; ep = epi(AC, sT2)
        sched(e, lq, z[:40], h1, 2, st, epi(OA, 's26'))
        sched(e, lq, z[40:44], h1, 2, st, ep[:5])
        sched(e, lq, z[44:48], h1, 2, st, ep[5:10])
        sched(e, lq, z[48:], h1, 2, st, [])
        cst(e, cfg, 6)
        for x in ep[10:]: e(x)
        cst(e, cfg, 7)
    body(0)
    e('s_branch P_red')
    e('P_odd:')
    body(1)
    e('P_red:')
    cstk(e, cfg, 1, sN, cfg.get('kk', 70))
    trace(e, cfg, 3, sN, CHK)
    SEL = XF; AD = 88; AR = 48; RSD = 32; DD = 52
    PR = [60, 64, 68, 72, 76, 80, 84, 32]
    e(f'v_add_u32 v{LANE}, {sXL}, v{L16}\ns_waitcnt vmcnt(8)')
    for i in range(7): e(f'ds_read_b128 {vr(OA + 4 * i, 4)}, v{LANE} offset:{i * 1024}')
    for k, r in enumerate((SEL, SEL + 4, AD, AR)): e(f'ds_read_b128 {vr(r, 4)}, v{CVA} offset:{k * 1024}')
    pre()
    e(f'v_add_u32 v{XA}, {sXd}, v{XA}\nv_mov_b32 v{CHK}, {sIt}\ns_lshl_b32 {sT}, {S_ID}, 2\ns_add_u32 {sT}, {sT}, {sPf}')
    nd = cfg.get('pnd', 3)
    for i in range(nd):
        e(f's_waitcnt lgkmcnt({10 - i})'); extra(i)
    e('s_waitcnt lgkmcnt(0)')
    for G in range(4): e(f'v_add_u32 v{AR + G}, {sXo}, v{AR + G}')
    for G in range(4): e(f'ds_read_b128 {vr(RSD + 4 * G, 4)}, v{AR + G}')
    e(f's_add_u32 {sXo}, {sXo}, {sXd}\ns_sub_i32 {sXd}, 0, {sXd}')
    e(f'v_bfe_u32 v{LANE}, v{L16}, 2, 5')
    cstk(e, cfg, 2, sN, cfg.get('kk', 70))
    e('s_waitcnt vmcnt(0)')
    cstk(e, cfg, 3, sN, cfg.get('kk', 70))
    e(f's_mov_b64 exec, 1\nbuffer_store_dword v{CHK}, off, {WSR}, {sT}\ns_mov_b64 exec, -1')
    for i in range(nd, 7): extra(i)
    e(f'buffer_load_dword v{CHK}, v{LANE}, {WSR}, {sPf} offen sc1')
    stat_write(STAT, AR)
    e('s_waitcnt lgkmcnt(1)')
    for G in range(4):
        d = vr(DD + 4 * (G >> 1), 4); e(mm(d, vr(SEL + 4 * (G & 1), 4), vr(RSD + 4 * G, 4), d if G & 1 else 0))
    e(f's_mul_i32 {sT}, {S_ID}, {TILE}\ns_add_u32 {sT}, {sT}, {sPt}\ns_add_u32 {sT2}, {sT}, {4 * 3584}')
    e('P_fl:')
    e(f's_waitcnt vmcnt(0)\nv_cmp_gt_u32 vcc, {sIt}, v{CHK}\ns_cbranch_vccz P_fo')
    e(f'buffer_load_dword v{CHK}, v{LANE}, {WSR}, {sPf} offen sc1')
    spin(e)
    e('s_branch P_fl')
    e('P_fo:')
    cstk(e, cfg, 4, sN, cfg.get('kk', 70))
    trace(e, cfg, 4, sN, CHK)
    for G in range(4):
        for sq in range(2): e(f'buffer_load_dwordx4 {vr(PR[2 * G + sq], 4)}, v{AD + (G == 3)}, {WSR}, {(sT, sT2)[sq]} offen offset:{G * 256} sc1')
    e('s_waitcnt lgkmcnt(0)\ns_barrier')
    stat_read(STAT)
    stat_calc(0)
    e(f's_or_b32 {sBad}, vcc_lo, vcc_hi')
    cstk(e, cfg, 5, sN, cfg.get('kk', 70))
    for G in range(4):
        for sq in range(2):
            d = vr(DD + 4 * (G >> 1), 4)
            e(f's_waitcnt vmcnt({7 - 2 * G - sq})'); e(mm(d, vr(SEL + 4 * (G & 1), 4), vr(PR[2 * G + sq], 4), d))
    cstk(e, cfg, 6, sN, cfg.get('kk', 70))
    first_reads()
    Y = 32
    for k in range(4): e(pk(Y + k, DD + 2 * k, DD + 2 * k + 1))
    e(f'v_permlane16_swap_b32 v{Y}, v{Y + 2}\nv_permlane16_swap_b32 v{Y + 1}, v{Y + 3}')
    e(f's_cmp_eq_u32 {sLay}, 0\ns_cbranch_scc1 P_l0')
    e(f's_lshl_b32 {sT}, {sS}, 3\ns_add_u32 {sT}, {sT}, {S_ID}\ns_mul_i32 {sT}, {sT}, 3584\ns_mul_i32 {sT2}, {S_W}, 224\ns_add_u32 {sT}, {sT}, {sT2}')
    e(f'buffer_store_dwordx4 {vr(Y, 4)}, v{AD + 3}, {OUT_SRD}, {sT} offen')
    e('s_branch P_next')
    e('P_l0:')
    SQ = Y + 4
    e(z2(SQ))
    for k in range(4): e(f'v_min_u32 v{Y + k}, -2, v{Y + k}')
    for k in range(4): e(f'v_dot2c_f32_bf16 v{SQ}, v{Y + k}, v{ONE}\nv_dot2c_f32_bf16 v{SQ + 1}, v{Y + k}, v{Y + k}')
    e(f'v_bfe_u32 v{LANE}, v{L16}, 1, 5\ns_lshl_b32 s26, {S_W}, 5\ns_add_u32 s26, s26, {STAT2}\nv_add_u32 v{CHK}, s26, v{LANE}\nv_add_u32 v{LANE}, {STAT2}, v{LANE}')
    for n in (4, 8):
        for k in range(2): e(f'v_add_f32_dpp v{SQ + k}, v{SQ + k}, v{SQ + k} row_ror:{n} {DPPM}')
    for n in (16, 32):
        e(f'v_mov_b64 {vr(SQ + 2, 2)}, {vr(SQ, 2)}')
        e(f'v_permlane{n}_swap_b32 v{SQ + 2}, v{SQ}\nv_permlane{n}_swap_b32 v{SQ + 3}, v{SQ + 1}')
        pa(SQ, SQ, SQ + 2)
    e(f'ds_write_b64 v{CHK}, {vr(SQ, 2)}')
    e(f's_mul_i32 {sT}, {sS}, {TILE}\ns_mul_i32 {sT2}, {S_W}, 7168\ns_add_u32 {sT}, {sT}, {sT2}\ns_lshl_b32 {sT2}, {S_ID}, 6\ns_add_u32 {sT}, {sT}, {sT2}\ns_add_u32 {sT2}, {sT}, {WS_XR1}\ns_add_u32 {sT}, {sT}, {WS_XN1}')
    e('s_waitcnt lgkmcnt(0)\ns_barrier')
    for w in range(2): e(f'ds_read2_b64 {vr(SQ + 4 * w, 4)}, v{LANE} offset0:{w * 8} offset1:{w * 8 + 4}')
    U = Y + 16
    for k in range(4): e(f'v_lshlrev_b32 v{U + 2 * k}, 16, v{Y + k}\nv_and_b32 v{U + 2 * k + 1}, 0xffff0000, v{Y + k}')
    e('s_waitcnt lgkmcnt(0)')
    pa(SQ, SQ, SQ + 2); pa(SQ + 4, SQ + 4, SQ + 6); pa(SQ, SQ, SQ + 4)
    e(f'v_mul_f32 v{SQ}, {fhex(-1 / D)}, v{SQ}\nv_mul_f32 v{SQ + 1}, {fhex(1 / D)}, v{SQ + 1}')
    e(f'v_fma_f32 v{SQ + 1}, -v{SQ}, v{SQ}, v{SQ + 1}\nv_max_f32 v{SQ + 1}, 0, v{SQ + 1}\nv_add_f32 v{SQ + 1}, {fhex(1e-5)}, v{SQ + 1}\nv_rsq_f32 v{SQ + 2}, v{SQ + 1}')
    e(f'v_mul_f32 v{SQ}, v{SQ}, v{SQ + 2}')
    for k in range(0, 8, 2): e(f'v_pk_fma_f32 {vr(U + k, 2)}, {vr(U + k, 2)}, {vr(SQ + 2, 2)}, {vr(SQ, 2)} op_sel_hi:[1,0,0]')
    for k in range(4): e(pk(U + 8 + k, U + 2 * k, U + 2 * k + 1))
    for k in range(4): e(f'v_min_u32 v{U + 8 + k}, -2, v{U + 8 + k}')
    e(f'buffer_store_dwordx4 {vr(U + 8, 4)}, v{AD + 2}, {WSR}, {sT} offen sc1')
    e(f'buffer_store_dwordx4 {vr(Y, 4)}, v{AD + 2}, {WSR}, {sT2} offen sc1')
    e('P_next:')
    cstk(e, cfg, 7, sN, cfg.get('kk', 70))
    trace(e, cfg, 5, sN, CHK)
    e(f's_add_u32 {sN}, {sN}, 5\ns_add_u32 {sIt}, {sIt}, 1\ns_cmp_ge_u32 {sN}, 128\ns_cbranch_scc1 DONE')
    e(f's_cmp_eq_u32 {sBad}, 0\ns_cbranch_scc1 P_body\ns_branch P_slow')
```

```python
import math
from asmlib import *
from layout import *

DBG = 's[92:95]'
NAP = [2]
def srd(e, r, ptr, size):
    e(f's_mov_b32 s{r}, s{ptr}\ns_mov_b32 s{r + 1}, s{ptr + 1}\ns_mov_b32 s{r + 2}, {size}\ns_mov_b32 s{r + 3}, 0x20000')

def fhex(x):
    import struct
    return '0x%08x' % struct.unpack('<I', struct.pack('<f', x))[0]

def div7(e, d, s):
    e(f's_mul_i32 {d}, {s}, 9363\ns_lshr_b32 {d}, {d}, 16')

def allreduce_g(e, v, t, op):
    e(f'v_mov_b32 v{t}, v{v}\nv_permlane16_swap_b32 v{t}, v{v}\n{op} v{v}, v{v}, v{t}')
    e(f'v_mov_b32 v{t}, v{v}\nv_permlane32_swap_b32 v{t}, v{v}\n{op} v{v}, v{v}, v{t}')

def pst(e, cfg, i):
    if cfg.get('prof') and not cfg.get('cst'): e(f's_memrealtime s[88:89]\ns_waitcnt lgkmcnt(0)\ns_mov_b32 s{70 + i}, s88')

def arrive(e, R, ctr, go, n, vt):
    l = e.lab('arr')
    e(f's_waitcnt vmcnt(0)\ns_barrier\ns_cmp_lg_u32 s8, 0\ns_cbranch_scc1 {l}')
    e(f'v_mov_b32 v{vt}, 1\ns_mov_b64 exec, 1\ns_mov_b32 s100, {ctr}\nbuffer_atomic_add v{vt}, off, {R}, s100 sc0\ns_waitcnt vmcnt(0)')
    e(f'v_readfirstlane_b32 s100, v{vt}\ns_cmp_lg_u32 s100, {n - 1}\ns_cbranch_scc1 {l}x')
    e(f's_mov_b32 s100, {go}\nbuffer_store_dword v{vt}, off, {R}, s100 sc1')
    e(f'{l}x:\ns_mov_b64 exec, -1\n{l}:')

def wait_lines(e, R, sbase, n, vt):
    l, d = e.lab('wc'), e.lab('wcd')
    e(f'v_mbcnt_lo_u32_b32 v{vt + 1}, -1, 0\nv_mbcnt_hi_u32_b32 v{vt + 1}, -1, v{vt + 1}')
    if n == 256: e(f's_lshl_b32 s100, s8, 6\nv_add_u32 v{vt + 1}, s100, v{vt + 1}')
    else: e(f's_cmp_lg_u32 s8, 0\ns_cbranch_scc1 {d}\nv_min_u32 v{vt + 1}, {n - 1}, v{vt + 1}')
    e(f'v_lshlrev_b32 v{vt + 1}, 7, v{vt + 1}')
    e(f's_branch {l}x\n{l}:\ns_sleep {NAP[0]}\n{l}x:')
    e(f'buffer_load_dword v{vt}, v{vt + 1}, {R}, {sbase} offen sc1')
    e('s_sub_u32 s99, s99, 1\ns_cbranch_scc1 FAIL\ns_waitcnt vmcnt(0)')
    e(f'v_cmp_eq_u32 vcc, 0, v{vt}\ns_cbranch_vccnz {l}')
    e(f'{d}:\ns_barrier')

def lead(e, base, per_wave, ncopy, vt):
    x, L = e.lab('nl'), e.lab('ld')
    e(f's_cmp_lt_i32 s97, 0\ns_cbranch_scc1 {x}')
    e(f's_lshl_b32 s100, s10, 2\ns_add_u32 s100, s100, s8\ns_mul_i32 s100, s100, {per_wave}\ns_add_u32 s100, s100, {base}\ns_add_u32 s101, s100, {per_wave}')
    e(f'v_and_b32 v{vt}, 63, v0\nv_lshlrev_b32 v{vt}, 7, v{vt}\ns_lshl_b32 s96, s23, 13\ns_add_u32 s100, s100, s96')
    e(f'{L}:\nbuffer_load_dword v{vt + 1}, v{vt}, s[4:7], s100 offen\ns_add_u32 s100, s100, {ncopy * 8192}\ns_cmp_lt_u32 s100, s101\ns_cbranch_scc1 {L}')
    e(f's_waitcnt vmcnt(0)\n{x}:')

def fill(e, cfg, part, l16, vt):
    x = e.lab('nf')
    n = NFILL if part else 256
    if part: e(f's_cmp_lt_i32 s97, 0\ns_cbranch_scc1 {x}')
    for i in range(4): e(f'v_mov_b32 v{vt + i}, -1')
    e(f's_lshl_b32 s100, {"s97" if part else "s2"}, 2\ns_add_u32 s100, s100, s8\ns_lshl_b32 s100, s100, 10')
    prev = 0
    for base, stride, first in FILL_ARRAYS:
        lo, hi = (first, FILL_S) if part == 0 else (FILL_S, 64)
        L, d = e.lab('fl'), e.lab('fd')
        e(f's_add_u32 s100, s100, {(base + lo * stride - prev) & 0xffffffff}')
        prev = base + hi * stride
        e(f'{L}:\ns_cmp_ge_u32 s100, {prev}\ns_cbranch_scc1 {d}')
        e(f'buffer_store_dwordx4 {vr(vt, 4)}, v{l16}, s[4:7], s100 offen sc1')
        e(f's_add_u32 s100, s100, {n * 4096}\ns_branch {L}\n{d}:')
    if part: arrive(e, 's[4:7]', WS_CT, WS_CT + 384, NFILL, vt)
    e(f'{x}:')

def phase0(e, cfg):
    WS = 's[4:7]'; S_W = 's8'
    g = lambda l: l >> 4
    c = lambda l: l & 15
    LANE, L16 = 1, 2
    tmp = list(range(10, 20))
    sX8, sQ = 's37', 's10'
    e(f's_and_b32 {sX8}, s2, 7\ns_lshr_b32 {sQ}, s2, 3')
    e(f's_cmp_ge_u32 {sQ}, 28\ns_cbranch_scc1 K0_misc')
    sH, sB, sTy, sT, sT2, sO0, sO1, sCt = 's11', 's12', 's13', 's14', 's15', 's16', 's17', 's36'
    div7(e, sT, sQ)
    e(f's_mul_i32 {sT2}, {sT}, 7\ns_sub_u32 {sB}, {sQ}, {sT2}')
    e(f's_lshl_b32 {sT2}, {sX8}, 2\ns_add_u32 {sT}, {sT}, {sT2}\ns_and_b32 {sTy}, {sT}, 1\ns_lshr_b32 {sH}, {sT}, 1')
    KS = 's[20:23]'; NS = 's[24:27]'
    e(f's_cmp_eq_u32 {sTy}, 0\ns_cselect_b32 s20, s44, s48\ns_cselect_b32 s21, s45, s49\ns_cselect_b32 s24, s46, s50\ns_cselect_b32 s25, s47, s51')
    e(f's_mov_b32 s22, {D * H * DH * 2}\ns_mov_b32 s23, 0x20000\ns_mov_b32 s26, {D * H * DH * 2}\ns_mov_b32 s27, 0x20000')
    KA, TC, NA, RA = 3, 4, 5, 6
    sK = 's28'; sL = 's29'; sNJ = 's30'; sKH = 's31'
    e(f'v_lshrrev_b32 v10, 2, v{LANE}\nv_lshlrev_b32 v{KA}, 13, v10\nv_and_b32 v11, 3, v{LANE}\nv_lshl_add_u32 v{TC}, v11, 7, v{KA}')
    e(f's_lshl_b32 {sT}, {sB}, 2\ns_add_u32 {sT}, {sT}, {S_W}\ns_lshl_b32 {sT}, {sT}, 17\ns_lshl_b32 {sK}, {sH}, 9\ns_add_u32 {sT}, {sT}, {sK}')
    e(f'buffer_load_dword v9, v{TC}, {KS}, {sT} offen')
    e(f's_and_b32 {sNJ}, {S_W}, 1\ns_lshr_b32 {sKH}, {S_W}, 1\ns_lshl_b32 {sL}, {S_W}, 13')
    e(f's_cmp_eq_u32 {sTy}, 1\ns_cbranch_scc1 K0_nB')
    e(f's_lshl_b32 s32, {sB}, 2\ns_add_u32 s32, s32, {S_W}')
    div7(e, 's33', 's32')
    e('s_mul_i32 s34, s33, 7\ns_sub_u32 s34, s32, s34\ns_mul_i32 s33, s33, 112')
    e('s_lshr_b32 s35, s34, 1\ns_lshl_b32 s35, s35, 3\ns_and_b32 s18, s34, 1\ns_lshl_b32 s18, s18, 1\ns_add_u32 s35, s35, s18')
    e('s_lshl_b32 s18, s34, 1\ns_add_u32 s18, s18, 56\ns_cmp_lt_u32 s34, 4\ns_cselect_b32 s35, s35, s18')
    e('s_cselect_b32 s18, 16, 8\ns_lshl_b32 s18, s18, 13\ns_lshl_b32 s19, s18, 1')
    e(f's_cmp_eq_u32 s34, 6\ns_cselect_b32 s35, 96, s35\ns_cselect_b32 s19, {2 * 8192}, s19')
    e(f's_add_u32 s33, s33, s35\ns_lshl_b32 s33, s33, 13\ns_add_u32 s33, s33, {sK}')
    e(f'v_lshrrev_b32 v10, 5, v{LANE}\nv_and_b32 v11, 31, v{LANE}\nv_xor_b32 v11, v11, v10\nv_lshlrev_b32 v11, 4, v11\nv_lshl_add_u32 v{NA}, v10, 13, v11')
    for i in range(8):
        e(f's_add_u32 s34, s33, {4 * 8192 * (i & 1)}')
        if i & 2: e('s_add_u32 s34, s34, s18')
        if i & 4: e('s_add_u32 s34, s34, s19')
        e(f's_add_u32 m0, {sL}, {i * 1024}\nv_xor_b32 v10, {32 * i}, v{NA}')
        e(f'buffer_load_dwordx4 v10, {NS}, s34 offen lds')
    e(f's_mul_i32 {sO0}, {sH}, 14\ns_lshl_b32 s32, {sB}, 1\ns_add_u32 {sO0}, {sO0}, s32\ns_add_u32 {sO0}, {sO0}, {sNJ}\ns_mul_i32 {sO0}, {sO0}, {28 * 1024}')
    if WS_WA: e(f's_add_u32 {sO0}, {sO0}, {WS_WA}')
    e(f's_mul_i32 {sCt}, {sH}, 7\ns_add_u32 {sCt}, {sCt}, {sB}')
    e(f's_mov_b32 s18, {fhex(DH ** -0.5 * math.log2(math.e))}')
    e('s_branch K0_k')
    e('K0_nB:')
    e(f'v_lshrrev_b32 v10, 3, v{LANE}\nv_mul_u32_u24 v10, 896, v10\nv_and_b32 v11, 7, v{LANE}\nv_lshl_add_u32 v{NA}, v11, 4, v10')
    e(f's_lshl_b32 s33, {sH}, 2\ns_add_u32 s33, s33, {S_W}\ns_mul_i32 s33, s33, {64 * 896}\ns_lshl_b32 s34, {sB}, 7\ns_add_u32 s33, s33, s34')
    for i in range(8):
        e(f's_add_u32 m0, {sL}, {i * 1024}\ns_add_u32 s34, s33, {8 * 896 * i}')
        e(f'buffer_load_dwordx4 v{NA}, {NS}, s34 offen lds')
    e(f's_lshl_b32 s32, {sB}, 1\ns_add_u32 s32, s32, {sNJ}\ns_lshl_b32 {sO0}, s32, 4\ns_add_u32 {sO0}, {sO0}, {sH}\ns_mul_i32 {sO0}, {sO0}, {28 * 1024}\ns_add_u32 {sO0}, {sO0}, {WS_WB}')
    e(f's_lshl_b32 {sCt}, {sB}, 4\ns_add_u32 {sCt}, {sCt}, {sH}\ns_add_u32 {sCt}, {sCt}, 112')
    e('s_mov_b32 s18, 1.0')
    e('K0_k:')
    fill(e, cfg, 0, L16, 24)
    RING = 32768; SB = 32768
    e(f'v_lshrrev_b32 v10, 3, v{LANE}\nv_lshlrev_b32 v{KA}, 13, v10')
    e(f'v_bfe_u32 v10, v{LANE}, 4, 1\ns_lshl_b32 {sT}, {S_W}, 1\nv_add_u32 v10, {sT}, v10\nv_and_b32 v11, 7, v{LANE}\nv_xor_b32 v10, v10, v11\nv_lshl_add_u32 v{KA}, v10, 4, v{KA}')
    e(f's_lshl_b32 {sT}, {S_W}, 16\ns_add_u32 {sK}, {sK}, {sT}\ns_lshl_b32 {sL}, {S_W}, 10\ns_add_u32 {sL}, {sL}, {RING}')
    ng = lambda st: 3 if st & 1 else 4
    def stage(st):
        return [f's_add_u32 {sT}, {sK}, {(224 * kh + 32 * (4 * (st & 1) + gr)) * 8192 + (st >> 1) * 128}\ns_add_u32 m0, {sL}, {(st & 3) * SB + (4 * kh + gr) * 4096}\nbuffer_load_dwordx4 v{KA}, {KS}, {sT} offen lds'
                for gr in range(ng(st)) for kh in range(2)]
    for st in range(3):
        for x in stage(st): e(x)
    NF = 32; KF = 96; ACC = 128
    RR = (RA, 7, 8, 20)
    lanefn(e, RA, lambda l: RING + (8 * (c(l) >> 2) + (c(l) & 3)) * 128, LANE, tmp)
    e(f'v_bfe_u32 v10, v{LANE}, 1, 3\nv_lshrrev_b32 v11, 4, v{LANE}\nv_xor_b32 v10, v10, v11\nv_lshl_add_u32 v{RA}, v10, 4, v{RA}')
    e(f's_lshl_b32 {sT2}, {sKH}, 14\nv_add_u32 v{RA}, {sT2}, v{RA}\nv_xor_b32 v7, 64, v{RA}\nv_add_u32 v8, {2 * SB}, v{RA}\nv_add_u32 v20, {2 * SB}, v7')
    e(f's_cmp_eq_u32 {sTy}, 1\ns_cbranch_scc1 K0_fB')
    e(f'v_lshrrev_b32 v10, 4, v{LANE}\nv_and_b32 v11, 15, v{LANE}\nv_xor_b32 v10, v10, v11\nv_lshlrev_b32 v10, 4, v10\nv_lshl_add_u32 v{NA}, v11, 9, v10')
    e(f's_lshl_b32 {sT2}, {sNJ}, 14\nv_add_u32 v{NA}, {sT2}, v{NA}')
    e('s_waitcnt vmcnt(22)\ns_barrier')
    for es in range(8):
        e(f'v_xor_b32 v10, {64 * es}, v{NA}')
        for k in range(2): e(f'ds_read_b128 {vr(NF + 8 * es + 4 * k, 4)}, v10 offset:{k * 8192}')
    e('s_branch K0_mm')
    e('K0_fB:')
    lanefn(e, NA, lambda l: (8 * g(l) + (c(l) >> 2)) * 128 + (l & 3) * 16, LANE, tmp)
    e(f's_lshl_b32 {sT2}, {sNJ}, 6\nv_add_u32 v{NA}, {sT2}, v{NA}')
    e('s_waitcnt vmcnt(22)\ns_barrier')
    for es in range(8):
        for k in range(2):
            for hb in range(2): e(f'ds_read_b64_tr_b16 {vr(NF + 8 * es + 4 * k + 2 * hb, 2)}, v{NA} offset:{es * 4096 + hb * 512 + k * 8}')
    e('K0_mm:')
    pst(e, cfg, 1)
    items = [(st, eh, kl) for st in range(8) for eh in range(2) for kl in range(2 * ng(st))]
    rd = [f'v{RR[(st & 2) + eh]} offset:{(st & 1) * SB + (kl >> 1) * 4096 + (kl & 1) * 512}' for st, eh, kl in items]
    n = len(items); dm = []
    e(f's_mul_i32 {sT2}, {sKH}, {7 * 1024}\ns_add_u32 {sO0}, {sO0}, {sT2}\ns_add_u32 {sO1}, {sO0}, {14 * 1024}\ns_mov_b32 s19, s18')
    def epi(ks, k, packed):
        a, b = ACC + 16 * ks + 4 * k, ACC + 16 * ks + 8 + 4 * k; sO = (sO0, sO1)[k]
        if packed: out = [f'v_pk_mul_f32 {vr(r, 2)}, {vr(r, 2)}, s[18:19]' for r in (a, a + 2, b, b + 2)]
        else: out = [f'v_mul_f32 v{r + i}, s18, v{r + i}' for r in (a, b) for i in range(4)]
        out += [f'v_cvt_pk_bf16_f32 v{a + q}, v{r}, v{r + 1}' for q, r in enumerate((a, a + 2, b, b + 2))]
        return out + [(f's_add_u32 {sO}, {sO}, 4096\n' if ks == 4 else '') + f'buffer_store_dwordx4 {vr(a, 4)}, v{L16}, {WS}, {sO} offen offset:{(ks % 4) * 1024} sc1']
    NE = 2
    ep = [x for ks in range(NE) for k in range(2) for x in epi(ks, k, False)]
    def open_stage(st):
        e(f's_waitcnt vmcnt({(2 * ng(st + 1) if st < 7 else 0) + (2 * ng(2) if st == 0 else 0)})\ns_barrier')
        if cfg.get('cst') == 'g': e(f's_memtime s[{64 + 2 * st}:{65 + 2 * st}]')
        assert not dm
        if 1 <= st <= 5:
            for x in stage(st + 2): dm.extend(x.split('\n'))
    open_stage(0)
    for i in range(5): e(f'ds_read_b128 {vr(KF + 4 * (i % 8), 4)}, {rd[i]}')
    e('s_waitcnt lgkmcnt(4)')
    for i, (st, eh, kl) in enumerate(items):
        kt = 8 * (st & 1) + kl; es = (st & 6) + eh
        for k in range(2):
            a = vr(ACC + 8 * kt + 4 * k, 4)
            e(f'v_mfma_f32_16x16x32_bf16 {a}, {vr(KF + 4 * (i % 8), 4)}, {vr(NF + 8 * es + 4 * k, 4)}, {a if es else 0}')
            free = 2
            if k == 0:
                if i + 5 < n:
                    if items[i + 5][0] != items[i + 4][0]: open_stage(items[i + 5][0])
                    elif dm and dm[0].startswith('s_'): e(dm.pop(0))
                    e(f'ds_read_b128 {vr(KF + 4 * ((i + 5) % 8), 4)}, {rd[i + 5]}'); free = 1
                    if dm and dm[0].startswith('s_'): e(dm.pop(0))
            else:
                if i < n - 1: e(f's_waitcnt lgkmcnt({min(4, n - 2 - i)})')
                if dm and not dm[0].startswith('s_'): e(dm.pop(0))
            if i >= n - 14:
                if ep and 'buffer' in ep[0]: e(ep.pop(0)); free -= 1
                while ep and free > 0 and 'buffer' not in ep[0]: e(ep.pop(0)); free -= 1
    pst(e, cfg, 2)
    for x in ep: e(x)
    for ks in range(NE, 7):
        for k in range(2):
            for x in epi(ks, k, True): e(x)
    e('s_branch K0_done')
    e('K0_misc:')
    sU = 's11'
    e(f's_lshl_b32 {sU}, {sX8}, 2\ns_add_u32 {sU}, {sU}, {sQ}\ns_sub_u32 {sU}, {sU}, 28')
    e(f's_lshl_b32 s16, {sU}, 12\ns_lshl_b32 s17, {S_W}, 10\ns_add_u32 s17, s17, s16\ns_add_u32 s17, s17, {WS_ZERO}')
    e(f's_and_b32 s16, {sU}, 29\ns_cmp_eq_u32 s16, 0\ns_cselect_b32 s16, 1, 0')
    e(f'v_and_b32 v10, 15, v{LANE}\nv_cmp_gt_u32 vcc, 14, v10\nv_mov_b32 v24, s16\nv_cndmask_b32 v24, 0, v24, vcc')
    for i in range(1, 4): e(f'v_mov_b32 v{24 + i}, v24')
    e(f'buffer_store_dwordx4 v[24:27], v{L16}, {WS}, s17 offen sc1')
    srd(e, 20, 40, S * D * 2)
    XA, TA = 3, 4
    XV = 64
    lanefn(e, XA, lambda l: c(l) * 896 + 16 * g(l), LANE, tmp)
    e(f's_lshl_b32 s12, {sU}, 2\ns_add_u32 s12, s12, {S_W}\ns_mul_i32 s13, s12, {16 * 896}')
    for i in range(14): e(f'buffer_load_dwordx4 {vr(XV + 4 * i, 4)}, v{XA}, s[20:23], s13 offen offset:{64 * i}')
    srd(e, 24, 42, MM * D * 2)
    MV = 56
    lanefn(e, XA, lambda l: (c(l) >> 1) * 896 + 32 * g(l) + 4 * (l & 1), LANE, tmp)
    lanefn(e, TA, lambda l: (l & 7) * 896 + 16 * (l >> 3), LANE, tmp)
    e(f's_min_u32 s16, {sU}, 6\ns_lshl_b32 s16, s16, 7')
    for q in range(4): e(f'buffer_load_dword v{MV + q}, v{XA}, s[24:27], s16 offen offset:{8 * q}')
    e(f'buffer_load_dwordx4 {vr(MV + 4, 4)}, v{TA}, s[24:27], s16 offen')
    lanefn(e, TA, lambda l: g(l) * 512 + 16 * c(l), LANE, tmp)
    e(f's_lshr_b32 s14, s12, 1\ns_mul_i32 s14, s14, {TILE}\ns_and_b32 s15, s12, 1\ns_lshl_b32 s15, s15, 8\ns_add_u32 s14, s14, s15')
    e(f's_add_u32 s15, s14, {WS_XR0}\ns_add_u32 s14, s14, {WS_XN0}')
    SM, SQ, ONE = 6, 8, 5
    e(f'v_mov_b32 v{SM}, 0\nv_mov_b32 v{SQ}, 0\nv_mov_b32 v{ONE}, 0x3f803f80')
    e('s_waitcnt vmcnt(19)\ns_barrier')
    e(f's_cmp_lg_u32 {S_W}, 0\ns_cbranch_scc1 K0_ng\ns_mov_b32 s16, 1\ns_atomic_add s16, s[92:93], {C_ZERO} glc')
    e(f's_waitcnt lgkmcnt(0)\ns_cmp_lg_u32 s16, 31\ns_cbranch_scc1 K0_ng')
    e(f's_mov_b64 exec, 1\nbuffer_store_dword v{ONE}, off, {DBG}, 0 offset:{C_GO} sc1\ns_mov_b64 exec, -1\nK0_ng:')
    e('s_waitcnt vmcnt(0)')
    pst(e, cfg, 1)
    for i in range(56):
        e(f'v_min_u32 v{XV + i}, -2, v{XV + i}')
        e(f'v_dot2c_f32_bf16 v{SM}, v{XV + i}, v{ONE}\nv_dot2c_f32_bf16 v{SQ}, v{XV + i}, v{XV + i}')
    for i in range(14):
        if i and i % 2 == 0: e('s_add_u32 s15, s15, 4096')
        e(f'buffer_store_dwordx4 {vr(XV + 4 * i, 4)}, v{TA}, {WS}, s15 offen offset:{(i % 2) * 2048} sc1')
    allreduce_g(e, SM, 10, 'v_add_f32'); allreduce_g(e, SQ, 10, 'v_add_f32')
    e(f'v_mul_f32 v{SM}, {fhex(-1 / D)}, v{SM}\nv_mul_f32 v{SQ}, {fhex(1 / D)}, v{SQ}')
    e(f'v_fma_f32 v{SQ}, -v{SM}, v{SM}, v{SQ}\nv_max_f32 v{SQ}, 0, v{SQ}\nv_add_f32 v{SQ}, {fhex(1e-5)}, v{SQ}\nv_rsq_f32 v{SQ}, v{SQ}')
    e(f'v_mul_f32 v{SM}, v{SM}, v{SQ}')
    YV = 128
    for i in range(56):
        e(f'v_lshlrev_b32 v10, 16, v{XV + i}\nv_and_b32 v11, 0xffff0000, v{XV + i}')
        e(f'v_pk_fma_f32 v[10:11], v[10:11], {vr(SQ, 2)}, {vr(SM, 2)} op_sel_hi:[1,0,0]')
        e(f'v_cvt_pk_bf16_f32 v{YV + i}, v10, v11\nv_min_u32 v{YV + i}, -2, v{YV + i}')
        if i % 4 == 3:
            k = i // 4
            if k and k % 2 == 0: e('s_add_u32 s14, s14, 4096')
            e(f'buffer_store_dwordx4 {vr(YV + 4 * k, 4)}, v{TA}, {WS}, s14 offen offset:{(k % 2) * 2048} sc1')
    pst(e, cfg, 2)
    e(f's_add_u32 {sCt}, {sU}, 224')
    fill(e, cfg, 0, L16, 24)
    e(f's_cmp_ge_u32 {sU}, 7\ns_cbranch_scc1 K0_nm')
    e(f's_mul_i32 s13, {S_W}, 14336\ns_lshl_b32 s12, {sU}, 10\ns_add_u32 s13, s13, s12\ns_add_u32 s13, s13, {WS_MA}\ns_add_u32 s14, s13, 7168')
    for i in range(8): e(f'v_min_u32 v{MV + i}, -2, v{MV + i}')
    e(f'buffer_store_dwordx4 {vr(MV, 4)}, v{L16}, {WS}, s13 offen sc1\nbuffer_store_dwordx4 {vr(MV + 4, 4)}, v{L16}, {WS}, s14 offen sc1')
    e('K0_nm:')
    e('s_load_dwordx2 s[20:21], s[0:1], 64\ns_load_dwordx2 s[24:25], s[0:1], 80')
    e(f's_mov_b32 s22, {D * F * 2}\ns_mov_b32 s26, {D * F * 2}\ns_mov_b32 s27, 0x20000\nv_lshlrev_b32 v10, 7, v{LANE}')
    e(f's_lshl_b32 s12, {sU}, 2\ns_add_u32 s12, s12, {S_W}\ns_lshl_b32 s12, s12, 13\ns_add_u32 s13, s12, {128 * 8192}\ns_waitcnt lgkmcnt(0)')
    for r in ('s[20:23]', 's[24:27]'):
        for o in ('s12', 's13'): e(f'buffer_load_dword v21, v10, {r}, {o} offen')
    e('K0_done:')
    pst(e, cfg, 3)
```

```python
from asmlib import *
from layout import *
import rec, bulk
from k0 import srd, phase0, wait_lines, fill, pst, DBG

def k1(e, cfg):
    import k0; k0.NAP[0] = cfg.get('nap', 2)
    bulk.SLEEP[0] = cfg.get('sleep', 0)
    e('s_cmp_ge_u32 s2, 256\ns_cbranch_scc1 K1_end')
    if cfg.get('prof'):
        e('s_memrealtime s[90:91]\ns_memtime s[82:83]')
        for k in range(64, 80): e(f's_mov_b32 s{k}, 0')
    e('s_load_dwordx4 s[92:95], s[0:1], 104\ns_load_dwordx4 s[40:43], s[0:1], 0\ns_load_dwordx8 s[44:51], s[0:1], 16')
    e('s_getreg_b32 s9, hwreg(HW_REG_XCC_ID, 0, 3)')
    e('v_lshrrev_b32 v1, 6, v0\nv_readfirstlane_b32 s8, v1')
    e('v_and_b32 v1, 63, v0\nv_lshlrev_b32 v2, 4, v1')
    if cfg.get('warm', 1):
        e('s_getpc_b64 s[12:13]\ns_and_b32 s12, s12, 0xffffff00\ns_lshr_b32 s14, s2, 3\ns_lshl_b32 s14, s14, 2\ns_add_u32 s14, s14, s8\ns_lshl_b32 s14, s14, 9')
        e('v_and_b32 v3, 3, v1\nv_lshl_add_u32 v3, v3, 7, s14\nv_min_u32 v3, K1_end-K1_top, v3\nglobal_load_dword v31, v3, s[12:13]')
    e('K1_top:')
    e(f's_mov_b32 s99, {cfg.get("spin", 1 << 21)}\ns_mov_b32 s98, 0\ns_lshl_b32 s14, s9, 2\ns_mov_b32 s3, 1')
    e('s_waitcnt lgkmcnt(0)')
    e('s_mov_b32 s4, s94\ns_mov_b32 s5, s95\ns_mov_b32 s6, 0x10000000\ns_mov_b32 s7, 0x20000\ns_mov_b32 s94, 256\ns_mov_b32 s95, 0x20000')
    e('s_cmp_lg_u32 s8, 0\ns_cbranch_scc1 K1_nt\ns_atomic_add s3, s[92:93], s14 glc\nK1_nt:')
    phase0(e, cfg)
    e('s_waitcnt lgkmcnt(0)\nv_mov_b32 v5, s3\nv_mov_b32 v6, 0\ns_cmp_lg_u32 s8, 0\ns_cbranch_scc1 K1_wt\nds_write_b32 v6, v5\ns_waitcnt lgkmcnt(0)')
    e('K1_wt:')
    e(f's_mov_b32 s101, {C_GO}\ns_cmp_eq_u32 s8, 0\ns_cbranch_scc1 K1_w0\ns_waitcnt vmcnt(0)\nK1_w0:')
    wait_lines(e, DBG, 's101', 1, 10)
    e(f's_cmp_lg_u32 s8, 0\ns_cbranch_scc1 K1_nf\ns_lshl_b32 s36, s36, 7\ns_add_u32 s36, s36, {WS_WF}')
    e('s_mov_b64 exec, 1\nbuffer_store_dword v10, off, s[4:7], s36 sc1\ns_mov_b64 exec, -1\nK1_nf:')
    e('ds_read_b32 v5, v6\ns_waitcnt lgkmcnt(0)\nv_readfirstlane_b32 s3, v5\ns_barrier')
    pst(e, cfg, 0)
    if cfg.get('trace'): e('s_lshl_b32 s84, s9, 5\ns_add_u32 s84, s84, s3\ns_lshl_b32 s84, s84, 12\ns_add_u32 s84, s84, 0xe000000')
    e('s_cmp_ge_u32 s3, 32\ns_cbranch_scc1 K1_end')
    e('s_mov_b32 s16, -1\ns_cmp_ge_u32 s9, 2\ns_cbranch_scc1 K1_bulk')
    e('s_mov_b32 s11, s9')
    e('s_mov_b32 s17, 0\ns_mov_b32 s10, s3\ns_cmp_lt_u32 s3, 16\ns_cbranch_scc1 K1_go')
    e('s_mov_b32 s17, 1\ns_sub_u32 s10, s3, 16\ns_cmp_lt_u32 s3, 30\ns_cbranch_scc1 K1_go')
    e('s_mov_b32 s17, 2\ns_sub_u32 s10, s3, 30\ns_branch K1_go')
    e('K1_bulk:')
    e('s_mov_b32 s12, s3\ns_cmp_eq_u32 s9, 7\ns_cbranch_scc1 K1_vq')
    e('s_sub_u32 s12, s3, 8\ns_cmp_ge_u32 s3, 8\ns_cbranch_scc1 K1_vq')
    e('s_mov_b32 s17, 3\ns_mov_b32 s10, s3\ns_sub_u32 s23, s9, 2\ns_branch K1_go')
    e('K1_vq:')
    e('s_mov_b32 s17, 6\ns_add_u32 s16, s12, 46\ns_cmp_ge_u32 s12, 28\ns_cbranch_scc1 K1_go')
    e('s_mov_b32 s13, 0\ns_cmp_eq_u32 s9, 2\ns_cbranch_scc1 K1_v')
    e('s_lshl_b32 s13, s9, 1\ns_sub_u32 s13, s13, 2\ns_cmp_lt_u32 s12, 12\ns_cbranch_scc1 K1_v')
    e('s_sub_u32 s12, s12, 12\ns_sub_u32 s13, s9, 3\ns_mul_i32 s13, s13, 3\ns_lshr_b32 s10, s12, 2\ns_add_u32 s10, s10, s13')
    e('s_bfe_u32 s11, s12, 0x10001\ns_and_b32 s23, s12, 1\ns_mov_b32 s17, 4')
    e('s_lshl_b32 s16, s10, 1\ns_add_u32 s16, s16, s23\ns_cmp_eq_u32 s11, 1\ns_cselect_b32 s16, s16, -1\ns_branch K1_go')
    e('K1_v:')
    e('s_mul_i32 s14, s12, 43\ns_lshr_b32 s14, s14, 8\ns_add_u32 s10, s13, s14\ns_mul_i32 s14, s14, 6\ns_sub_u32 s14, s12, s14')
    e('s_cmp_ge_u32 s14, 3\ns_cselect_b32 s11, 1, 0\ns_mul_i32 s15, s11, 3\ns_sub_u32 s23, s14, s15\ns_mov_b32 s17, 5')
    e('s_mul_i32 s16, s10, 3\ns_add_u32 s16, s16, s23\ns_add_u32 s16, s16, 32\ns_cmp_eq_u32 s11, 1\ns_cselect_b32 s16, s16, -1')
    e('K1_go:')
    e('s_mov_b32 s97, s16')
    if cfg.get('hold'):
        m = cfg['hold']
        e(f's_lshl_b32 s12, 1, s17\ns_and_b32 s12, s12, {m}\ns_cbranch_scc0 K1_nh')
        e('K1_h:\ns_memrealtime s[12:13]\ns_waitcnt lgkmcnt(0)\ns_sub_u32 s12, s12, s90\ns_cmp_lt_u32 s12, 1500\ns_cbranch_scc1 K1_h\nK1_nh:')
    for k, n in enumerate('abhpqv'): e(f's_cmp_eq_u32 s17, {k}\ns_cbranch_scc1 K1_r{n}')
    e('s_mov_b32 s10, 0')
    rec.wait_b(e, 12)
    fill(e, cfg, 1, 2, 12)
    e('s_branch K1_end')
    for n, f in zip('abhpqv', (rec.rec_a, rec.rec_b, rec.rec_h, bulk.role_mlp, bulk.role_q, bulk.role_v)):
        e(f'K1_r{n}:'); f(e, cfg)
    e(f'FAIL:\ns_mov_b64 exec, 1\nv_mov_b32 v5, 1\nbuffer_atomic_add v5, off, s[92:95], 0 offset:{C_FAIL}')
    e('DONE:')
    if cfg.get('prof'):
        e('s_mov_b64 exec, 1\ns_memrealtime s[88:89]\ns_memtime s[80:81]\ns_waitcnt vmcnt(0) lgkmcnt(0)')
        e('s_lshl_b32 s12, s9, 5\ns_add_u32 s12, s12, s3\ns_lshl_b32 s12, s12, 2\ns_add_u32 s12, s12, s8\ns_lshl_b32 s12, s12, 6\ns_add_u32 s12, s12, 0xf000000\nv_mov_b32 v3, s12')
        st = ['s%d' % (64 + 2 * k) for k in range(8)] if cfg.get('cst') else ['s71', 's72', 's73', 's70', 's74', 's75', 's76', 's77']
        for i, r in enumerate(['s90', 's88', 's98', 's99', 's82', 's80', 's80', 's80'] + st):
            e(f'v_mov_b32 v4, {r}\nbuffer_store_dword v4, v3, s[4:7], 0 offen offset:{4 * i}')
    e('K1_end:\ns_endpgm')
```

```python
D=448; H=16; DH=256; S=2048; SEG=32; NSEG=64; MM=8; F=1792
MB=1<<20
TILE=28672
WS_WA   = 0*MB
WS_WB   = 7*MB
WS_W1   = 14*MB
WS_W2   = 16*MB
WS_ZERO = 18*MB
WS_SIG  = WS_ZERO
WS_PF   = WS_ZERO + 16384
WS_CT   = WS_ZERO + 24576
WS_WF   = WS_ZERO + 32768
WS_VF   = WS_ZERO + 81920
ZERO_BYTES = 131072
WS_PART = 19*MB
PART_SLOT = 8*TILE
WS_XN0  = 24*MB
WS_XR0  = WS_XN0 + 64*TILE
WS_MA   = WS_XR0 + 64*TILE
MA_STEP = 57344; MA_LAYER = 28672
WS_FILL = WS_MA + MA_STEP
WS_XN1  = WS_MA + 64*MA_STEP
WS_XR1  = WS_XN1 + 64*TILE
X_LAYER = WS_XN1 - WS_XN0
assert WS_XR1 - WS_XR0 == X_LAYER
WS_X1   = WS_XR1 + 64*TILE
WS_PG   = WS_X1 + 128*TILE
PG_SEG  = 40960
WS_PR   = WS_PG + 128*PG_SEG
PR_STEP = 10240
FILL_END= WS_PR + 128*PR_STEP
FILL_PER_WAVE = -(-(FILL_END - WS_FILL) // (1024*1024))
WS_VX   = 64*MB
VX_SEG  = 14*32768
VX_LAYER= 32*MB
assert WS_FILL + FILL_PER_WAVE*1024*1024 <= WS_VX

def nmap(w,t,c):
    g=c>>2
    if t<4:
        return 112*w + 16*g + 8*(t>>1) + 4*((c>>1)&1) + 2*(t&1) + (c&1)
    tt=t-4; base=112*w+64
    if tt<2:
        return base + 8*g + 4*((c>>1)&1) + 2*tt + (c&1)
    return base + 32 + 8*(g&1) + 4*((c>>1)&1) + 2*(g>>1) + (c&1)
def keymap(kappa):
    return 16*(kappa&1) + (kappa>>1)
def dmap(w,t,c):
    if t<6: return 112*w + 32*(t>>1) + 8*(c>>2) + 4*(t&1) + (c&3)
    return 112*w + 96 + c
def fmap(p,g,s):
    return 32*p + 16*(s>>2) + 4*g + (s&3)
def cmap(ct,c):
    return 8*(c>>2) + 4*ct + (c&3)
C_ZERO = 64; C_FAIL = 68; C_GO = 128
FILL_S = 16
FILL_ARRAYS = [(WS_MA, MA_STEP, 1), (WS_XN1, TILE, 0), (WS_XR1, TILE, 0)] + [(b + l*64*st, st, 0) for b, st in ((WS_X1, TILE), (WS_PG, PG_SEG), (WS_PR, PR_STEP)) for l in range(2)]
NFILL = 78
```

```python
from asmlib import *
from layout import *
from k0 import wait_lines, pst

WSR = 's[4:7]'
S_W = 's8'
S_ID = 's10'
S_LAY = 's11'
BIG = 0x7ff00000
DPPM = 'row_mask:0xf bank_mask:0xf'
NR = 8

def trace(e, cfg, ev, sitem, vt, wave=0):
    if not cfg.get('trace') or (cfg['trace'] == 'rec' and wave == 0 and vt != 20): return
    if cfg['trace'] == 'lite' and wave == 0 and vt != 20 and (sitem, ev) not in (('s21', 3), ('s22', 7), ('s16', 4), ('s15', 5), ('s15', 2)): return
    l = e.lab('tr')
    e(f's_cmp_lg_u32 {S_W}, {wave}\ns_cbranch_scc1 {l}')
    e(f's_memrealtime s[86:87]\ns_lshl_b32 s85, {sitem}, 5\ns_add_u32 s85, s85, s84\ns_waitcnt lgkmcnt(0)')
    e(f'v_mov_b32 v{vt}, s86\ns_mov_b64 exec, 1\nbuffer_store_dword v{vt}, off, {WSR}, s85 offset:{4 * ev}\ns_mov_b64 exec, -1')
    e(f'{l}:')

def cst(e, cfg, i):
    if cfg.get('cst') is True: e(f's_memtime s[{64 + 2 * i}:{65 + 2 * i}]')

def wait_a(e, vt):
    e(f's_mul_i32 s101, {S_ID}, {7 * 128}\ns_add_u32 s101, s101, {WS_WF}')
    wait_lines(e, WSR, 's101', 7, vt)
def wait_b(e, vt):
    e(f's_lshr_b32 s101, {S_ID}, 1\ns_lshl_b32 s101, s101, 11\ns_add_u32 s101, s101, {WS_WF + 112 * 128}')
    wait_lines(e, WSR, 's101', 16, vt)
def wait_init(e, vt):
    e(f's_mov_b32 s101, {WS_WF}')
    wait_lines(e, WSR, 's101', 256, vt)

def cstk(e, cfg, i, sreg, lo):
    if cfg.get('cst') != 'k': return
    l = e.lab('ck')
    e(f's_cmp_lt_i32 {sreg}, {lo}\ns_cbranch_scc0 {l}\ns_memtime s[{64 + 2 * i}:{65 + 2 * i}]\n{l}:')

def load_weights(e, nfrag, vl16, sbase, vbase, first=0):
    for i in range(nfrag):
        if i % 4 == 0 and i: e(f's_add_u32 {sbase}, {sbase}, 4096')
        e(f'buffer_load_dwordx4 {wreg((first + i) * 4, 4, vbase)}, v{vl16}, {WSR}, {sbase} offen offset:{(i % 4) * 1024}')

def sig_poll(e, vaddr, soff, stag, regs, mask, fail, cnt='s99', gap=7):
    n = len(regs)
    L = e.lab('sp'); Dn = e.lab('spd')
    if mask: e(f's_mov_b64 exec, {mask}')
    ld = lambda r: e(f'buffer_load_dword v{r}, v{vaddr}, {WSR}, {soff} offen sc1')
    for r in regs[:-1]:
        ld(r); e(f's_nop {gap}')
    e(f'{L}:')
    for i in range(n):
        ld(regs[(i + n - 1) % n])
        e(f's_waitcnt vmcnt({n - 1})')
        e(f'v_cmp_gt_u32 vcc, {stag}, v{regs[i]}')
        e(f's_cbranch_vccz {Dn}')
    e(f's_sub_u32 {cnt}, {cnt}, 1\ns_cbranch_scc1 {fail}\ns_branch {L}')
    e(f'{Dn}:')
    if mask: e('s_mov_b64 exec, -1')

def chk(regs, acc, first):
    out = []; r = list(regs)
    if first:
        out.append(f'v_max3_u32 v{acc}, v{r[0]}, v{r[1]}, v{r[2]}'); r = r[3:]
    while len(r) >= 2:
        out.append(f'v_max3_u32 v{acc}, v{acc}, v{r[0]}, v{r[1]}'); r = r[2:]
    if r: out.append(f'v_max_u32 v{acc}, v{acc}, v{r[0]}')
    return out

def interleave(e, main, fill, per=2):
    fill = list(fill)
    for m in main:
        e(m)
        for _ in range(per):
            if fill: e(fill.pop(0))
    for f in fill: e(f)

def rec_a(e, cfg):
    stamp = lambda e, i: cst(e, cfg, i)
    nsteps = cfg.get('nsteps', 63)
    VB = 120
    (L16, MKA, MKB, X0, X1, X2, IDX0, IDX1, LW, RD, PX, PM, SGP, SGS, CHK, LANE) = range(1, 17)
    SEL = 18
    PL = [0, 17, 22, 23]
    MF = 24; ACC = 52; XK = 80; MK = 112
    tmp = list(range(52, 62))
    sX, sMS, sMN, sP, sTag, sSigP, sSigS, sT, sT2 = 's12', 's13', 's14', 's15', 's16', 's17', 's18', 's19', 's20'
    e(f'v_and_b32 v{LANE}, 63, v0\nv_lshlrev_b32 v{L16}, 4, v{LANE}')
    wait_a(e, 52)
    pst(e, cfg, 4)
    e(f's_lshl_b32 {sT}, {S_ID}, 2\ns_add_u32 {sT}, {sT}, {S_W}\ns_mul_i32 {sT}, {sT}, {98 * 1024}')
    if WS_WA: e(f's_add_u32 {sT}, {sT}, {WS_WA}')
    sK = ['s%d' % (40 + i) for i in range(7)]
    e(f's_lshl_b32 {sT2}, {S_ID}, 2\ns_add_u32 {sT2}, {sT2}, {S_W}\ns_mul_i32 {sT2}, {sT2}, {cfg.get("rot", 1)}\ns_mul_i32 s47, {sT2}, 9363\ns_lshr_b32 s47, s47, 16\ns_mul_i32 s47, s47, 7\ns_sub_u32 {sT2}, {sT2}, s47')
    for i in range(7):
        e(f's_lshl_b32 {sK[i]}, {sT2}, 11\ns_add_u32 {sK[i]}, {sK[i]}, {sT}')
        e(f's_add_u32 {sT2}, {sT2}, 1\ns_cmp_eq_u32 {sT2}, 7\ns_cselect_b32 {sT2}, 0, {sT2}')
    e(f'v_mov_b32 v{MKA}, v{L16}')
    for t in range(7):
        for i in range(7):
            for hf in range(2):
                e(f'buffer_load_dwordx4 {wreg((t * 14 + 2 * i + hf) * 4, 4, VB)}, v{MKA}, {WSR}, {sK[i]} offen offset:{hf * 1024}')
        if t < 6: e(f'v_add_u32 v{MKA}, {14 * 1024}, v{MKA}')
    e(f's_mul_i32 {sT2}, {S_LAY}, {MA_LAYER}\ns_add_u32 {sT2}, {sT2}, {WS_MA}')
    for i in range(7): e(f's_sub_u32 {sK[i]}, {sK[i]}, {sT}\ns_lshr_b32 {sK[i]}, {sK[i]}, 1\ns_add_u32 {sK[i]}, {sK[i]}, {sT2}')
    g = lambda l: l >> 4
    c = lambda l: l & 15
    def g1(l, half): return 8 + ((2 * half + (g(l) >> 1)) if g(l) % 2 == 0 else 4 + (g(l) >> 1))
    lanefn(e, MKA, lambda l: (c(l) & 7) * 16 + 128 * (g(l) if c(l) < 8 else g1(l, 0)), LANE, tmp)
    lanefn(e, MKB, lambda l: (c(l) & 7) * 16 + 128 * (4 + g(l) if c(l) < 8 else g1(l, 1)), LANE, tmp)
    lanefn(e, X0, lambda l: c(l) * 16 + 512 * g(l), LANE, tmp)
    lanefn(e, X1, lambda l: c(l) * 16 + 512 * g1(l, 0), LANE, tmp)
    lanefn(e, X2, lambda l: c(l) * 16 + 512 * g1(l, 1), LANE, tmp)
    e(f's_mul_i32 {sT}, {S_W}, {14 * 128}')
    for r in (MKA, MKB): e(f'v_add_u32 v{r}, {sT}, v{r}')
    e(f's_mul_i32 {sT}, {S_W}, {14 * 512}')
    for r in (X0, X1, X2): e(f'v_add_u32 v{r}, {sT}, v{r}')
    lanefn(e, IDX0, lambda l: 0xeeeeeeee if l & 1 else 0x44444444, LANE, tmp)
    lanefn(e, IDX1, lambda l: (0xeeeeeeee if l & 1 else (0xee44ee44 if g(l) >= 2 else 0x44444444)), LANE, tmp)
    for rho in range(4):
        lanefn(e, SEL + rho, lambda l: 0x3f803f80 if ((l & 1) == rho >> 1 and (c(l) >> 1) == 2 * g(l) + (rho & 1)) else 0, LANE, tmp)
    e(f'v_lshlrev_b32 v{RD}, 2, v{LANE}\ns_mul_i32 {sT}, {S_W}, 768\nv_add_u32 v{LW}, {sT}, v{RD}')
    dl = lambda l: 8 * (c(l) >> 3) + 2 * (c(l) & 3) + ((c(l) >> 2) & 1)
    lanefn(e, RD, lambda l: (g(l) & 1) * 3072 + ((g(l) >> 1) * 16 + dl(l)) * 4, LANE, tmp)
    e(f's_and_b32 {sT}, {S_W}, 1\ns_lshl_b32 {sT2}, {sT}, 7\nv_add_u32 v{RD}, {sT2}, v{RD}')
    lanefn(e, PM, lambda l: g(l) * 16 + c(l) * 4 if c(l) < 4 else BIG, LANE, tmp)
    lanefn(e, PX, lambda l: (c(l) >> 3) * 256 + g(l) * 32 + (c(l) & 7) * 4, LANE, tmp)
    e(f's_lshl_b32 {sT2}, {sT}, 7\nv_add_u32 v{PX}, {sT2}, v{PX}\ns_lshl_b32 {sT2}, {sT}, 6\nv_add_u32 v{PM}, {sT2}, v{PM}')
    e(f's_and_b32 s21, {S_ID}, 3\ns_lshr_b32 {sT}, {S_ID}, 2\ns_mul_i32 {sT}, {sT}, 2560\ns_lshl_b32 {sT2}, s21, 9\ns_add_u32 {sT2}, {sT2}, {sT}\nv_add_u32 v{PX}, {sT2}, v{PX}')
    e(f's_lshl_b32 {sT2}, s21, 7\ns_add_u32 {sT2}, {sT2}, {sT}\ns_add_u32 {sT2}, {sT2}, 2048\nv_add_u32 v{PM}, {sT2}, v{PM}')
    e(f'v_min_u32 v{SGP}, 55, v{LANE}\nv_lshlrev_b32 v{SGP}, 2, v{SGP}\ns_and_b32 {sT}, {S_ID}, {NR - 1}\ns_lshl_b32 {sT}, {sT}, 8\nv_add_u32 v{SGP}, {sT}, v{SGP}')
    lanefn(e, SGS, lambda l: l * 256 if l < NR else BIG, LANE, tmp)
    e(f's_lshl_b32 {sT}, {S_ID}, 1\ns_and_b32 {sT2}, {S_W}, 1\ns_add_u32 {sT}, {sT}, {sT2}\ns_lshl_b32 {sT}, {sT}, 2\nv_add_u32 v{SGS}, {sT}, v{SGS}')
    e(f's_mul_i32 {sT}, {S_LAY}, {MA_LAYER}\ns_add_u32 {sMS}, {sT}, {WS_MA}\ns_add_u32 {sMN}, {sMS}, 7168')
    e(f's_mul_i32 {sT}, {S_LAY}, {64 * PR_STEP}\ns_add_u32 {sP}, {sT}, {WS_PR}')
    e(f's_lshl_b32 {sT}, {S_LAY}, 13\ns_add_u32 {sSigP}, {sT}, {WS_SIG}\ns_add_u32 {sSigS}, {sSigP}, 4096')
    e(f's_mul_i32 {sX}, {S_LAY}, {X_LAYER}\ns_add_u32 {sX}, {sX}, {WS_XN0}')
    e(f's_mov_b32 {sTag}, 1')
    sV = 's21'; TCH = 0; sVer = 's22'
    e(f's_mov_b32 {sVer}, 0')
    PL = [17, 22, 23, LANE]
    def xload(f0=0):
        for kt in range(2):
            for grp in range(2):
                for half in range(2):
                    f = kt * 4 + grp * 2 + half
                    va = X0 if grp == 0 else (X1, X2)[half]
                    off = kt * 256 + (2048 if (grp == 0 and half == 1) else 0)
                    if f >= f0: e(f'buffer_load_dwordx4 {vr(XK + 4 * f, 4)}, v{va}, {WSR}, {sX} offen offset:{off} sc1')
    wait_init(e, 52)
    pst(e, cfg, 5)
    xload()
    XS = 17; sM0 = 's21'; sXn = 's24'
    PL = [22, 23, LANE, CHK]
    e(f's_lshl_b32 {sM0}, {S_W}, 13\ns_add_u32 {sM0}, {sM0}, 8192\nv_add_u32 v{XS}, {sM0}, v{L16}')
    xdma = []
    for kt in range(2):
        for grp in range(2):
            for half in range(2):
                f = kt * 4 + grp * 2 + half
                va = X0 if grp == 0 else (X1, X2)[half]
                off = kt * 256 + (2048 if (grp == 0 and half == 1) else 0)
                xdma.append((f's_add_i32 m0, {sM0}, {f * 1024 - off}', f'buffer_load_dwordx4 v{va}, {WSR}, {sX} offen offset:{off} sc1 lds'))
    TAG = 0
    def poison():
        e(f'v_mov_b32 v{CHK}, -1')
        for k in range(6): e(f'ds_write2st64_b32 v{RD}, v{CHK}, v{CHK} offset0:{2 * k} offset1:{2 * k + 1}')
        e('s_waitcnt lgkmcnt(0)')
    poison()
    W = lambda t, kb: wreg((t * 7 + kb) * 8, 8, VB)
    S = lambda t, kb: f'v_smfmac_f32_16x16x64_bf16 {vr(ACC + 4 * t, 4)}, {vr(MF + 4 * kb, 4)}, {W(t, kb)}, v{IDX0}'
    pk = lambda d, a: f'v_cvt_pk_bf16_f32 v{d}, v{a}, v{a + 1}'
    e('A_loop:')
    for i in range(0, 28, 2): e(f'v_mov_b64 {vr(ACC + i, 2)}, 0')
    e('A_xchk:')
    ck = chk(range(XK, XK + 32), CHK, True)
    e('s_waitcnt vmcnt(0) lgkmcnt(0)')
    for x in ck: e(x)
    e(f'v_cmp_eq_u32 vcc, -1, v{CHK}\ns_cbranch_vccnz A_xbad')
    e(f's_add_u32 {sX}, {sX}, 28672')
    stamp(e, 0)
    if cfg.get('cst') and cfg['cst'] != 'g': e(f's_cmp_lg_u32 {sTag}, 9\ns_cbranch_scc1 A_c9\ns_memtime s[78:79]\nA_c9:')
    e(f'v_mov_b32 v{TAG}, {sTag}\ns_add_u32 {sT}, {sMS}, 4096')
    e(f's_cmp_lg_u32 {S_W}, 3\ns_cbranch_scc1 A_go')
    sig_poll(e, SGP, sSigP, sTag, PL[:cfg.get('pd', 4)], 0, 'FAIL')
    if cfg.get('dA'): e(f's_nop {cfg["dA"] - 1}')
    e('A_go:\ns_barrier')
    e('A_retry:')
    stamp(e, 1)
    ldm = lambda kb: f'buffer_load_dwordx4 {vr(MF + 4 * kb, 4)}, v{L16}, {WSR}, {sK[kb]} offen sc1'
    gap = cfg.get('gap', 2)
    for kb in range(4):
        e(ldm(kb))
        if kb < 3 and gap: e(f's_nop {gap}')
    later = [ldm(4), ldm(5), ldm(6),
             f'buffer_load_dwordx4 {vr(MK, 4)}, v{MKA}, {WSR}, {sMN} offen sc1',
             f'buffer_load_dwordx4 {vr(MK + 4, 4)}, v{MKB}, {WSR}, {sMN} offen sc1']
    z2 = lambda r: f'v_mov_b64 {vr(r, 2)}, 0'
    e('s_waitcnt vmcnt(3)')
    stamp(e, 2)
    for t in range(7):
        e(S(t, 0))
        if t in (0, 2, 4): e(later.pop(0))
    e('s_waitcnt vmcnt(5)')
    for t in range(7):
        e(S(t, 1))
        if t in (0, 3): e(later.pop(0))
    e('s_waitcnt vmcnt(6)')
    interleave(e, [S(t, 2) for t in range(7)], [z2(MF + i) for i in (0, 2, 4, 6)], 1)
    e('s_waitcnt vmcnt(5)')
    interleave(e, [S(t, 3) for t in range(7)], [z2(MF + i) for i in (8, 10)], 1)
    e('s_waitcnt vmcnt(2)')
    stamp(e, 3)
    T = lambda d, a: f'v_mfma_f32_16x16x32_bf16 {vr(d, 4)}, {vr(a, 4)}, {vr(SEL, 4)}, 0'
    C = lambda d, a, b, idx: f'v_smfmac_f32_16x16x64_bf16 {vr(d, 4)}, {vr(a, 4)}, {vr(b, 8)}, v{idx}'
    S0, S1, S2A, S2B = MF, MF + 4, MF + 8, MF + 12
    E0, E1 = ACC, ACC + 4
    A = ACC
    add = lambda d, a: f'v_add_f32 v{d}, v{a}, v{a + 1}'
    seq = [
        (S(6, 4), z2(MF + 12)), (S(6, 5), z2(MF + 14)), (S(6, 6), ''),
        (S(4, 4), ''), (S(4, 5), pk(A + 24, A + 24)), (S(4, 6), pk(A + 25, A + 26)),
        (S(5, 4), ''),
        (f'v_mfma_f32_16x16x16_bf16 {vr(A + 24, 4)}, {vr(A + 24, 2)}, {vr(SEL, 2)}, 0', pk(A + 16, A + 16) + '\n' + pk(A + 17, A + 18)),
        (S(5, 5), ''), (S(5, 6), ''),
        (S(0, 4), ''), (S(0, 5), pk(A + 18, A + 20)), (S(0, 6), pk(A + 19, A + 22)),
        (S(1, 4), ''),
        (T(A + 20, A + 16), pk(A + 18, A + 24) + '\n' + pk(A + 19, A + 26)),
        (S(1, 5), pk(A + 0, A + 0)), (S(1, 6), pk(A + 16, A + 20)),
        (S(2, 4), pk(A + 17, A + 22)), (S(2, 5), pk(A + 1, A + 2)), (S(2, 6), pk(A + 2, A + 4)),
        (S(3, 4), pk(A + 3, A + 6)), (S(3, 5), pk(A + 8, A + 8)), (S(3, 6), pk(A + 9, A + 10)),
        (T(A + 4, A + 0), 's_waitcnt vmcnt(NDMA)'),
        (C(S2B, A + 16, MK, IDX1), pk(A + 10, A + 12) + '\n' + pk(A + 11, A + 14)),
        (C(S0, A + 16, XK + 8, IDX1), pk(A + 0, A + 4)),
        (T(A + 12, A + 8), pk(A + 1, A + 6) + '\n' + add(S2B, S2B)),
        (C(S1, A + 16, XK + 24, IDX1), add(S2B + 2, S2B + 2)),
    ]
    xd = list(xdma)
    xpos = cfg.get('xpos', (2, 6, 10, 13))
    nd = 0
    for k, (m, f) in enumerate(seq):
        if k in xpos: e(xd[0][0])
        e(m)
        if k in xpos: e(xd.pop(0)[1]); nd += 1
        e(f.replace('NDMA', str(nd)))
    nlate = len(xd)
    e(f's_mov_b32 vcc_lo, 0xff00ff00\ns_mov_b32 vcc_hi, 0xff00ff00')
    e(pk(A + 2, A + 12)); e(pk(A + 3, A + 14))
    e(C(S2A, A, MK, IDX0))
    e(C(S0, A, XK, IDX0))
    e(C(S1, A, XK + 16, IDX0))
    wr = lambda kt, a, b: e(f'ds_write2st64_b32 v{LW}, v{a}, v{b} offset0:{kt} offset1:{12 + kt}')
    e(add(S2A, S2A)); e(add(S2A + 2, S2A + 2))
    e(f'v_cndmask_b32 v{S2A}, v{S2A}, v{S2B}, vcc\nv_cndmask_b32 v{S2A + 2}, v{S2A + 2}, v{S2B + 2}, vcc')
    e(add(S0, S0)); wr(2, S2A, S2A + 2); e(add(S0 + 2, S0 + 2))
    e(f'v_cmp_u_f32 vcc, v{S2A}, v{S2A + 2}')
    e(add(S1, S1)); wr(0, S0, S0 + 2); e(add(S1 + 2, S1 + 2))
    wr(1, S1, S1 + 2)
    e('s_cbranch_vccnz A_bad')
    e('A_ok:')
    stamp(e, 4)
    if cfg.get('ldsw'): e('s_waitcnt lgkmcnt(0)')
    e(f's_cmp_ge_u32 {S_W}, 2\ns_barrier\ns_cbranch_scc1 A_other')
    R = ACC; MX = R + 4
    sp = cfg.get('sigA', 1)
    pa = lambda d, a, b: e(f'v_pk_add_f32 {vr(d, 2)}, {vr(a, 2)}, {vr(b, 2)}')
    def softmax(fast):
        def sg(k):
            if fast and k == sp: e(f'buffer_store_dword v{TAG}, v{SGS}, {WSR}, {sSigS} offen')
        e(f'ds_read2st64_b32 {vr(R + 2, 2)}, v{RD} offset0:2 offset1:5\nds_read2st64_b32 {vr(R + 6, 2)}, v{RD} offset0:8 offset1:11')
        for w in range(4): e(f'ds_read2st64_b32 {vr(R + 8 + 2 * w, 2)}, v{RD} offset0:{3 * w} offset1:{3 * w + 1}')
        sg(0)
        e('s_waitcnt lgkmcnt(4)')
        pa(R + 2, R + 2, R + 6)
        e('s_waitcnt lgkmcnt(2)')
        e(f'v_add_f32 v{R + 2}, v{R + 2}, v{R + 3}')
        pa(R + 8, R + 8, R + 10)
        e('s_waitcnt lgkmcnt(0)')
        if fast: stamp(e, 5)
        pa(R + 12, R + 12, R + 14)
        e(f'v_add_f32_dpp v{R + 2}, v{R + 2}, v{R + 2} row_ror:8 {DPPM}')
        pa(R, R + 8, R + 12)
        e(f'v_max3_f32 v{MX}, v{R}, v{R + 1}, v{R + 2}')
        for k, n in enumerate((1, 2, 4, 8)):
            sg(1 + k); e(f'v_max_f32_dpp v{MX}, v{MX}, v{MX} row_ror:{n} {DPPM}')
        e(f'v_sub_f32 v{R + 2}, v{R + 2}, v{MX}')
        e(f'v_pk_add_f32 {vr(R, 2)}, {vr(R, 2)}, {vr(MX, 2)} op_sel_hi:[1,0] neg_lo:[0,1] neg_hi:[0,1]')
        for k in (2, 0, 1): e(f'v_exp_f32 v{R + k}, v{R + k}')
        e(f'v_fma_f32 v{MX}, v{R + 2}, 0.5, v{R}\nv_add_f32 v{MX}, v{MX}, v{R + 1}')
        e(f'v_mov_b32_dpp v{R + 3}, v{R + 2} row_ror:12 {DPPM}')
        for k, n in enumerate((1, 2, 4, 8)):
            sg(5 + k); e(f'v_add_f32_dpp v{MX}, v{MX}, v{MX} row_ror:{n} {DPPM}')
        e(f'v_rcp_f32 v{MX + 2}, v{MX}')
        if fast: e(f'v_cmpx_o_f32 vcc, v{MX}, v{MX}')
        e(f'v_pk_mul_f32 {vr(R, 2)}, {vr(R, 2)}, {vr(MX + 2, 2)} op_sel_hi:[1,0]')
        e(f'v_cvt_pk_bf16_f32 v{R}, |v{R}|, |v{R + 1}|')
        e(f'v_pk_mul_f32 {vr(R + 2, 2)}, {vr(R + 2, 2)}, {vr(MX + 2, 2)} op_sel_hi:[1,0]')
        e(f'buffer_store_dword v{R}, v{PX}, {WSR}, {sP} offen')
        e(f'v_cvt_pk_bf16_f32 v{R + 2}, |v{R + 2}|, |v{R + 3}|')
        e(f'buffer_store_dword v{R + 2}, v{PM}, {WSR}, {sP} offen')
    softmax(True)
    stamp(e, 6)
    e('s_cmp_lg_u64 exec, -1\ns_mov_b64 exec, -1\ns_barrier\ns_cbranch_scc1 A_sbad')
    e('A_sok:')
    poison()
    e('s_branch A_next')
    e('A_sbad:')
    e('s_add_u32 s98, s98, 0x10000\ns_nop 4')
    softmax(False)
    e('s_branch A_sok')
    e('A_other:')
    e('s_waitcnt lgkmcnt(0)\ns_barrier')
    e('A_next:')
    xload(8 - nlate)
    e(f's_waitcnt vmcnt({nlate})')
    for f in range(8 - nlate): e(f'ds_read_b128 {vr(XK + 4 * f, 4)}, v{XS} offset:{f * 1024}')
    trace(e, cfg, 0, sTag, CHK, 2)
    for i in range(7): e(f's_add_u32 {sK[i]}, {sK[i]}, {MA_STEP}')
    e(f's_add_u32 {sMN}, {sMN}, {MA_STEP}\ns_add_u32 {sP}, {sP}, {PR_STEP}\ns_add_u32 {sTag}, {sTag}, 1')
    e(f's_cmp_le_u32 {sTag}, {nsteps}\ns_cbranch_scc1 A_loop')
    e('s_branch DONE')
    e('A_xbad:')
    xload()
    e('s_sub_u32 s99, s99, 1\ns_cbranch_scc1 FAIL\ns_branch A_xchk')
    e('A_bad:')
    e(f's_cmp_eq_u32 {sVer}, {sTag}\ns_cbranch_scc1 A_ok')
    e('s_add_u32 s98, s98, 1')
    e('A_bad1:')
    for kb in range(7): e(ldm(kb))
    e(f'buffer_load_dwordx4 {vr(MK, 4)}, v{MKA}, {WSR}, {sMN} offen sc1')
    e(f'buffer_load_dwordx4 {vr(MK + 4, 4)}, v{MKB}, {WSR}, {sMN} offen sc1')
    e('s_sub_u32 s99, s99, 1\ns_cbranch_scc1 FAIL')
    e('s_waitcnt vmcnt(0)')
    for x in chk(list(range(MF, MF + 28)) + list(range(MK, MK + 8)), CHK, True): e(x)
    e(f'v_cmp_eq_u32 vcc, -1, v{CHK}\ns_cbranch_vccnz A_bad1')
    e(f's_mov_b32 {sVer}, {sTag}')
    for i in range(0, 28, 2): e(z2(ACC + i))
    e('s_branch A_retry')

def rec_b(e, cfg):
    stamp = lambda e, i: cst(e, cfg, i)
    nsteps = cfg.get('nsteps', 63)
    VB = 120
    (L16, L8, IDX0, LW, RD, OS, ON, SGP, SGS, CHK, LANE, LWT) = range(1, 13)
    PL = [13, 14, 15, 0]
    MF = 16; VX = 44; ACC = 76; VM = 84; WT = 92
    PP = MF
    tmp = list(range(44, 54))
    sV, sMS, sMN, sP, sTag, sSigP, sSigS, sT, sT2 = 's12', 's13', 's14', 's15', 's16', 's17', 's18', 's19', 's20'
    LM = 57344; LX = 65536
    g = lambda l: l >> 4
    c = lambda l: l & 15
    e(f'v_and_b32 v{LANE}, 63, v0\nv_lshlrev_b32 v{L16}, 4, v{LANE}')
    wait_b(e, 44)
    pst(e, cfg, 4)
    e(f's_lshl_b32 {sT}, {S_ID}, 2\ns_add_u32 {sT}, {sT}, {S_W}\ns_mul_i32 {sT}, {sT}, {112 * 1024}\ns_add_u32 {sT}, {sT}, {WS_WB}')
    load_weights(e, 98, L16, sT, VB)
    e(f's_add_u32 {sT}, {sT}, 2048\ns_mul_i32 {sT2}, {S_W}, 14336')
    for i in range(14):
        e(f's_add_u32 m0, {sT2}, {i * 1024}\nbuffer_load_dwordx4 v{L16}, {WSR}, {sT} offen lds\ns_add_u32 {sT}, {sT}, 1024')
    e(f'v_add_u32 v{LWT}, {sT2}, v{L16}')
    lanefn(e, IDX0, lambda l: 0xeeeeeeee if l & 1 else 0x44444444, LANE, tmp)
    e(f'v_lshlrev_b32 v{RD}, 2, v{LANE}\ns_lshl_b32 {sT}, {S_W}, 9\ns_add_u32 {sT}, {sT}, {LX}\nv_add_u32 v{LW}, {sT}, v{RD}')
    lm = lambda l: l >> 3
    lp = lambda l: (l >> 2) & 1
    lq_ = lambda l: l & 3
    lanefn(e, RD, lambda l: LX + (lm(l) & 1) * 2048 + (lq_(l) & 1) * 256 + ((lm(l) >> 1) * 16 + 4 * (lq_(l) >> 1) + 2 * lp(l)) * 4, LANE, tmp)
    e(f's_and_b32 {sT}, {S_W}, 1\ns_lshl_b32 {sT2}, {sT}, 5\nv_add_u32 v{RD}, {sT2}, v{RD}')
    lanefn(e, ON, lambda l: (lq_(l) >> 1) * 128 + lm(l) * 16 + (2 * (lq_(l) & 1) + lp(l)) * 4, LANE, tmp)
    e(f's_lshl_b32 {sT2}, {S_ID}, 1\ns_add_u32 {sT2}, {sT2}, {sT}\ns_lshl_b32 {sT2}, {sT2}, 8\nv_add_u32 v{ON}, {sT2}, v{ON}\nv_lshl_add_u32 v{OS}, v{LANE}, 2, {sT2}')
    e(f'v_lshlrev_b32 v{L8}, 3, v{LANE}')
    SGM = 109; TAG = 108
    e(f's_and_b32 {sT}, {S_ID}, {NR - 1}\ns_lshl_b32 {sT}, {sT}, 8')
    e(f'v_min_u32 v{SGP}, 31, v{LANE}\nv_lshl_add_u32 v{SGP}, v{SGP}, 2, {sT}')
    e(f'v_min_u32 v{SGM}, 56, v{LANE}\nv_lshl_add_u32 v{SGM}, v{SGM}, 2, {sT}')
    lanefn(e, SGS, lambda l: l * 256 if l < NR else BIG, LANE, tmp)
    e(f's_lshl_b32 {sT}, {S_ID}, 2\ns_add_u32 {sT}, {sT}, {S_W}\ns_lshl_b32 {sT}, {sT}, 2\nv_add_u32 v{SGS}, {sT}, v{SGS}')
    e(f's_mul_i32 {sT}, {S_LAY}, {MA_LAYER}\ns_add_u32 {sMS}, {sT}, {WS_MA}\ns_add_u32 {sMN}, {sMS}, 7168')
    e(f's_mul_i32 {sT}, {S_LAY}, {64 * PR_STEP}\ns_add_u32 {sP}, {sT}, {WS_PR}')
    e(f's_mul_i32 {sT}, {S_W}, 2560\ns_add_u32 {sP}, {sP}, {sT}')
    e(f's_lshl_b32 {sT}, {S_LAY}, 13\ns_add_u32 {sSigS}, {sT}, {WS_SIG}\ns_add_u32 {sSigP}, {sSigS}, 4096')
    e(f's_mul_i32 {sV}, {S_LAY}, {VX_LAYER}\ns_add_u32 {sV}, {sV}, {WS_VX}')
    e(f's_lshl_b32 {sT}, {S_ID}, 2\ns_add_u32 {sT}, {sT}, {S_W}\ns_lshl_b32 {sT}, {sT}, 13\ns_add_u32 {sV}, {sV}, {sT}')
    e(f's_mov_b32 {sTag}, 1')
    wait_init(e, 44)
    e('s_waitcnt vmcnt(0)')
    pst(e, cfg, 5)
    def poison():
        e(f'v_mov_b64 {vr(ACC, 2)}, -1')
        for k in range(2): e(f'ds_write2st64_b64 v{RD}, {vr(ACC, 2)}, {vr(ACC, 2)} offset0:{2 * k} offset1:{2 * k + 1}')
        e('s_waitcnt lgkmcnt(0)')
    poison()
    AC7 = 110
    z2 = lambda r: f'v_mov_b64 {vr(r, 2)}, 0'
    e('B_loop:')
    stamp(e, 0)
    e(f's_add_u32 {sT2}, {sV}, 4096\ns_add_u32 {sT}, {sMS}, 4096')
    vl = [f'buffer_load_dwordx4 {vr(VX + 4 * f, 4)}, v{L16}, {WSR}, {sV if f < 4 else sT2} offen offset:{(f % 4) * 1024} sc1' for f in range(8)]
    ldm = lambda kb: f'buffer_load_dwordx4 {vr(MF + 4 * kb, 4)}, v{L16}, {WSR}, {sMS if kb < 4 else sT} offen offset:{(kb % 4) * 1024} sc1'
    e(f's_cmp_lg_u32 {S_W}, 3\ns_cbranch_scc1 B_w012')
    e(f's_mov_b32 m0, {LM}')
    sig_poll(e, SGM, sSigS, sTag, PL[:cfg.get('pdm', 3)], 0, 'FAIL')
    if cfg.get('dBM', 2): e(f's_nop {cfg.get("dBM", 2) - 1}')
    for kb in range(7):
        if kb == 4: e(f's_mov_b32 m0, {LM + 4096}')
        e(f'buffer_load_dwordx4 v{L16}, {WSR}, {sMS if kb < 4 else sT} offen offset:{(kb % 4) * 1024} sc1 lds')
    e('B_w012:')
    e('s_barrier')
    acc = lambda t: AC7 if t == 7 else ACC + 4 * (t & 1)
    W = lambda t, kb: wreg((t * 7 + kb) * 8, 8, VB) if t < 7 else vr(WT + 8 * (kb & 1), 8)
    S = lambda t, kb: f'v_smfmac_f32_16x16x64_bf16 {vr(acc(t), 4)}, {vr(MF + 4 * kb, 4)}, {W(t, kb)}, v{IDX0}'
    wrd = lambda kb: [f'ds_read_b128 {vr(WT + 8 * (kb & 1) + 4 * i, 4)}, v{LWT} offset:{(2 * kb + i) * 1024}' for i in range(2)]
    nv0 = cfg.get('nv0', 8)
    for x in vl[:nv0]: e(x)
    def vinit():
        for x in wrd(0) + wrd(1): e(x)
        for r in (ACC, ACC + 2, ACC + 4, ACC + 6, AC7, AC7 + 2): e(z2(r))
    vinit()
    e(f's_waitcnt vmcnt({nv0})\ns_barrier')
    stamp(e, 1)
    for kb in range(7): e(f'ds_read_b128 {vr(MF + 4 * kb, 4)}, v{L16} offset:{LM + kb * 1024}')
    e('B_m1:')
    def post(t):
        a = acc(t); hh, ct = t >> 1, t & 1
        return [f'v_add_f32 v{a}, v{a}, v{a + 1}', f'v_add_f32 v{a + 2}, v{a + 2}, v{a + 3}' + (f'\nv_cmp_u_f32 vcc, v{a}, v{a + 2}' if t == 0 else ''),
                f'v_cvt_pk_bf16_f32 v{VM + 4 * ct + (0, 2, 1, 3)[hh]}, v{a}, v{a + 2}'] + ([z2(a), z2(a + 2)] if t < 7 else [])
    e('s_waitcnt lgkmcnt(6)')
    e(S(7, 0))
    for t in range(7):
        fill = (post(t - 1) if t else (vl[nv0:] + [''] * 5)[:5]) + (wrd(t + 2) if t < 5 else [])
        for kb in range(7):
            if t == 0 and kb: e(f's_waitcnt lgkmcnt({6 - kb if kb < 6 else 1})')
            e(S(t, kb))
            if fill: e(fill.pop(0))
        if t < 6:
            e(f's_waitcnt lgkmcnt({2 if t < 5 else 0})')
            e(S(7, t + 1))
        if t == 1: e('s_cbranch_vccnz B_mbad\nB_mok:')
    e(f's_add_u32 {sMS}, {sMS}, {MA_STEP}\ns_add_u32 {sMN}, {sMN}, {MA_STEP}')
    stamp(e, 2)
    e(f's_cmp_lg_u32 {S_W}, 3\ns_cbranch_scc1 B_go')
    sig_poll(e, SGP, sSigP, sTag, PL[:cfg.get('pd', 4)], 0, 'FAIL')
    if cfg.get('dB'): e(f's_nop {cfg["dB"] - 1}')
    e('B_go:\ns_barrier')
    sp = cfg.get('sigB', 2)
    def sg(k):
        if k == sp: e(f'buffer_store_dword v{TAG}, v{SGS}, {WSR}, {sSigS} offen')
    stamp(e, 4)
    gp = cfg.get('gapB', 2)
    def ldp():
        e(f'buffer_load_dwordx4 {vr(PP, 4)}, v{L16}, {WSR}, {sP} offen sc1\ns_nop {gp}')
        e(f'buffer_load_dwordx4 {vr(PP + 4, 4)}, v{L16}, {WSR}, {sP} offen offset:1024 sc1\ns_nop {gp}')
        e(f'buffer_load_dwordx2 {vr(PP + 8, 2)}, v{L8}, {WSR}, {sP} offen offset:2048 sc1')
    ldp()
    for x in post(6) + post(7): e(x)
    e(f's_add_u32 {sT}, {sTag}, 1\nv_mov_b32 v{TAG}, {sT}')
    for n, prs in ((32, ((0, 1), (2, 3))), (16, ((0, 2), (1, 3)))):
        for ct in range(2):
            for a, b in prs: e(f'v_permlane{n}_swap_b32 v{VM + 4 * ct + a}, v{VM + 4 * ct + b}')
    e('B_retry:')
    O = lambda pp, ct: f'v_smfmac_f32_16x16x64_bf16 {vr(ACC + 4 * ct, 4)}, {vr(PP + 4 * pp, 4)}, {vr(VX + 16 * pp + 8 * ct, 8)}, v{IDX0}'
    e('s_waitcnt vmcnt(2)')
    e(O(0, 0)); e(O(0, 1))
    e('s_waitcnt vmcnt(1)')
    e(O(1, 0)); e(O(1, 1))
    e('s_waitcnt vmcnt(0)')
    stamp(e, 5)
    e(f'v_smfmac_f32_16x16x32_bf16 {vr(ACC, 4)}, {vr(PP + 8, 2)}, {vr(VM, 4)}, v{IDX0}')
    sg(0)
    e(f'v_smfmac_f32_16x16x32_bf16 {vr(ACC + 4, 4)}, {vr(PP + 8, 2)}, {vr(VM + 4, 4)}, v{IDX0}')
    sg(1)
    E = WT + 4
    e(f'v_add_f32 v{E}, v{ACC}, v{ACC + 1}\nv_add_f32 v{E + 2}, v{ACC + 2}, v{ACC + 3}')
    e(f'ds_write2st64_b32 v{LW}, v{E}, v{E + 2} offset0:0 offset1:8')
    e(f'v_cmp_u_f32 vcc, v{E}, v{E + 2}')
    e(f'v_add_f32 v{E + 1}, v{ACC + 4}, v{ACC + 5}\nv_add_f32 v{E + 3}, v{ACC + 6}, v{ACC + 7}')
    e(f'ds_write2st64_b32 v{LW}, v{E + 1}, v{E + 3} offset0:1 offset1:9')
    e('s_cbranch_vccnz B_bad')
    e('B_ok:')
    sg(2)
    if cfg.get('ldsw'): e('s_waitcnt lgkmcnt(0)')
    e(f's_cmp_ge_u32 {S_W}, 2\ns_barrier\ns_cbranch_scc1 B_oth')
    pa = lambda d, a, b: e(f'v_pk_add_f32 {vr(d, 2)}, {vr(a, 2)}, {vr(b, 2)}')
    def final(fast):
        for w in range(2): e(f'ds_read2st64_b64 {vr(ACC + 4 * w, 4)}, v{RD} offset0:{2 * w} offset1:{2 * w + 1}')
        if fast: sg(3)
        e('s_waitcnt lgkmcnt(1)')
        pa(ACC, ACC, ACC + 2)
        e('s_waitcnt lgkmcnt(0)')
        pa(ACC + 4, ACC + 4, ACC + 6); pa(ACC, ACC, ACC + 4)
        e(f'v_cvt_pk_bf16_f32 v{E}, v{ACC}, v{ACC + 1}')
        e(f'v_cmpx_o_f32 vcc, v{ACC}, v{ACC + 1}' if fast else f'v_min_u32 v{E}, -2, v{E}')
        e(f'buffer_store_dword v{E}, v{OS}, {WSR}, {sMS} offen')
        e(f'buffer_store_dword v{E}, v{ON}, {WSR}, {sMN} offen')
    final(True)
    stamp(e, 6)
    e('s_cmp_lg_u64 exec, -1\ns_mov_b64 exec, -1\ns_barrier\ns_cbranch_scc0 B_fok')
    e('s_add_u32 s98, s98, 0x1000000')
    final(False)
    e('B_fok:')
    poison()
    e('s_branch B_next')
    e('B_oth:')
    sg(3)
    e('s_waitcnt lgkmcnt(0)\ns_barrier')
    e('B_next:')
    trace(e, cfg, 0, sTag, 115, 2)
    e(f's_add_u32 {sP}, {sP}, {PR_STEP}\ns_add_u32 {sV}, {sV}, {VX_SEG}\ns_add_u32 {sTag}, {sTag}, 1')
    e(f's_cmp_le_u32 {sTag}, {nsteps}\ns_cbranch_scc1 B_loop')
    e('s_branch DONE')
    e('B_bad:')
    for x in chk(range(PP, PP + 10), CHK, True): e(x)
    e(f'v_cmp_eq_u32 vcc, -1, v{CHK}\ns_cbranch_vccz B_ok')
    e('s_add_u32 s98, s98, 1')
    ldp()
    for i in range(0, 8, 2): e(z2(ACC + i))
    e('s_sub_u32 s99, s99, 1\ns_cbranch_scc1 FAIL\ns_branch B_retry')
    e('B_mbad:')
    for x in chk(range(MF, MF + 28), CHK, True): e(x)
    e(f'v_cmp_eq_u32 vcc, -1, v{CHK}\ns_cbranch_vccz B_mok')
    e('s_add_u32 s98, s98, 0x10000')
    for kb in range(7): e(ldm(kb))
    e('s_waitcnt lgkmcnt(0)')
    vinit()
    e('s_sub_u32 s99, s99, 1\ns_cbranch_scc1 FAIL\ns_waitcnt vmcnt(0) lgkmcnt(0)\ns_branch B_m1')

def rec_h(e, cfg):
    nsteps = cfg.get('nsteps', 63)
    LANE, L128, L4, L16, SGS = 1, 2, 3, 4, 5
    sF, sSig, sX, sTag, sT, sD, sDs = 's12', 's13', 's14', 's16', 's19', 's21', 's22'
    e(f'v_and_b32 v{LANE}, 63, v0')
    wait_init(e, 10)
    e(f's_lshl_b32 {sSig}, {S_LAY}, 13\ns_add_u32 {sSig}, {sSig}, {WS_SIG}')
    e(f's_cmp_eq_u32 {S_ID}, 1\ns_cbranch_scc1 H_fwd')
    e(f'v_lshlrev_b32 v{L128}, 7, v{LANE}')
    e(f'v_min_u32 v{L4}, 55, v{LANE}\nv_lshlrev_b32 v{L4}, 7, v{L4}')
    e(f'v_lshlrev_b32 v{SGS}, 8, v{LANE}')
    e(f's_mul_i32 {sF}, {S_LAY}, 24576\ns_add_u32 {sF}, {sF}, {WS_VF}\ns_mov_b32 s17, {sF}\ns_add_u32 s18, {sF}, 24576')
    e(f's_mov_b32 {sTag}, 1')
    e(f's_lshl_b32 {sT}, {S_W}, 13\ns_mul_i32 {sX}, {S_LAY}, {X_LAYER}\ns_add_u32 {sX}, {sX}, {WS_XN0 + TILE}\ns_add_u32 {sX}, {sX}, {sT}')
    e(f's_mul_i32 {sD}, {S_LAY}, {64 * PR_STEP}\ns_add_u32 {sD}, {sD}, {WS_PR}\ns_add_u32 {sD}, {sD}, {sT}\ns_mov_b32 {sDs}, {PR_STEP}')
    e(f's_cmp_lt_u32 {S_W}, 2\ns_cbranch_scc1 H_loop')
    e(f's_mul_i32 {sD}, {S_LAY}, {MA_LAYER}\ns_add_u32 {sD}, {sD}, {WS_MA + MA_STEP}\ns_sub_u32 {sT}, {S_W}, 2\ns_mul_i32 {sT}, {sT}, 6144\ns_add_u32 {sD}, {sD}, {sT}\ns_mov_b32 {sDs}, {MA_STEP}')
    e('H_loop:')
    e(f's_cmp_lg_u32 {sTag}, {FILL_S - 7}\ns_cbranch_scc1 H_l1\ns_mov_b32 s101, {WS_CT + 384}')
    wait_lines(e, WSR, 's101', 1, 14)
    e('H_l1:')
    e(f's_cmp_lg_u32 {S_W}, 0\ns_cbranch_scc1 H_ns')
    e('H_l2:')
    e(f'buffer_load_dword v11, v{L4}, {WSR}, {sF} offen sc1')
    e('s_sub_u32 s99, s99, 1\ns_cbranch_scc1 FAIL')
    e('s_waitcnt vmcnt(0)')
    e(f'v_cmp_gt_u32 vcc, {sTag}, v11\ns_cbranch_vccnz H_l2')
    e(f'v_mov_b32 v12, {sTag}\ns_mov_b64 exec, {(1 << NR) - 1}\nbuffer_store_dword v12, v{SGS}, {WSR}, {sSig} offen offset:224\ns_mov_b64 exec, -1')
    e('H_ns:\ns_barrier')
    trace(e, cfg, 0, sTag, 20)
    e(f'buffer_load_dword v10, v{L128}, {WSR}, {sD} offen sc1')
    e(f'buffer_load_dword v10, v{L128}, {WSR}, {sX} offen sc1')
    e(f's_add_u32 {sF}, {sF}, 8192\ns_cmp_eq_u32 {sF}, s18\ns_cselect_b32 {sF}, s17, {sF}\ns_add_u32 {sD}, {sD}, {sDs}\ns_add_u32 {sX}, {sX}, {TILE}\ns_add_u32 {sTag}, {sTag}, 1')
    e(f's_cmp_le_u32 {sTag}, {nsteps}\ns_cbranch_scc1 H_loop')
    e('s_branch DONE')
    e('H_fwd:')
    e(f'v_min_u32 v{L4}, 55, v{LANE}\nv_lshlrev_b32 v{L4}, 2, v{L4}\nv_add_u32 v{L4}, {(NR - 1) * 256}, v{L4}')
    e(f's_mul_i32 {sT}, {S_W}, 3584\nv_lshlrev_b32 v{L16}, 4, v{LANE}\nv_add_u32 v{L16}, {sT}, v{L16}')
    e(f's_mul_i32 {sD}, {S_LAY}, {MA_LAYER}\ns_add_u32 {sD}, {sD}, {WS_MA + MA_STEP}\ns_mov_b32 {sTag}, 2')
    offs = (0, 1024, 2048, 2560)
    e('H_f0:')
    sig_poll(e, L4, sSig, sTag, [6, 7], 0, 'FAIL')
    e('s_nop 7')
    e('H_f1:')
    for i, o in enumerate(offs): e(f'buffer_load_dwordx4 {vr(12 + 4 * i, 4)}, v{L16}, {WSR}, {sD} offen offset:{o} sc1')
    e(f's_add_u32 {sT}, {sD}, 14336\ns_sub_u32 s99, s99, 1\ns_cbranch_scc1 FAIL')
    e('s_waitcnt vmcnt(0)')
    for x in chk(range(12, 28), 9, True): e(x)
    e('v_cmp_eq_u32 vcc, -1, v9\ns_cbranch_vccnz H_f1')
    for i, o in enumerate(offs[:3]): e(f'buffer_store_dwordx4 {vr(12 + 4 * i, 4)}, v{L16}, {WSR}, {sT} offen offset:{o} sc1')
    e(f's_mov_b32 exec_lo, 0\nbuffer_store_dwordx4 {vr(24, 4)}, v{L16}, {WSR}, {sT} offen offset:2560 sc1\ns_mov_b32 exec_lo, -1')
    trace(e, cfg, 1, sTag, 9)
    e(f's_add_u32 {sD}, {sD}, {MA_STEP}\ns_add_u32 {sTag}, {sTag}, 1')
    e(f's_cmp_le_u32 {sTag}, {nsteps + 1}\ns_cbranch_scc1 H_f0')
    e('s_branch DONE')
```

```python
import sys
sys.path.insert(0, 'gen')
from asmlib import *
from layout import *
import k0 as K0
NAME = 'interleave_layers__memory_aug_recurrent_mem_tr__mixer_channel_mlp__prompt'

def build(path, cfg):
    ref = open('cdna_kernels/%s.s.ref' % NAME).read().split('\n')
    head = [l for l in ref if l.startswith(';') and '@launch' not in l and 'Override launch' not in l and 'grid=ceil' not in l]
    import k1 as K1
    e = Asm(); K1.k1(e, cfg); n = NAME + '_kernel'
    out = '\n'.join(head) + '\n'
    out += '; @launch grid=(256,1,1) block=(256,1,1) lds=163840\n'
    out += '.amdgcn_target "amdgcn-amd-amdhsa--gfx950"\n.text\n'
    out += f'.globl {n}\n.p2align 8\n.type {n},@function\n{n}:\n' + e.text(cfg.get('verbose', False))
    out += '.section .rodata,"a"\n.p2align 6\n' + kd(n, 512, 256, 102, 120)
    open(path, 'w').write(out)

if __name__ == '__main__':
    cfg = eval(sys.argv[2]) if len(sys.argv) > 2 else {}
    build(sys.argv[1], cfg)
```
